```python
import torch

def _softmax(x, axis=-1):
    return torch.softmax(x, dim=axis)

def _gelu(x):
    return torch.nn.functional.gelu(x, approximate='tanh')

def _silu(x):
    return torch.nn.functional.silu(x)

def _sigmoid(x):
    return torch.sigmoid(x)

def _layernorm(x, axis=-1, eps=1e-05):
    m = x.mean(dim=axis, keepdim=True)
    v = x.var(dim=axis, keepdim=True, unbiased=False)
    return (x - m) / torch.sqrt(v + eps)

def _scatter_add(tgt, idx, src, axis=0):
    return tgt.clone().index_add_(axis, idx, src)

def _segment_sum(src, seg, n):
    out = torch.zeros((n,) + src.shape[1:], dtype=src.dtype)
    return out.index_add_(0, seg, src)

def _pad(x, pw):
    flat = tuple((v for pair in reversed(pw) for v in pair))
    return torch.nn.functional.pad(x, flat)
kernel_name = 'sequential_preLN__softmax_full_mha__mixer_gmlp__prompt'

def setup_inputs():

    _w = lambda a: (lambda t: t.to(torch.bfloat16) if t.is_floating_point() else t)(torch.as_tensor(a))

    def _A_setup():
        B, S, D = (1, 2048, 448)
        return {'x': _w((lambda *s: torch.randn(*s, dtype=torch.bfloat16) * 0.05)(B, S, D)), 'wqkv': _w((lambda *s: torch.randn(*s, dtype=torch.bfloat16) * 0.05)(D, 3 * D)), 'wo': _w((lambda *s: torch.randn(*s, dtype=torch.bfloat16) * 0.05)(D, D))}
    _A_in = _A_setup()

    def _B_setup():
        B, S, D, F = (1, 2048, 448, 1792)
        Fh = F // 2
        return {'x': _w((lambda *s: torch.randn(*s, dtype=torch.bfloat16) * 0.05)(B, S, D)), 'w_in': _w((lambda *s: torch.randn(*s, dtype=torch.bfloat16) * 0.4)(D, 2 * Fh)), 'w_sp': _w(0.01 * (lambda *s: torch.randn(*s, dtype=torch.bfloat16) * 0.4)(S, S)), 'b_sp': _w(1.0 + 0.01 * (lambda *s: torch.randn(*s, dtype=torch.bfloat16) * 0.05)(S)), 'w_out': _w((lambda *s: torch.randn(*s, dtype=torch.bfloat16) * 0.05)(Fh, D))}
    _B_in = _B_setup()
    return {'A_x': _A_in['x'], 'A_wqkv': _A_in['wqkv'], 'A_wo': _A_in['wo'], 'B_x': _B_in['x'], 'B_w_in': _B_in['w_in'], 'B_w_sp': _B_in['w_sp'], 'B_b_sp': _B_in['b_sp'], 'B_w_out': _B_in['w_out']}

def reference(A_x, A_wqkv, A_wo, B_x, B_w_in, B_w_sp, B_b_sp, B_w_out):

    def _A_ref(x, wqkv, wo):
        B, S, D = x.shape
        H = 16
        Dh = D // H
        qkv = (lambda x, *d: x.permute(*d))((x @ wqkv).reshape(B, S, 3, H, Dh), 2, 0, 3, 1, 4)
        q, k, v = (qkv[0], qkv[1], qkv[2])
        scale = Dh ** (-0.5)
        scores = torch.einsum('bhqd,bhkd->bhqk', q, k) * scale
        p = _softmax(scores, axis=-1)
        o = torch.einsum('bhqk,bhkd->bhqd', p, v)
        return (lambda x, *d: x.permute(*d))(o, 0, 2, 1, 3).reshape(B, S, D) @ wo

    def _B_ref(x, w_in, w_sp, b_sp, w_out):
        B, S, D = x.shape
        F = w_in.shape[-1]
        Fh = F // 2
        z = _gelu(torch.einsum('bsd,df->bsf', x, w_in))
        z1 = z[..., :Fh].clone()
        z2 = _layernorm(z[..., Fh:], axis=-1)
        g = torch.einsum('ts,bsf->btf', w_sp, z2) + b_sp[None, :, None]
        return torch.einsum('bsf,fd->bsd', z1 * g, w_out)
    x = A_x
    h = x + _A_ref(_layernorm(x, axis=-1), A_wqkv, A_wo)
    h2 = h + _B_ref(_layernorm(h, axis=-1), B_w_in, B_w_sp, B_b_sp, B_w_out)
    return h2
```

```python
import re

REG_RE = re.compile(r'^(-?)(abs\()?([vas])(\d+)\)?$')
RNG_RE = re.compile(r'^(-?)([vas])\[(\d+):(\d+)\]$')


def regs_of(op):
    op = op.strip()
    m = REG_RE.match(op)
    if m:
        return [(m.group(3), int(m.group(4)))]
    m = RNG_RE.match(op)
    if m:
        return [(m.group(2), i) for i in range(int(m.group(3)), int(m.group(4)) + 1)]
    if op == 'vcc':
        return [('x', 'vcc')]
    if op in ('vcc_lo', 'vcc_hi'):
        return [('x', 'vcc')]
    if op in ('exec', 'exec_lo', 'exec_hi'):
        return [('x', 'exec')]
    if op == 'm0':
        return [('x', 'm0')]
    return []


TRANS = ('v_exp_f32', 'v_log_f32', 'v_rcp_f32', 'v_rsq_f32', 'v_sqrt_f32', 'v_sin_f32', 'v_cos_f32')


class Ins:
    __slots__ = ('text', 'op', 'kind', 'w', 'r', 'tokw', 'tokr', 'label', 'target', 'srcc', 'srcab', 'passes',
                 'dpp', 'stdata', 'sread', 'nop', 'wait', 'cond', 'lanesel')

    def __init__(self, text, tokw=(), tokr=()):
        self.text = text
        self.tokw = list(tokw)
        self.tokr = list(tokr)
        self.w = []
        self.r = []
        self.label = None
        self.target = None
        self.srcc = []
        self.srcab = []
        self.passes = 0
        self.dpp = False
        self.stdata = []
        self.nop = 0
        self.wait = None
        self.cond = False
        self.kind = 'other'
        self.op = ''
        self.parse()

    def parse(self):
        t = self.text.split(';')[0].strip()
        if not t:
            self.kind = 'pseudo'
            return
        if t.endswith(':'):
            self.kind = 'label'
            self.label = t[:-1]
            return
        if t.startswith('.'):
            self.kind = 'pseudo'
            return
        sp = t.split(None, 1)
        op = sp[0]
        self.op = op
        rest = sp[1] if len(sp) > 1 else ''
        parts = [p.strip() for p in rest.split(',')] if rest else []
        mods = ''
        if parts:
            joined = []
            depth = 0
            cur = ''
            for ch in rest:
                if ch == '[':
                    depth += 1
                if ch == ']':
                    depth -= 1
                if ch == ',' and depth == 0:
                    joined.append(cur.strip())
                    cur = ''
                else:
                    cur += ch
            joined.append(cur.strip())
            parts = joined
            last = parts[-1].split()
            parts[-1] = last[0] if last else ''
            mods = ' '.join(last[1:])
        R = [regs_of(p) for p in parts]
        flat = lambda L: [x for l in L for x in l]
        if op == 's_nop':
            self.kind = 'nop'
            self.nop = int(parts[0]) + 1
        elif op == 's_waitcnt':
            self.kind = 'wait'
            vm = re.search(r'vmcnt\((\d+)\)', t)
            lg = re.search(r'lgkmcnt\((\d+)\)', t)
            self.wait = (int(vm.group(1)) if vm else None, int(lg.group(1)) if lg else None)
        elif op == 's_barrier':
            self.kind = 'barrier'
        elif op == 's_endpgm':
            self.kind = 'end'
        elif op == 's_branch':
            self.kind = 'branch'
            self.target = parts[0]
        elif op.startswith('s_cbranch'):
            self.kind = 'branch'
            self.target = parts[0]
            self.cond = True
            if 'vcc' in op:
                self.r = [('x', 'vcc')]
            elif 'exec' in op:
                self.r = [('x', 'exec')]
        elif op.startswith('s_load') or op.startswith('s_buffer_load'):
            self.kind = 'smem'
            self.w = [] if 'nodst' in self.text else R[0]
            self.r = flat(R[1:])
        elif op in ('s_memtime', 's_memrealtime'):
            self.kind = 'smem'
            self.w = R[0]
        elif op.startswith('s_cmp') or op.startswith('s_bitcmp'):
            self.kind = 'salu'
            self.r = flat(R)
        elif op in ('s_sleep', 's_setprio', 's_sethalt'):
            self.kind = 'salu'
        elif op.startswith('s_'):
            self.kind = 'salu'
            self.w = list(R[0])
            self.r = flat(R[1:])
            if 'saveexec' in op:
                self.w += [('x', 'exec')]
                self.r += [('x', 'exec')]
            if op in ('s_addk_i32', 's_mulk_i32', 's_cmov_b32'):
                self.r += R[0]
        elif op.startswith('v_mfma'):
            self.kind = 'mfma'
            self.w = R[0]
            self.srcab = R[1] + R[2]
            self.srcc = R[3]
            self.r = self.srcab + self.srcc
            self.passes = 8 if '32x32' in op else 4
        elif op.startswith('v_'):
            self.kind = 'trans' if op.replace('_e32', '').replace('_e64', '') in TRANS else 'valu'
            if op.startswith('v_permlane') and 'swap' in op:
                self.w = R[0] + R[1]
                self.r = R[0] + R[1]
            elif op.startswith('v_add_co') or op.startswith('v_sub_co'):
                self.w = R[0] + R[1]
                self.r = flat(R[2:])
            elif op.startswith('v_addc_co'):
                self.w = R[0] + R[1]
                self.r = flat(R[2:])
            else:
                self.w = list(R[0])
                self.r = flat(R[1:])
                if op.startswith('v_fmac') or op.startswith('v_dot2c') or op.startswith('v_writelane'):
                    self.r += R[0]
            if any(k in mods for k in ('quad_perm', 'row_', 'wave_')) or op.endswith('_dpp'):
                self.dpp = True
                self.r += R[0]
        elif op.startswith('ds_'):
            self.kind = 'ds'
            if op.startswith('ds_read') or op.startswith('ds_bpermute') or op.startswith('ds_permute') or \
                    op.startswith('ds_swizzle') or '_rtn' in op:
                self.w = R[0]
                self.r = flat(R[1:])
            else:
                self.r = flat(R)
        elif op.startswith('buffer_') or op.startswith('global_'):
            self.kind = 'vmem'
            lds = ' lds' in (' ' + mods)
            if op.startswith('buffer_load'):
                if lds:
                    self.r = flat(R) + [('x', 'm0')]
                    self.kind = 'dma'
                else:
                    self.w = R[0]
                    self.r = flat(R[1:])
            elif op.startswith('global_load'):
                self.w = R[0]
                self.r = flat(R[1:])
            elif op.startswith('buffer_store'):
                self.r = flat(R)
                if len(R[0]) >= 3:
                    self.stdata = R[0]
            elif op.startswith('buffer_atomic'):
                self.r = flat(R)
                if 'sc0' in mods:
                    self.w = R[0]
            elif op.startswith('global_store'):
                self.r = flat(R)
                if len(R[1]) >= 3:
                    self.stdata = R[1]
            else:
                raise ValueError('unhandled ' + t)
        else:
            raise ValueError('unhandled ' + t)

    def states(self):
        if self.kind in ('label', 'pseudo'):
            return 0
        if self.kind == 'nop':
            return self.nop
        return 1


def is_valu(i):
    return i.kind in ('valu', 'trans')


def need_states(p, c):
    n = 0
    pw = set(p.w)
    if is_valu(p):
        pv = {x for x in pw if x[0] in 'va'}
        ps = {x for x in pw if x[0] == 's' or x == ('x', 'vcc')}
        if c.kind == 'mfma' and pv & set(c.r):
            n = max(n, 2)
        if is_valu(c):
            if c.op.startswith('v_permlane') and pv & set(c.r):
                n = max(n, 2)
            if c.dpp and pv & set(c.r):
                n = max(n, 2)
            if (c.op.startswith('v_readfirstlane') or c.op.startswith('v_readlane')) and pv & set(c.r):
                n = max(n, 1)
            if ps & set(c.r):
                n = max(n, 4 if (c.op.startswith('v_readlane') or c.op.startswith('v_writelane')) else 2)
            if p.kind == 'trans' and c.kind != 'trans' and pv & set(c.r):
                n = max(n, 1)
            if ('x', 'exec') in pw:
                n = max(n, 5)
        if c.kind in ('vmem', 'dma') and ps & set(c.r):
            n = max(n, 5)
        if c.kind == 'mfma' and ('x', 'exec') in pw:
            n = max(n, 4)
    if p.kind == 'mfma':
        big = p.passes == 8
        if c.kind == 'mfma':
            if pw & set(c.srcab):
                n = max(n, 12 if big else 8)
            if pw & set(c.srcc):
                same = (list(p.w) == list(c.srcc)) and p.passes == c.passes
                if not same:
                    n = max(n, 10 if big else 6)
            elif pw & set(c.w):
                n = max(n, 10 if big else 6)
        elif is_valu(c):
            if pw & (set(c.r) | set(c.w)):
                n = max(n, 12 if big else 8)
            if set(p.srcc) & set(c.w):
                n = max(n, 7 if big else 3)
        elif c.kind in ('vmem', 'dma', 'ds'):
            if pw & (set(c.r) | set(c.w)):
                n = max(n, 12 if big else 8)
            if set(p.srcc) & set(c.w):
                n = max(n, 7 if big else 3)
    if p.kind == 'salu' and ('x', 'm0') in pw and c.kind == 'dma':
        n = max(n, 1)
    if p.stdata and (is_valu(c) or c.kind in ('mfma',)) and set(p.stdata) & set(c.w):
        n = max(n, 2)
    if p.stdata and c.kind in ('vmem', 'ds') and set(p.stdata) & set(c.w):
        n = max(n, 1)
    return n


class Prog:
    def __init__(self):
        self.ins = []
        self.uid = 0

    def __call__(self, text, tokw=(), tokr=()):
        for line in text.split('\n'):
            if line.strip():
                self.ins.append(Ins(line.strip(), tokw, tokr))

    def add(self, item):
        if isinstance(item, list):
            for x in item:
                self.add(x)
        elif isinstance(item, Ins):
            self.ins.append(item)
        elif isinstance(item, tuple):
            self(item[0], item[1], item[2] if len(item) > 2 else ())
        else:
            self(item)

    def need(self, *toks):
        i = Ins('; need ' + ' '.join(map(str, toks)), (), toks)
        self.ins.append(i)

    def label(self, base):
        self.uid += 1
        return f'.L{base}_{self.uid}'

    def _cfg(self):
        ins = self.ins
        lab = {i.label: n for n, i in enumerate(ins) if i.kind == 'label'}
        succ = [[] for _ in ins]
        for n, i in enumerate(ins):
            if i.kind == 'end':
                continue
            if i.kind == 'branch':
                succ[n].append(lab[i.target])
                if i.cond and n + 1 < len(ins):
                    succ[n].append(n + 1)
            elif n + 1 < len(ins):
                succ[n].append(n + 1)
        pred = [[] for _ in ins]
        for n, s in enumerate(succ):
            for m in s:
                pred[m].append(n)
        return succ, pred

    def insert_waits(self):
        ins = self.ins
        succ, pred = self._cfg()
        N = len(ins)
        state_in = [None] * N
        need = [None] * N

        def merge(a, b):
            if a is None:
                return b, True
            ch = False
            out = []
            for x, y in zip(a[:2], b[:2]):
                d = dict(x)
                for k, v in y.items():
                    if k not in d or v < d[k]:
                        d[k] = v
                        ch = True
                out.append(d)
            sm = a[2] or b[2]
            if sm != a[2]:
                ch = True
            return (out[0], out[1], sm), ch

        def step(n, st):
            i = ins[n]
            vm, lg, sm = dict(st[0]), dict(st[1]), st[2]
            keys = set(i.r) | set(i.w) | {('t', t) for t in i.tokr}
            wv = min((vm[k] for k in keys if k in vm), default=None)
            wl = min((lg[k] for k in keys if k in lg), default=None)
            if wl is not None and sm:
                wl = 0
            if wv is not None:
                wv = min(wv, 63)
            if wl is not None:
                wl = min(wl, 15)
            nd = (wv, wl)

            def apply(v, l):
                nonlocal vm, lg, sm
                if v is not None:
                    vm = {k: a for k, a in vm.items() if a < v}
                if l is not None:
                    if sm:
                        if l == 0:
                            lg = {}
                            sm = False
                    else:
                        lg = {k: a for k, a in lg.items() if a < l}
            apply(wv, wl)
            if i.kind == 'wait':
                apply(*i.wait)
            if i.kind in ('vmem', 'dma'):
                vm = {k: a + 1 for k, a in vm.items()}
                for k in i.w:
                    vm[k] = 0
                for t in i.tokw:
                    vm[('t', t)] = 0
            elif i.kind in ('ds', 'smem'):
                lg = {k: a + 1 for k, a in lg.items()}
                for k in i.w:
                    lg[k] = 0
                for t in i.tokw:
                    lg[('t', t)] = 0
                if i.kind == 'smem':
                    sm = True
            return nd, (vm, lg, sm)

        state_in[0] = ({}, {}, False)
        work = [0]
        import heapq
        inq = {0}
        while work:
            n = heapq.heappop(work)
            inq.discard(n)
            nd, out = step(n, state_in[n])
            need[n] = nd
            for m in succ[n]:
                new, ch = merge(state_in[m], out)
                if ch:
                    state_in[m] = new
                    if m not in inq:
                        heapq.heappush(work, m)
                        inq.add(m)
        out = []
        for n, i in enumerate(ins):
            nd = need[n]
            if nd and (nd[0] is not None or nd[1] is not None):
                s = 's_waitcnt'
                if nd[0] is not None:
                    s += f' vmcnt({nd[0]})'
                if nd[1] is not None:
                    s += f' lgkmcnt({nd[1]})'
                out.append(Ins(s))
            out.append(i)
        self.ins = out

    def insert_nops(self):
        MAXD = 12
        total = 0
        while True:
            ins = self.ins
            succ, pred = self._cfg()
            add = {}
            for n, c in enumerate(ins):
                if c.kind in ('label', 'pseudo', 'nop', 'wait', 'barrier', 'end', 'branch', 'salu', 'smem'):
                    continue
                worst = 0
                stack = [(p, 0) for p in pred[n]]
                seen = {}
                while stack:
                    p, d = stack.pop()
                    if p in seen and seen[p] <= d:
                        continue
                    seen[p] = d
                    pi = ins[p]
                    nd = need_states(pi, c) if pi.kind not in ('label', 'pseudo') else 0
                    if nd > d:
                        worst = max(worst, nd - d)
                    d2 = d + pi.states() + add.get(p, 0)
                    if d2 < MAXD:
                        for q in pred[p]:
                            stack.append((q, d2))
                if worst:
                    add[n] = worst
            if not add:
                break
            out = []
            for n, i in enumerate(ins):
                if n in add:
                    out.append(Ins(f's_nop {add[n] - 1}'))
                    total += add[n]
                out.append(i)
            self.ins = out
        return total

    def text(self):
        out = []
        for i in self.ins:
            if i.text.startswith('; need'):
                continue
            if i.kind == 'label' or i.text.startswith('.'):
                out.append(i.text)
            else:
                out.append('    ' + i.text)
        return '\n'.join(out) + '\n'


def interleave(main, fill, per=1, start=0):
    out = []
    fill = list(fill)
    acc = 0.0
    for k, m in enumerate(main):
        out.append(m)
        if k >= start:
            acc += per
            while acc >= 1 and fill:
                out.append(fill.pop(0))
                acc -= 1
    out.extend(fill)
    return out
```

```python
import sys, math, struct
sys.path.insert(0, 'work')
from asmlib import *

NAME = 'sequential_preLN__softmax_full_mha__mixer_gmlp__prompt_kernel'


class Cfg:
    diag = False
    stop = 99
    force_fb = False
    pk = True


def f2u(x):
    return struct.unpack('<I', struct.pack('<f', x))[0]


def hx(x):
    return hex(f2u(x))


CNT = 0x000000
ST = 0x020000
QF = 0x100000
KV = 0x300000
OF = 0x700000
HF = 0x900000
ZF = 0xB00000
YF = 0xF00000
WOF = 0x1300000
WIF = 0x1400000
WUF = 0x1600000
STAMP = 0x1700000
WS_SIZE = 0x1800000
OOR = 0x7F000000
C_S1, C_S2, C_S3, C_S6, C_S5, C_RDY, C_END = 0, 112, 240, 496, 752, 880, 888

sX, sWQ, sWS, sSP, sBS, sOUT, sDBG, sWO, sWI, sWU = 8, 12, 16, 20, 24, 28, 32, 36, 40, 44
sW, sI, sJ, sQB, sHD, sXC, sIDX, sRB, sCB, sRQ, sCH = 48, 49, 50, 51, 52, 53, 54, 55, 56, 57, 58
sTO, sFB, sRT = 59, 60, 61
sT0, sT1, sT2, sT3, sT4, sT5 = 62, 63, 64, 65, 66, 67
sM0, sM1, sM2 = 68, 70, 72
sA0, sA1, sA2, sA3 = 74, 75, 76, 77
sKV, sG, sL = 78, 79, 80
sK1, sK2 = 82, 84
sPC = 86
sTM = 96

vL, vL16, vC, vQ, vA1, vA2 = 0, 1, 2, 3, 4, 5
vT = 6
vXR = 216
vBS = 224
vZ1 = 226
vONE = 225
vST = 255


def srd(n):
    return f's[{n}:{n + 3}]'


def vr(b, n=1):
    return f'v{b}' if n == 1 else f'v[{b}:{b + n - 1}]'


def ar(b, n=1):
    return f'a{b}' if n == 1 else f'a[{b}:{b + n - 1}]'


def sp(n):
    return f's[{n}:{n + 1}]'


def mf16(d, a, b, c):
    cs = '0' if c is None else vr(c, 4)
    return f'v_mfma_f32_16x16x32_bf16 {vr(d, 4)}, {a}, {b}, {cs}'


def mf32(d, a, b, c):
    cs = '0' if c is None else vr(c, 16)
    return f'v_mfma_f32_32x32x16_bf16 {vr(d, 16)}, {vr(a, 4)}, {vr(b, 4)}, {cs}'


def off(o):
    return f' offset:{o}' if o else ''


def lds_rd(dst, byte):
    base = (vL16, vA1, vA2)[byte >> 16]
    return f'ds_read_b128 {vr(dst, 4)}, {vr(base)}{off(byte & 0xffff)}'


class Gen:
    def __init__(self, cfg):
        self.c = cfg
        self.p = Prog()
        self.nstamp = 0

    def stamp(self, n):
        if self.c.diag:
            self.p(f's_memrealtime {sp(sTM)}\ns_waitcnt lgkmcnt(0)\nv_writelane_b32 {vr(vST)}, s{sTM}, {n}')

    def finish(self):
        self.p('s_branch .Lexit')

    def poll(self, vaddr, expect, srdn=sWS, vtmp=vT):
        p = self.p
        L = p.label('poll')
        D = p.label('got')
        p(f'{L}:')
        p(f'buffer_load_dword {vr(vtmp)}, {vr(vaddr)}, {srd(srdn)}, 0 offen sc1')
        p(f'v_cmp_gt_u32 vcc, {expect}, {vr(vtmp)}')
        p(f's_cbranch_vccz {D}')
        p(f's_sub_u32 s{sTO}, s{sTO}, 1\ns_cmp_lg_u32 s{sTO}, 0\ns_cbranch_scc1 {L}')
        p('s_branch .Lexit')
        p(f'{D}:')

    def check(self, vval, vaddr, expect, srdn=sWS):
        p = self.p
        D = p.label('ok')
        p(f'v_cmp_gt_u32 vcc, {expect}, {vr(vval)}')
        p(f's_cbranch_vccz {D}')
        self.poll(vaddr, expect, srdn, vval)
        p(f'{D}:')

    def arrive(self, vaddr, mask):
        p = self.p
        p(f's_mov_b64 exec, {mask}')
        p(f'buffer_atomic_add {vr(vONE)}, {vr(vaddr)}, {srd(sWS)}, 0 offen sc1')
        p('s_mov_b64 exec, -1')

    def dma_list(self, gsreg, gofs, ldsofs, nfrag, tok):
        k = (nfrag + 3) // 4
        out = []
        pre = [f's_mul_i32 s{sT5}, s{sW}, {k * 1024}',
               f's_min_u32 s{sT5}, s{sT5}, {(nfrag - k) * 1024}',
               f's_add_u32 s{sG}, s{gsreg}, s{sT5}',
               f's_add_u32 s{sL}, s{sT5}, {ldsofs}',
               f's_add_u32 s{sG}, s{sG}, {gofs}']
        out.append(pre)
        for n in range(k):
            g = []
            if n % 4 == 0:
                if n:
                    g += [f's_add_u32 s{sG}, s{sG}, 4096', f's_add_u32 s{sL}, s{sL}, 4096']
                g.append(f's_mov_b32 m0, s{sL}')
                out.append(g)
            out.append([(f'buffer_load_dwordx4 {vr(vL16)}, {srd(sWS)}, s{sG} offen{off((n % 4) * 1024)} sc1 lds',
                         [tok])])
        return out

    def emit_groups(self, groups):
        for g in groups:
            self.p.add(list(g))

    def prologue(self):
        p = self.p
        p(f's_getpc_b64 {sp(sPC)}')
        p('.Lpc0:')
        p('s_cmp_ge_u32 s2, 256\ns_cbranch_scc1 .Lend')
        for reg, slot in ((sX, 0), (sWQ, 1), (sWS, 10), (sWO, 2), (sWI, 4), (sSP, 5), (sBS, 6), (sWU, 7), (sOUT, 8),
                          (sDBG, 9)):
            p(f's_load_dwordx2 {sp(reg)}, s[0:1], {slot * 8}')
        p(f'v_lshrrev_b32 {vr(vT)}, 6, v0')
        p(f'v_and_b32 {vr(vL)}, 63, v0')
        p(f'v_readfirstlane_b32 s{sW}, {vr(vT)}')
        for reg, size in ((sX, 1835008), (sWQ, 1204224), (sWS, WS_SIZE), (sWO, 401408), (sWI, 1605632),
                          (sSP, 8388608), (sBS, 4096), (sWU, 802816), (sOUT, 1835008), (sDBG, 256)):
            p(f's_mov_b32 s{reg + 2}, {size}\ns_mov_b32 s{reg + 3}, 0x20000')
        p(f'''v_lshlrev_b32 {vr(vL16)}, 4, {vr(vL)}
v_and_b32 {vr(vC)}, 15, {vr(vL)}
v_lshrrev_b32 {vr(vQ)}, 4, {vr(vL)}
v_add_u32 {vr(vA1)}, 0x10000, {vr(vL16)}
v_add_u32 {vr(vA2)}, 0x20000, {vr(vL16)}
v_mov_b32 {vr(vONE)}, 1
s_and_b32 s{sXC}, s2, 7
s_lshr_b32 s{sIDX}, s2, 3
s_lshr_b32 s{sRQ}, s{sXC}, 1
s_and_b32 s{sCH}, s{sXC}, 1
s_mov_b32 s{sTO}, 200000
s_mov_b32 s{sFB}, 0''')
        p(f'''s_lshr_b32 s{sT0}, s{sIDX}, 2
s_lshl_b32 s{sI}, s{sRQ}, 3
s_add_u32 s{sI}, s{sI}, s{sT0}
s_and_b32 s{sT0}, s{sIDX}, 3
s_lshl_b32 s{sJ}, s{sCH}, 2
s_add_u32 s{sJ}, s{sJ}, s{sT0}
s_lshl_b32 s{sRT}, s{sI}, 2
s_add_u32 s{sRT}, s{sRT}, s{sW}''')
        p(f'''s_and_b32 s{sT0}, s{sIDX}, 1
s_lshl_b32 s{sHD}, s{sXC}, 1
s_add_u32 s{sHD}, s{sHD}, s{sT0}
s_lshr_b32 s{sQB}, s{sIDX}, 1''')
        p(f'''s_mul_i32 s{sT0}, s{sIDX}, 37
s_lshr_b32 s{sT0}, s{sT0}, 8
s_mul_i32 s{sT1}, s{sT0}, 7
s_sub_u32 s{sT1}, s{sIDX}, s{sT1}
s_lshl_b32 s{sRB}, s{sRQ}, 2
s_add_u32 s{sRB}, s{sRB}, s{sT0}
s_mul_i32 s{sCB}, s{sCH}, 7
s_add_u32 s{sCB}, s{sCB}, s{sT1}''')
        if self.c.diag:
            p(f'v_mov_b32 {vr(vST)}, 0')
        p('s_waitcnt lgkmcnt(0)')
        self.stamp(0)
        p(f's_cmp_ge_u32 s{sIDX}, 28\ns_cbranch_scc1 .Lspare')

    def sentinel_init(self):
        p = self.p
        a, d = vT, vT + 2
        p(f'''s_lshl_b32 s{sT0}, s{sRT}, 3
s_add_u32 s{sT0}, s{sT0}, s{sJ}
s_lshl_b32 s{sT0}, s{sT0}, 7
s_add_u32 s{sT0}, s{sT0}, {ST}
v_mov_b32 {vr(d)}, -1
v_mov_b32 {vr(d + 1)}, -1
v_mov_b32 {vr(d + 2)}, -1
v_mov_b32 {vr(d + 3)}, -1
s_mov_b64 exec, 0xff''')
        p(f'buffer_store_dwordx4 {vr(d, 4)}, {vr(vL16)}, {srd(sWS)}, s{sT0} offen sc1', tokw=['sent'])
        p('s_mov_b64 exec, -1')

    def ln_finish(self, sumreg, sqreg, va, vb, t, vperm):
        out = [
            f'v_cndmask_b32 {vr(t)}, {vr(sqreg)}, {vr(sqreg + 1)}, {sp(sM0)}',
            f'v_cndmask_b32 {vr(t + 1)}, {vr(sqreg + 2)}, {vr(sqreg + 3)}, {sp(sM0)}',
            f'v_cndmask_b32 {vr(t)}, {vr(t)}, {vr(t + 1)}, {sp(sM1)}',
            f'ds_bpermute_b32 {vr(t)}, {vr(vperm)}, {vr(t)}',
            f'v_mul_f32 {vr(t + 1)}, {hx(1.0 / 448)}, {vr(sumreg)}',
            f'v_mul_f32 {vr(vb)}, {vr(t + 1)}, {vr(t + 1)}',
            f'v_sub_f32 {vr(vb)}, {hx(1e-5)}, {vr(vb)}',
            f'v_fmac_f32 {vr(vb)}, {hx(1.0 / 448)}, {vr(t)}',
            f'v_max_f32 {vr(vb)}, {hx(1e-5)}, {vr(vb)}',
            f'v_rsq_f32 {vr(va)}, {vr(vb)}',
            f'v_mul_f32 {vr(vb)}, {vr(t + 1)}, {vr(va)}',
            f'v_mov_b32 {vr(va + 1)}, {vr(va)}',
            f'v_sub_f32 {vr(vb)}, 0, {vr(vb)}',
            f'v_mov_b32 {vr(vb + 1)}, {vr(vb)}',
        ]
        return out

    def ln_masks(self, vperm):
        p = self.p
        p(f'''v_and_b32 {vr(vT)}, 1, {vr(vC)}
v_cmp_ne_u32 {sp(sM0)}, 0, {vr(vT)}
v_and_b32 {vr(vT)}, 2, {vr(vC)}
v_cmp_ne_u32 {sp(sM1)}, 0, {vr(vT)}
v_lshrrev_b32 {vr(vT)}, 2, {vr(vC)}
v_lshl_add_u32 {vr(vT)}, {vr(vT)}, 4, {vr(vC)}
v_lshlrev_b32 {vr(vperm)}, 2, {vr(vT)}''')

    def norm_reg(self, r, va, vb, t):
        o = [f'v_lshlrev_b32 {vr(t)}, 16, {vr(r)}', f'v_and_b32 {vr(t + 1)}, 0xffff0000, {vr(r)}']
        if self.c.pk:
            o.append(f'v_pk_fma_f32 {vr(t, 2)}, {vr(t, 2)}, {vr(va, 2)}, {vr(vb, 2)}')
        else:
            o += [f'v_fma_f32 {vr(t)}, {vr(t)}, {vr(va)}, {vr(vb)}',
                  f'v_fma_f32 {vr(t + 1)}, {vr(t + 1)}, {vr(va)}, {vr(vb)}']
        o.append(f'v_cvt_pk_bf16_f32 {vr(r)}, {vr(t)}, {vr(t + 1)}')
        return o

    def phase1(self):
        p = self.p
        X, ACC, BF, SA, ONES = 16, 128, 176, 224 + 2, 242
        xr = lambda tt, ks: X + (tt * 14 + ks) * 4
        vXo, vWo, vB0, vB1, vB2, vB3, vPerm, vFl = 6, 7, 8, 9, 10, 11, 12, 13
        vNA, vNB = 246, 250
        tmp = 14
        p(f'''v_mul_u32_u24 {vr(vXo)}, 896, {vr(vC)}
v_lshl_add_u32 {vr(vXo)}, {vr(vQ)}, 4, {vr(vXo)}
s_lshl_b32 s{sT0}, s{sRB}, 2
s_add_u32 s{sKV}, s{sT0}, s{sW}
s_mul_i32 s{sT0}, s{sKV}, {32 * 896}
s_add_u32 s{sT1}, s{sT0}, {16 * 896}''')
        for kp in range(7):
            for tt in range(2):
                for ks in (2 * kp, 2 * kp + 1):
                    p(f'buffer_load_dwordx4 {vr(xr(tt, ks), 4)}, {vr(vXo)}, {srd(sX)}, s{sT0 + tt} offen{off(64 * ks)}')
        p(f'''v_lshrrev_b32 {vr(vWo)}, 2, {vr(vL)}
v_mul_u32_u24 {vr(vWo)}, 2688, {vr(vWo)}
v_lshrrev_b32 {vr(tmp)}, 5, {vr(vL)}
v_lshlrev_b32 {vr(tmp)}, 1, {vr(tmp)}
v_xor_b32 {vr(tmp)}, {vr(tmp)}, {vr(vL)}
v_and_b32 {vr(tmp)}, 3, {vr(tmp)}
v_lshl_add_u32 {vr(vWo)}, {vr(tmp)}, 4, {vr(vWo)}
s_mul_i32 s{sT2}, s{sW}, 43008
s_lshl_b32 s{sT3}, s{sCB}, 6
s_add_u32 s{sT2}, s{sT2}, s{sT3}
s_lshl_b32 s{sT3}, s{sW}, 10''')
        for m in range(7):
            for sec in range(3):
                p(f's_add_u32 m0, s{sT3}, {sec * 28672 + m * 4096}')
                p(f's_add_u32 s{sT4}, s{sT2}, {m * 4 * 43008 + sec * 896}')
                p(f'buffer_load_dwordx4 {vr(vWo)}, {srd(sWQ)}, s{sT4} offen lds', tokw=[f'w{m}'])
        self.sentinel_init_regs = True
        p(f'v_mov_b32 {vr(tmp)}, 0')
        p(f'''v_lshrrev_b32 {vr(vB0)}, 2, {vr(vC)}
v_lshl_add_u32 {vr(vB0)}, {vr(vQ)}, 3, {vr(vB0)}
v_lshlrev_b32 {vr(vB0)}, 6, {vr(vB0)}
v_and_b32 {vr(vB1)}, 3, {vr(vC)}
v_lshl_add_u32 {vr(vB0)}, {vr(vB1)}, 3, {vr(vB0)}
v_and_b32 {vr(vB1)}, 1, {vr(vQ)}
v_lshl_add_u32 {vr(vB0)}, {vr(vB1)}, 5, {vr(vB0)}
v_xor_b32 {vr(vB1)}, 32, {vr(vB0)}
v_add_u32 {vr(vB2)}, 57344, {vr(vB0)}
v_add_u32 {vr(vB3)}, 57344, {vr(vB1)}''')
        for r in range(4):
            p(f'v_mov_b32 {vr(ONES + r)}, 0x3f803f80')
        self.ln_masks(vPerm)
        for kp in range(7):
            for tt in range(2):
                for ks in (2 * kp, 2 * kp + 1):
                    first = ks == 0
                    p(mf16(SA + 8 * tt, vr(ONES, 4), vr(xr(tt, ks), 4), None if first else SA + 8 * tt))
                    p(mf16(SA + 8 * tt + 4, vr(xr(tt, ks), 4), vr(xr(tt, ks), 4), None if first else SA + 8 * tt + 4))
        self.stamp(1)
        l0 = self.ln_finish(SA, SA + 4, vNA, vNB, 6, vPerm)
        l1 = self.ln_finish(SA + 8, SA + 12, vNA + 2, vNB + 2, 14, vPerm)
        for a, b in zip(l0, l1):
            p(a)
            p(b)

        def norm(ks):
            o = []
            k = 0
            for tt in range(2):
                for r in range(4):
                    o += self.norm_reg(xr(tt, ks) + r, vNA + 2 * tt, vNB + 2 * tt, (6, 14)[k % 2])
                    k += 1
            return o

        def rds(ks):
            o = []
            for f in range(6):
                sec, ct = f // 2, f % 2
                base = (vB0, vB1)[ct] if sec < 2 else (vB2, vB3)[ct]
                for jj in range(2):
                    d = BF + (ks % 2) * 24 + f * 4 + 2 * jj
                    o.append(f'ds_read_b64_tr_b16 {vr(d, 2)}, {vr(base)}'
                             f'{off((sec % 2) * 28672 * (sec < 2) + ks * 2048 + jj * 256)}')
            return o

        acc = lambda f, tt: ACC + (f * 2 + tt) * 4
        p.add(norm(0))
        p.need('w0')
        p('s_barrier')
        p.add(rds(0))
        for ks in range(14):
            nx = ks + 1
            if nx < 14 and nx % 2 == 0:
                p.need(f'w{nx // 2}')
                p('s_barrier')
            R = rds(nx) if nx < 14 else []
            V = norm(nx) if nx < 14 else []
            nv = len(V)
            for n in range(12):
                f, tt = n // 2, n % 2
                wf = vr(BF + (ks % 2) * 24 + f * 4, 4)
                xf = vr(xr(tt, ks), 4)
                a, b = (wf, xf) if f < 4 else (xf, wf)
                p(mf16(acc(f, tt), a, b, None if ks == 0 else acc(f, tt)))
                if R:
                    p(R.pop(0))
                while V and (nv - len(V)) < (n + 1) * nv / 12.0:
                    p(V.pop(0))
            if ks == 6:
                p(f'v_mov_b32 {vr(vFl)}, 0')
                p(f'buffer_load_dword {vr(vFl)}, {vr(vFl)}, {srd(sDBG)}, 0 offen sc1')
        self.stamp(2)
        vP, vH, vS, vQa, vKa, vQb, vKb = 16, 17, 18, 19, 20, 21, 22
        vVa, vVc = 24, 26
        vVd = 28
        D = 40
        p(f'''v_and_b32 {vr(vP)}, 1, {vr(vQ)}
v_lshlrev_b32 {vr(vP)}, 1, {vr(vP)}
v_lshrrev_b32 {vr(vH)}, 1, {vr(vQ)}
v_or_b32 {vr(vP)}, {vr(vP)}, {vr(vH)}
s_lshl_b32 s{sT0}, s{sCB}, 2
v_add_u32 {vr(vP)}, s{sT0}, {vr(vP)}
v_mul_u32_u24 {vr(vH)}, 37, {vr(vP)}
v_lshrrev_b32 {vr(vH)}, 8, {vr(vH)}
v_mul_u32_u24 {vr(vS)}, 7, {vr(vH)}
v_sub_u32 {vr(vP)}, {vr(vP)}, {vr(vS)}
v_cmp_eq_u32 {sp(sM0)}, 3, {vr(vP)}
v_lshrrev_b32 {vr(vS)}, 2, {vr(vP)}
v_lshl_add_u32 {vr(vH)}, {vr(vH)}, 1, {vr(vS)}
v_and_b32 {vr(vS)}, 3, {vr(vP)}
v_lshlrev_b32 {vr(vS)}, 9, {vr(vS)}
v_lshl_add_u32 {vr(vQa)}, {vr(vH)}, 17, {vr(vS)}
v_lshl_add_u32 {vr(vQa)}, {vr(vC)}, 4, {vr(vQa)}
v_lshl_add_u32 {vr(vKa)}, {vr(vH)}, 18, {vr(vS)}
v_and_b32 {vr(vS)}, 8, {vr(vC)}
v_add_u32 {vr(vS)}, {vr(vS)}, {vr(vC)}
v_lshl_add_u32 {vr(vKa)}, {vr(vS)}, 4, {vr(vKa)}
v_mov_b32 {vr(vS)}, {OOR}
v_add_u32 {vr(vQb)}, 0x20000, {vr(vQa)}
v_add_u32 {vr(vKb)}, 0x40000, {vr(vKa)}
v_cndmask_b32 {vr(vQb)}, {vr(vS)}, {vr(vQb)}, {sp(sM0)}
v_cndmask_b32 {vr(vKb)}, {vr(vS)}, {vr(vKb)}, {sp(sM0)}
s_lshl_b32 s{sT0}, s{sKV}, 11
s_add_u32 s{sT0}, s{sT0}, {QF}
s_lshl_b32 s{sT1}, s{sKV}, 12
s_add_u32 s{sT1}, s{sT1}, {KV}
s_lshl_b32 s{sT2}, s{sCB}, 5''')
        for ct in range(2):
            p(f'''v_add_u32 {vr(vP)}, s{sT2}, {vr(vC)}
v_add_u32 {vr(vP)}, {16 * ct}, {vr(vP)}
v_mul_u32_u24 {vr(vH)}, 2341, {vr(vP)}
v_lshrrev_b32 {vr(vH)}, 16, {vr(vH)}
v_mul_u32_u24 {vr(vVa + ct)}, 28, {vr(vH)}
v_sub_u32 {vr(vP)}, {vr(vP)}, {vr(vVa + ct)}
v_lshlrev_b32 {vr(vVa + ct)}, 18, {vr(vH)}
v_lshl_add_u32 {vr(vVa + ct)}, {vr(vQ)}, 9, {vr(vVa + ct)}
v_lshl_add_u32 {vr(vVa + ct)}, {vr(vP)}, 4, {vr(vVa + ct)}
v_cmp_le_u32 vcc, 24, {vr(vP)}
v_add_u32 {vr(vVc + ct)}, 64, {vr(vVa + ct)}
v_cndmask_b32 {vr(vVc + ct)}, {vr(vS)}, {vr(vVc + ct)}, vcc
v_cmp_eq_u32 vcc, 24, {vr(vP)}
v_mov_b32 {vr(vH)}, 0x3f803f80
v_cndmask_b32 {vr(vVd + 4 * ct)}, 0, {vr(vH)}, vcc''')
            for r in range(1, 4):
                p(f'v_mov_b32 {vr(vVd + 4 * ct + r)}, {vr(vVd + 4 * ct)}')
        qs = math.log2(math.e) / math.sqrt(28.0)
        p(f's_mov_b32 s{sK1}, {hx(qs)}\ns_mov_b32 s{sK1 + 1}, {hx(qs)}')
        vK0, vK1 = 36, 37
        p(f'v_mov_b32 {vr(vK0)}, 0x3f803f80\nv_mov_b32 {vr(vK1)}, 0x3f80')

        def qk_store(sec, tt, d):
            f0 = 2 * sec
            if sec == 0:
                for ct in range(2):
                    for h in range(2):
                        a = acc(f0 + ct, tt) + 2 * h
                        p(f'v_pk_mul_f32 {vr(a, 2)}, {vr(a, 2)}, {sp(sK1)}')
            for ct in range(2):
                a = acc(f0 + ct, tt)
                p(f'v_cvt_pk_bf16_f32 {vr(d + 2 * ct)}, {vr(a)}, {vr(a + 1)}')
                p(f'v_cvt_pk_bf16_f32 {vr(d + 2 * ct + 1)}, {vr(a + 2)}, {vr(a + 3)}')
            p(f'v_permlane16_swap_b32 {vr(d)}, {vr(d + 2)}')
            p(f'v_permlane16_swap_b32 {vr(d + 1)}, {vr(d + 3)}')
            c0, c1 = ('0', '0') if sec == 0 else (vr(vK0), vr(vK1))
            p(f'''v_mov_b32 {vr(d + 4)}, {vr(d + 2)}
v_mov_b32 {vr(d + 5)}, {vr(d + 3)}
v_mov_b32 {vr(d + 6)}, {c0}
v_mov_b32 {vr(d + 7)}, {c1}
v_cndmask_b32 {vr(d + 2)}, {vr(d + 2)}, {vr(d + 6)}, {sp(sM0)}
v_cndmask_b32 {vr(d + 3)}, {vr(d + 3)}, {vr(d + 7)}, {sp(sM0)}''')
            va, vb, so, o = (vQa, vQb, sT0, 256 * tt) if sec == 0 else (vKa, vKb, sT1, 128 * tt)
            p(f'buffer_store_dwordx4 {vr(d, 4)}, {vr(va)}, {srd(sWS)}, s{so} offen{off(o)} sc1', tokw=['st1'])
            p(f'buffer_store_dwordx4 {vr(d + 4, 4)}, {vr(vb)}, {srd(sWS)}, s{so} offen{off(o)} sc1', tokw=['st1'])

        qk_store(1, 0, D)
        qk_store(1, 1, D + 8)
        for ct in range(2):
            d = D + 16 + 4 * ct
            for tt in range(2):
                a = acc(4 + ct, tt)
                p(f'v_cvt_pk_bf16_f32 {vr(d + 2 * tt)}, {vr(a)}, {vr(a + 1)}')
                p(f'v_cvt_pk_bf16_f32 {vr(d + 2 * tt + 1)}, {vr(a + 2)}, {vr(a + 3)}')
            p(f'buffer_store_dwordx4 {vr(d, 4)}, {vr(vVa + ct)}, {srd(sWS)}, s{sT1} offen offset:2048 sc1', tokw=['st1'])
            p(f'buffer_store_dwordx4 {vr(vVd + 4 * ct, 4)}, {vr(vVc + ct)}, {srd(sWS)}, s{sT1} offen offset:2048 sc1',
              tokw=['st1'])
        qk_store(0, 0, D + 24)
        qk_store(0, 1, D + 32)
        self.sentinel_init()
        p(f'''s_lshl_b32 s{sT0}, s{sCB}, 2
s_lshr_b32 s{sT1}, s{sRB}, 2
s_add_u32 s{sT0}, s{sT0}, s{sT1}
s_lshl_b32 s{sT0}, s{sT0}, 8
v_lshlrev_b32 {vr(vP)}, 7, {vr(vL)}
v_add_u32 {vr(vP)}, s{sT0}, {vr(vP)}
v_mov_b32 {vr(vH)}, 0''')
        self.check(vFl, vH, 1, sDBG)
        p.need('st1', 'sent')
        self.arrive(vP, 3)
        self.stamp(3)
        p('s_branch .Lattn')

    def spare(self):
        p = self.p
        p('.Lspare:')
        sSPI, sOM = sT0, sA0
        t = 6
        p(f'''s_sub_u32 s{sT1}, s{sIDX}, 28
s_lshl_b32 s{sT1}, s{sT1}, 2
s_add_u32 s{sT1}, s{sT1}, s{sW}
s_lshl_b32 s{sT1}, s{sT1}, 13
v_lshlrev_b32 {vr(t)}, 7, {vr(vL)}
v_add_u32 {vr(t)}, s{sT1}, {vr(t)}
s_mov_b32 s{sT1}, .Lend-.Lpc0
v_min_u32 {vr(t)}, s{sT1}, {vr(t)}
global_load_dword {vr(250)}, {vr(t)}, {sp(sPC)}''')
        p(f'''s_lshl_b32 s{sOM}, s{sXC}, 2
s_add_u32 s{sOM}, s{sOM}, s{sIDX}
s_sub_u32 s{sOM}, s{sOM}, 28
s_cmp_lg_u32 s{sOM}, 0
s_cbranch_scc1 .Lnozero''')
        p(f'''v_lshlrev_b32 {vr(t)}, 7, {vr(vL)}
s_lshl_b32 s{sT1}, s{sW}, 15
v_mov_b32 {vr(t + 1)}, 0''')
        for n in range(4):
            p(f's_add_u32 s{sT2}, s{sT1}, {CNT + n * 8192}')
            p(f'buffer_store_dword {vr(t + 1)}, {vr(t)}, {srd(sWS)}, s{sT2} offen sc1', tokw=['z'])
        p.need('z')
        p('s_barrier')
        p(f's_mov_b64 exec, 1\nbuffer_store_dword {vr(vONE)}, {vr(t + 1)}, {srd(sDBG)}, 0 offen sc1\ns_mov_b64 exec, -1')
        p('.Lnozero:')
        p(f's_lshl_b32 s{sOM}, s{sOM}, 2\ns_add_u32 s{sOM}, s{sOM}, s{sW}')
        vN, vO, vI, vR0, vR1, vD2 = 7, 8, 9, 10, 11, 12
        vr_, vc_ = 13, 14
        p(f'''v_lshrrev_b32 {vr(vr_)}, 2, {vr(vC)}
v_and_b32 {vr(vc_)}, 3, {vr(vC)}
v_lshl_add_u32 {vr(t)}, {vr(vQ)}, 3, {vr(vr_)}
v_mul_u32_u24 {vr(vN)}, 896, {vr(t)}
v_lshl_add_u32 {vr(vN)}, {vr(vc_)}, 4, {vr(vN)}
v_mul_u32_u24 {vr(vI)}, 3584, {vr(t)}
v_lshl_add_u32 {vr(vI)}, {vr(vc_)}, 4, {vr(vI)}
v_lshrrev_b32 {vr(t)}, 1, {vr(vQ)}
v_lshlrev_b32 {vr(t)}, 4, {vr(t)}
v_and_b32 {vr(vO)}, 1, {vr(vQ)}
v_lshl_add_u32 {vr(t)}, {vr(vO)}, 2, {vr(t)}
v_add_u32 {vr(t)}, {vr(t)}, {vr(vr_)}
v_mul_u32_u24 {vr(vO)}, 896, {vr(t)}
v_lshl_add_u32 {vr(vO)}, {vr(vc_)}, 4, {vr(vO)}''')
        sj, sa2, sk8, sh, sa4, skp = sA1, sA2, sA3, sT0, sT1, sT2
        p(f'''s_lshr_b32 s{sj}, s{sOM}, 4
s_bfe_u32 s{sa2}, s{sOM}, 0x10003
s_and_b32 s{sk8}, s{sOM}, 7
s_bfe_u32 s{sh}, s{sOM}, 0x10003
s_bfe_u32 s{sa4}, s{sOM}, 0x20001
s_and_b32 s{skp}, s{sOM}, 1''')
        p(f's_mul_i32 s{sL}, s{sW}, 26624')
        sS0, sS1, sS2, sD0, sD1, sD2 = 88, 89, 90, 91, 92, 93
        p(f'''s_mul_i32 s{sT3}, s{sj}, 112
s_lshl_b32 s{sT4}, s{sa2}, 6
s_add_u32 s{sT3}, s{sT3}, s{sT4}
s_mul_i32 s{sS0}, s{sk8}, {2 * 28 * 896}
s_add_u32 s{sS0}, s{sS0}, s{sT3}
s_lshl_b32 s{sD0}, s{sj}, 16
s_lshl_b32 s{sT4}, s{sk8}, 13
s_add_u32 s{sD0}, s{sD0}, s{sT4}
s_lshl_b32 s{sT4}, s{sa2}, 11
s_add_u32 s{sD0}, s{sD0}, s{sT4}
s_add_u32 s{sD0}, s{sD0}, {WOF}''')
        p(f'''s_mul_i32 s{sT5}, s{sk8}, 7
s_lshr_b32 s{sT5}, s{sT5}, 1
s_mul_i32 s{sS2}, s{sT5}, {32 * 896}
s_add_u32 s{sS2}, s{sS2}, s{sT3}
s_mul_i32 s{sD2}, s{sj}, 28
s_add_u32 s{sD2}, s{sD2}, s{sT5}
s_lshl_b32 s{sD2}, s{sD2}, 12
s_add_u32 s{sD2}, s{sD2}, s{sT4}
s_add_u32 s{sD2}, s{sD2}, {WUF}''')
        p(f'''s_mul_i32 s{sS1}, s{skp}, {7 * 32 * 3584}
s_mul_i32 s{sT3}, s{sj}, 224
s_add_u32 s{sS1}, s{sS1}, s{sT3}
s_lshl_b32 s{sT3}, s{sa4}, 6
s_add_u32 s{sS1}, s{sS1}, s{sT3}
s_xor_b32 s{sT3}, s{sh}, 1
s_mul_i32 s{sT3}, s{sT3}, 1792
s_add_u32 s{sS1}, s{sS1}, s{sT3}
s_lshl_b32 s{sD1}, s{sj}, 1
s_add_u32 s{sD1}, s{sD1}, s{sh}
s_lshl_b32 s{sD1}, s{sD1}, 1
s_add_u32 s{sD1}, s{sD1}, s{skp}
s_mul_i32 s{sD1}, s{sD1}, {49 * 1024}
s_lshl_b32 s{sT3}, s{sa4}, 11
s_add_u32 s{sD1}, s{sD1}, s{sT3}
s_add_u32 s{sD1}, s{sD1}, {WIF}''')
        items = []
        for tt in range(2):
            items.append((sWO, vO, sS0, tt * 28 * 896, 8 * 896, sD0, tt * 4096, 0))
        for tt in range(7):
            items.append((sWI, vI, sS1, tt * 32 * 3584, 4 * 3584, sD1, tt * 7168, 1))
        for tt in range(4):
            items.append((sWU, vN, sS2, tt * 32 * 896, 4 * 896, sD2, tt * 4096, 0))
        for n, (rs, va, ss, so, jstep, sd, do, wi) in enumerate(items):
            for jj in range(2):
                p(f's_add_u32 m0, s{sL}, {n * 2048 + jj * 1024}')
                p(f's_add_u32 s{sT3}, s{ss}, {so + jj * jstep}')
                p(f'buffer_load_dwordx4 {vr(va)}, {srd(rs)}, s{sT3} offen lds', tokw=[f'r{n}'])
        p(f'''v_add_u32 {vr(vR0)}, s{sL}, {vr(vL16)}
v_and_b32 {vr(t)}, 60, {vr(vL)}
v_lshrrev_b32 {vr(vR1)}, 1, {vr(vc_)}
v_add_u32 {vr(t)}, {vr(t)}, {vr(vR1)}
v_lshlrev_b32 {vr(t)}, 4, {vr(t)}
v_and_b32 {vr(vR1)}, 1, {vr(vc_)}
v_lshl_add_u32 {vr(t)}, {vr(vR1)}, 3, {vr(t)}
v_add_u32 {vr(t)}, s{sL}, {vr(t)}
s_cmp_eq_u32 s{sa4}, 3
s_cselect_b64 {sp(sM0)}, -1, 0
v_mov_b32 {vr(vD2)}, {OOR}
v_cndmask_b32 {vr(vR1)}, {vr(vR0)}, {vr(t)}, {sp(sM0)}
v_cndmask_b32 {vr(vD2)}, {vr(vL16)}, {vr(vD2)}, {sp(sM0)}''')
        for n, (rs, va, ss, so, jstep, sd, do, wi) in enumerate(items):
            d = 16 + 8 * n
            p.need(f'r{n}')
            for e in range(2):
                for jj in range(2):
                    base = vR1 if (wi and e == 0) else vR0
                    p(f'ds_read_b64_tr_b16 {vr(d + 4 * e + 2 * jj, 2)}, {vr(base)}{off(n * 2048 + jj * 1024 + 8 * e)}')
        for n, (rs, va, ss, so, jstep, sd, do, wi) in enumerate(items):
            d = 16 + 8 * n
            p(f's_add_u32 s{sT3}, s{sd}, {do}')
            p(f'buffer_store_dwordx4 {vr(d, 4)}, {vr(vL16)}, {srd(sWS)}, s{sT3} offen sc1', tokw=['rst'])
            p(f'buffer_store_dwordx4 {vr(d + 4, 4)}, {vr(vD2 if wi else vL16)}, {srd(sWS)}, s{sT3} offen offset:1024 sc1',
              tokw=['rst'])
        self.sentinel_init()
        p(f'v_mov_b32 {vr(12)}, 0')
        self.poll(12, 1, sDBG, 13)
        p.need('rst', 'sent')
        p('s_barrier')
        p(f'''v_lshlrev_b32 {vr(12)}, 7, {vr(vL)}
v_add_u32 {vr(12)}, {CNT + C_RDY * 128}, {vr(12)}
s_cmp_lg_u32 s{sW}, 0
s_cbranch_scc1 .Lattn''')
        self.arrive(12, 0xff)
        self.stamp(3)

    def attention(self):
        p = self.p
        c = self.c
        Q, O, S, P, KB = 16, 48, 112, 144, 152
        SCR, FLG = 106 * 1024, 155 * 1024
        vPo, vSP, vRdy, vRv, vW0 = 7, 8, 9, 10, 11
        vM = 240
        t = 244
        qf = lambda a, u: Q + 8 * a + 4 * u
        kf = lambda b, u: KB + 16 * b + 4 * u
        vf = lambda b, u: KB + 16 * b + 8 + 4 * u
        p('.Lattn:')
        if c.stop <= 1:
            self.finish()
            return
        p(f'''s_mul_i32 s{sT0}, s{sHD}, 28
s_lshr_b32 s{sT1}, s{sT0}, 5
s_add_u32 s{sT0}, s{sT0}, 27
s_lshr_b32 s{sT2}, s{sT0}, 5''')
        for s in (sT1, sT2):
            p(f'''s_mul_i32 s{sT3}, s{s}, {8 * 2341 * 4}
s_lshr_b32 s{sT3}, s{sT3}, 17
s_lshr_b32 s{sT4}, s{sHD}, 1
s_sub_u32 s{sT3}, s{sT4}, s{sT3}
s_lshl_b32 s{s}, s{s}, 3
s_add_u32 s{s}, s{s}, s{sT3}''')
        p(f'''s_lshr_b32 s{sT3}, s{sQB}, 2
v_mov_b32 {vr(vPo)}, s{sT1}
v_mov_b32 {vr(t)}, s{sT2}
v_and_b32 {vr(t + 1)}, 1, {vr(vL)}
v_cmp_ne_u32 vcc, 0, {vr(t + 1)}
v_cndmask_b32 {vr(vPo)}, {vr(vPo)}, {vr(t)}, vcc
v_mov_b32 {vr(t)}, s{sW}
v_mov_b32 {vr(t + 2)}, s{sT3}
v_and_b32 {vr(t + 1)}, 2, {vr(vL)}
v_cmp_ne_u32 vcc, 0, {vr(t + 1)}
v_cndmask_b32 {vr(t)}, {vr(t)}, {vr(t + 2)}, vcc
v_lshl_add_u32 {vr(vPo)}, {vr(t)}, 1, {vr(vPo)}
v_lshlrev_b32 {vr(vPo)}, 7, {vr(vPo)}''')
        p(f'''v_lshlrev_b32 {vr(vSP)}, 12, {vr(vC)}
v_lshl_add_u32 {vr(vSP)}, {vr(vQ)}, 4, {vr(vSP)}
s_lshl_b32 s{sT0}, s{sW}, 10
v_add_u32 {vr(vSP)}, s{sT0}, {vr(vSP)}
s_lshl_b32 s{sT0}, s{sXC}, 7
s_add_u32 s{sT0}, s{sT0}, {CNT + C_RDY * 128}
v_mov_b32 {vr(vRdy)}, s{sT0}
v_cmp_lt_u32 {sp(sM2)}, 31, {vr(vL)}''')
        for a in range(4):
            p(f's_add_u32 s{sT0}, s{sW}, {1 + a}\ns_and_b32 s{sT0}, s{sT0}, 3')
            if a < 3:
                p(f'''s_mul_i32 s{sT1}, s{sT0}, 12288
s_add_u32 s{sT1}, s{sT1}, {SCR + a * 4096}
v_add_u32 {vr(vW0 + a)}, s{sT1}, {vr(vL16)}''')
            p(f'''s_lshl_b32 s{sT1}, s{sI}, 2
s_add_u32 s{sT1}, s{sT1}, s{sT0}
s_lshl_b32 s{sA0 + a}, s{sT1}, 16''')
            p(f'''s_lshl_b32 s{sT1}, s{sHD}, 6
s_lshl_b32 s{sT2}, s{sQB}, 2
s_add_u32 s{sT1}, s{sT1}, s{sT2}
s_add_u32 s{sT1}, s{sT1}, s{sT0}
s_lshl_b32 s{sT1}, s{sT1}, 11
s_add_u32 s{88 + a}, s{sT1}, {QF}''')
        p(f'''s_lshl_b32 s{sT0}, s{sHD}, 18
s_add_u32 s{sT0}, s{sT0}, {KV}
s_lshl_b32 s{sT1}, s{sQB}, 14
s_add_u32 s{92}, s{sT0}, s{sT1}
s_lshl_b32 s{sT1}, s{sW}, 16
s_add_u32 s{93}, s{sT0}, s{sT1}''')
        self.poll(vPo, 16)
        self.stamp(4)
        for u in range(2):
            p(f'buffer_load_dwordx4 {vr(kf(3, u), 4)}, {vr(vL16)}, {srd(sWS)}, s92 offen{off(1024 * u)} sc1')
        for a in range(4):
            for u in range(2):
                p(f'buffer_load_dwordx4 {vr(qf(a, u), 4)}, {vr(vL16)}, {srd(sWS)}, s{88 + a} offen{off(1024 * u)} sc1')

        def kvload(tl, which):
            b = tl % 4
            return f'buffer_load_dwordx4 {vr(KB + 16 * b + 4 * which, 4)}, {vr(vL16)}, {srd(sWS)}, s{sKV} offen' \
                   f'{off(1024 * which)} sc1'

        def first_kv():
            for tl in range(3):
                p(f's_add_u32 s{sKV}, s93, {tl * 4096}')
                for wch in range(4):
                    p(kvload(tl, wch))
        first_kv()

        def tile_max(a, b, first):
            s = S + 16 * (a % 2)
            o = [mf32(s, kf(b, 0), qf(a, 0), None), mf32(s, kf(b, 1), qf(a, 1), s)]
            m = vM + a
            v = [f'v_max3_f32 {vr(m)}, {vr(s)}, {vr(s + 1)}, {vr(s + 2) if first else vr(m)}']
            rest = list(range(3 if first else 2, 16))
            while len(rest) >= 2:
                v.append(f'v_max3_f32 {vr(m)}, {vr(s + rest[0])}, {vr(s + rest[1])}, {vr(m)}')
                rest = rest[2:]
            if rest:
                v.append(f'v_max_f32 {vr(m)}, {vr(s + rest[0])}, {vr(m)}')
            return o, v

        def max_pass(b, first):
            ms = [tile_max(a, b, first) for a in range(4)]
            p.add(ms[0][0])
            for a in range(4):
                if a < 3:
                    p.add(ms[a + 1][0])
                p.add(ms[a][1])

        def half_max():
            for a in range(4):
                p(f'v_mov_b32 {vr(t + a)}, {vr(vM + a)}')
            for a in range(4):
                p(f'v_permlane32_swap_b32 {vr(t + a)}, {vr(vM + a)}')
            for a in range(4):
                p(f'v_max_f32 {vr(vM + a)}, {vr(t + a)}, {vr(vM + a)}')

        def patch_q(full):
            for a in range(4):
                m = vM + a
                p(f'v_sub_f32 {vr(m)}, 0, {vr(m)}')
                p(f'v_cvt_pk_bf16_f32 {vr(t)}, {vr(m)}, 0')
                if full:
                    p(f'''v_lshlrev_b32 {vr(t + 1)}, 16, {vr(t)}
v_sub_f32 {vr(m)}, {vr(m)}, {vr(t + 1)}
v_cvt_pk_bf16_f32 {vr(t + 1)}, {vr(m)}, 0
v_lshlrev_b32 {vr(t + 1)}, 16, {vr(t + 1)}
v_sub_f32 {vr(m)}, {vr(m)}, {vr(t + 1)}
v_or_b32 {vr(t)}, {vr(t)}, {vr(t + 1)}
v_cvt_pk_bf16_f32 {vr(t + 1)}, {vr(m)}, 0
v_cndmask_b32 {vr(qf(a, 1) + 3)}, {vr(qf(a, 1) + 3)}, {vr(t + 1)}, {sp(sM2)}''')
                p(f'v_cndmask_b32 {vr(qf(a, 1) + 2)}, {vr(qf(a, 1) + 2)}, {vr(t)}, {sp(sM2)}')
        max_pass(3, True)
        half_max()
        patch_q(False)
        p('.Lsweep:')
        self.stamp(5)
        side = [[] for _ in range(16)]
        wsp = []
        for a in range(4):
            for ks in range(16):
                wsp.append(f'buffer_load_dwordx4 {ar((a * 16 + ks) * 4, 4)}, {vr(vSP)}, {srd(sSP)}, s{sA0 + a} offen'
                           f'{off(64 * ks)}')
        for tl in range(11):
            for _ in range(6):
                if wsp:
                    side[tl].append([wsp.pop(0)])
        side[1].append([f'buffer_load_dword {vr(vRv)}, {vr(vRdy)}, {srd(sWS)}, 0 offen sc1'])
        side[2].append([f's_mul_i32 s{sT0}, s{sRT}, {16 * 896}', f's_mul_i32 s{sT1}, s{sJ}, 112'])
        side[2].append([f's_add_u32 s{sT0}, s{sT0}, s{sT1}', f'v_mul_u32_u24 {vr(t)}, 896, {vr(vC)}',
                        f'v_lshl_add_u32 {vr(t)}, {vr(vQ)}, 4, {vr(t)}'])
        side[2].append([f'buffer_load_dwordx4 {vr(vXR, 4)}, {vr(t)}, {srd(sX)}, s{sT0} offen'])
        side[2].append([f'buffer_load_dwordx4 {vr(vXR + 4, 4)}, {vr(t)}, {srd(sX)}, s{sT0} offen offset:64'])
        side[3].append([f's_lshl_b32 s{sT0}, s{sRT}, 5', f'v_lshlrev_b32 {vr(t)}, 1, {vr(vC)}'])
        side[3].append([f'buffer_load_ushort {vr(vBS)}, {vr(t)}, {srd(sBS)}, s{sT0} offen'])
        side[4].append('CHECK')
        side[4].append([f's_lshl_b32 s{sT0}, s{sJ}, 16', f's_mul_i32 s{sT1}, s{sJ}, {196 * 1024}'])
        d = self.dma_list(sT0, WOF, 0, 64, 'wo') + self.dma_list(sT1, WIF, 64 * 1024, 42, 'z2a')
        tl = 5
        while d:
            for _ in range(5):
                if d:
                    side[tl].append(d.pop(0))
            tl += 1
        assert tl <= 14

        def owrite(a):
            return [[(f'ds_write_b128 {vr(vW0 + a)}, {vr(O + 16 * a + 4 * k, 4)}{off(1024 * k)}', ['ow'])]
                    for k in range(4)]

        p(mf32(S, kf(0, 0), qf(0, 0), None))
        p(mf32(S, kf(0, 1), qf(0, 1), S))
        for n in range(64):
            tl, a = n // 4, n % 4
            sc, sn = S + 16 * (n % 2), S + 16 * ((n + 1) % 2)
            ms = [None] * 4
            if n < 63:
                t1, a1 = (n + 1) // 4, (n + 1) % 4
                ms[0] = mf32(sn, kf(t1 % 4, 0), qf(a1, 0), None)
                ms[1] = mf32(sn, kf(t1 % 4, 1), qf(a1, 1), sn)
            if n > 0:
                t0, a0 = (n - 1) // 4, (n - 1) % 4
                ms[2] = mf32(O + 16 * a0, vf(t0 % 4, 1), P + 4, O + 16 * a0)
            ms[3] = mf32(O + 16 * a, vf(tl % 4, 0), P, None if tl == 0 else O + 16 * a)
            ex = [[] for _ in range(4)]
            if tl + 3 < 16:
                if a == 0:
                    ex[0] = [f's_add_u32 s{sKV}, s93, {(tl + 3) * 4096}', kvload(tl + 3, 0)]
                    ex[1] = [kvload(tl + 3, 1)]
                if a == 1:
                    ex[0] = [kvload(tl + 3, 2)]
                    ex[1] = [kvload(tl + 3, 3)]
            if tl == 15 and a >= 2:
                w = owrite(a - 2)
                for g in range(4):
                    ex[g] = w[g]
            for g in range(4):
                if ms[g]:
                    p(ms[g])
                if not ex[g] and side[tl]:
                    it = side[tl].pop(0)
                    if it == 'CHECK':
                        self.check(vRv, vRdy, 32)
                    else:
                        p.add(list(it))
                else:
                    p.add(list(ex[g]))
                for jx in range(4):
                    p(f'v_exp_f32 {vr(sc + 4 * g + jx)}, {vr(sc + 4 * g + jx)}')
                p(f'v_cvt_pk_bf16_f32 {vr(P + 2 * g)}, {vr(sc + 4 * g)}, {vr(sc + 4 * g + 1)}')
                p(f'v_cvt_pk_bf16_f32 {vr(P + 2 * g + 1)}, {vr(sc + 4 * g + 2)}, {vr(sc + 4 * g + 3)}')
            if a == 3:
                assert not side[tl], (tl, side[tl])
        p(mf32(O + 48, vf(3, 1), P + 4, O + 48))
        for g in owrite(2):
            p.add(list(g))
        self.stamp(6)
        p(f'''v_max3_f32 {vr(t)}, abs({vr(O + 12)}), abs({vr(O + 28)}), abs({vr(O + 44)})
v_add_f32 {vr(t + 1)}, {vr(O + 12)}, {vr(O + 28)}
v_add_f32 {vr(t + 1)}, {vr(t + 1)}, {vr(O + 44)}
v_add_f32 {vr(t + 1)}, {vr(t + 1)}, {vr(O + 60)}
v_max3_f32 {vr(t)}, {vr(t)}, abs({vr(O + 60)}), abs({vr(O + 60)})
v_cmp_nge_f32 vcc, {hx(2.0 ** 60)}, {vr(t)}
v_cmp_u_f32 {sp(sM0)}, {vr(t + 1)}, {vr(t + 1)}
s_or_b64 vcc, vcc, {sp(sM0)}
s_cmp_lg_u64 vcc, 0
s_cselect_b32 s{sT0}, 1, {1 if c.force_fb else 0}
s_lshl_b32 s{sT1}, s{sW}, 2
s_add_u32 s{sT1}, s{sT1}, {FLG}
v_mov_b32 {vr(t)}, s{sT0}
v_mov_b32 {vr(t + 1)}, s{sT1}''')
        p(f'ds_write_b32 {vr(t + 1)}, {vr(t)}', tokw=['ow'])
        p(f's_mul_i32 s{sT1}, s{sW}, 12288\ns_add_u32 s{sT1}, s{sT1}, {SCR}')
        p(f'v_add_u32 {vr(vW0)}, s{sT1}, {vr(vL16)}\nv_mov_b32 {vr(t + 1)}, {FLG}')
        p.need('ow', 'wo', 'z2a')
        p('s_barrier')
        p(f'ds_read_b128 {vr(t + 4, 4)}, {vr(t + 1)}')
        R = S
        for a in range(3):
            for k in range(4):
                p(f'ds_read_b128 {vr(R + 16 * a + 4 * k, 4)}, {vr(vW0)}{off(a * 4096 + k * 1024)}')
        p(f'''v_or_b32 {vr(t + 4)}, {vr(t + 4)}, {vr(t + 5)}
v_or3_b32 {vr(t + 4)}, {vr(t + 4)}, {vr(t + 6)}, {vr(t + 7)}
v_readfirstlane_b32 s{sT0}, {vr(t + 4)}
s_andn2_b32 s{sT0}, s{sT0}, s{sFB}
s_cmp_lg_u32 s{sT0}, 0
s_cbranch_scc1 .Ltruemax''')
        Oo = O + 48
        for a in range(3):
            for k in range(8):
                p(f'v_pk_add_f32 {vr(Oo + 2 * k, 2)}, {vr(Oo + 2 * k, 2)}, {vr(R + 16 * a + 2 * k, 2)}')
        p(f'''v_mov_b32 {vr(t)}, {vr(Oo + 12)}
v_mov_b32 {vr(t + 2)}, {vr(Oo + 12)}
v_permlane32_swap_b32 {vr(t)}, {vr(t + 2)}
v_rcp_f32 {vr(t)}, {vr(t + 2)}
v_mov_b32 {vr(t + 1)}, {vr(t)}
v_cndmask_b32 {vr(t + 2)}, {vr(t)}, 0, {sp(sM2)}
v_mov_b32 {vr(t + 3)}, {vr(t + 2)}''')
        p(f'''s_lshl_b32 s{sT0}, s{sQB}, 3
s_lshl_b32 s{sT1}, s{sW}, 1
s_add_u32 s{sT0}, s{sT0}, s{sT1}
s_lshl_b32 s{sT0}, s{sT0}, 4
s_add_u32 s{sT0}, s{sT0}, s{sHD}
s_lshl_b32 s{sT0}, s{sT0}, 10
s_add_u32 s{sT0}, s{sT0}, {OF}
v_and_b32 {vr(vPo)}, 1, {vr(vQ)}
v_lshlrev_b32 {vr(vPo)}, 14, {vr(vPo)}
v_lshrrev_b32 {vr(vSP)}, 1, {vr(vQ)}
v_lshl_add_u32 {vr(vPo)}, {vr(vSP)}, 8, {vr(vPo)}
v_lshl_add_u32 {vr(vPo)}, {vr(vC)}, 4, {vr(vPo)}''')
        for k in range(8):
            sc = t if k < 6 else t + 2
            p(f'v_pk_mul_f32 {vr(Oo + 2 * k, 2)}, {vr(Oo + 2 * k, 2)}, {vr(sc, 2)}')
        for k in range(8):
            p(f'v_cvt_pk_bf16_f32 {vr(O + k)}, {vr(Oo + 2 * k)}, {vr(Oo + 2 * k + 1)}')
        for a in range(2):
            p(f'buffer_store_dwordx4 {vr(O + 4 * a, 4)}, {vr(vPo)}, {srd(sWS)}, s{sT0} offen{off(512 * a)} sc1',
              tokw=['st2'])
        p(f'''s_lshl_b32 s{sT0}, s{sQB}, 2
s_add_u32 s{sT0}, s{sT0}, s{sW}
s_lshl_b32 s{sT0}, s{sT0}, 8
s_add_u32 s{sT0}, s{sT0}, {CNT + C_S2 * 128}
v_lshlrev_b32 {vr(vSP)}, 7, {vr(vL)}
v_add_u32 {vr(vSP)}, s{sT0}, {vr(vSP)}''')
        p.need('st2')
        self.arrive(vSP, 3)
        self.stamp(7)

        def truemax():
            p('.Ltruemax:')
            p('s_waitcnt vmcnt(0) lgkmcnt(0)\ns_barrier')
            p(f's_mov_b32 s{sFB}, 1')
            for a in range(4):
                for r in (2, 3):
                    p(f'v_cndmask_b32 {vr(qf(a, 1) + r)}, {vr(qf(a, 1) + r)}, 0, {sp(sM2)}')
                p(f'v_mov_b32 {vr(vM + a)}, 0xff7fffff')
            p(f's_mov_b32 s{sKV}, s93\ns_mov_b32 s{sT0}, 16')
            p('.Ltm_loop:')
            p(kvload(3, 0))
            p(kvload(3, 1))
            max_pass(3, False)
            p(f's_add_u32 s{sKV}, s{sKV}, 4096\ns_sub_u32 s{sT0}, s{sT0}, 1\ns_cmp_lg_u32 s{sT0}, 0')
            p('s_cbranch_scc1 .Ltm_loop')
            half_max()
            for a in range(4):
                p(f'''s_add_u32 s{sT0}, s{sW}, {1 + a}
s_and_b32 s{sT0}, s{sT0}, 3
s_lshl_b32 s{sT0}, s{sT0}, 10
s_add_u32 s{sT0}, s{sT0}, {SCR}
v_lshlrev_b32 {vr(t + a)}, 2, {vr(vL)}
v_add_u32 {vr(t + a)}, s{sT0}, {vr(t + a)}
s_lshl_b32 s{sT0}, s{sW}, 8
v_add_u32 {vr(t + 4)}, s{sT0}, {vr(t + a)}''')
                p(f'ds_write_b32 {vr(t + 4)}, {vr(vM + a)}', tokw=['tm'])
            p.need('tm')
            p('s_barrier')
            for a in range(4):
                for k in range(4):
                    p(f'ds_read_b32 {vr(S + 4 * a + k)}, {vr(t + a)}{off(256 * k)}')
            for a in range(4):
                p(f'v_max3_f32 {vr(vM + a)}, {vr(S + 4 * a)}, {vr(S + 4 * a + 1)}, {vr(S + 4 * a + 2)}')
                p(f'v_max_f32 {vr(vM + a)}, {vr(vM + a)}, {vr(S + 4 * a + 3)}')
            patch_q(True)
            p('s_waitcnt lgkmcnt(0)\ns_barrier')
            for a in range(1):
                p(f'''s_add_u32 s{sT0}, s{sW}, 1
s_and_b32 s{sT0}, s{sT0}, 3
s_mul_i32 s{sT1}, s{sT0}, 12288
s_add_u32 s{sT1}, s{sT1}, {SCR}
v_add_u32 {vr(vW0)}, s{sT1}, {vr(vL16)}''')
            first_kv()
            p('s_branch .Lsweep')
        self.truemax = truemax

    def gemm_lds(self, nks, nct, lds_addr, act, acc, ring, nring, w_is_a, fill=(), per=0.0, hooks=None, ahead=6):
        p = self.p
        seq = [(ks, ct) for ks in range(nks) for ct in range(nct)]
        fill = list(fill)
        hooks = hooks or {}
        rd = lambda n: lds_rd(ring + 4 * (n % nring), lds_addr(*seq[n]))
        issued = 0
        accu = 0.0

        def run_hook(n):
            if n < len(seq) and seq[n][1] == 0 and seq[n][0] in hooks:
                hooks.pop(seq[n][0])()
        while issued < min(ahead, len(seq)):
            run_hook(issued)
            p(rd(issued))
            issued += 1
        for n, (ks, ct) in enumerate(seq):
            wf = vr(ring + 4 * (n % nring), 4)
            a, b = (wf, act(ks)) if w_is_a else (act(ks), wf)
            p(mf16(acc(ct), a, b, None if ks == 0 else acc(ct)))
            if issued < len(seq):
                run_hook(issued)
                p(rd(issued))
                issued += 1
            accu += per
            while accu >= 1 and fill:
                p.add(fill.pop(0))
                accu -= 1
        p.add(fill)

    def gelu(self, regs, t):
        o = []
        for n in range(0, len(regs), 2):
            r = regs[n]
            u = t + 2 * ((n // 2) % 4)
            o.append([f'v_pk_mul_f32 {vr(u, 2)}, {vr(r, 2)}, {vr(r, 2)}',
                      f'v_pk_fma_f32 {vr(u, 2)}, {vr(u, 2)}, {vr(168, 2)}, {vr(170, 2)}',
                      f'v_pk_mul_f32 {vr(u, 2)}, {vr(u, 2)}, {vr(r, 2)}',
                      f'v_exp_f32 {vr(u)}, {vr(u)}',
                      f'v_exp_f32 {vr(u + 1)}, {vr(u + 1)}',
                      f'v_pk_add_f32 {vr(u, 2)}, {vr(u, 2)}, 1.0 op_sel_hi:[1,0]',
                      f'v_rcp_f32 {vr(u)}, {vr(u)}',
                      f'v_rcp_f32 {vr(u + 1)}, {vr(u + 1)}',
                      f'v_pk_mul_f32 {vr(r, 2)}, {vr(r, 2)}, {vr(u, 2)}'])
        out = []
        for n in range(0, len(o), 2):
            if n + 1 < len(o):
                for a, b in zip(o[n], o[n + 1]):
                    out += [a, b]
            else:
                out += o[n]
        return out

    def phase3(self):
        p = self.p
        OB, RING, ACC = 16, 80, 112
        vA, vB, t = 7, 8, 10
        p(f'''s_mul_i32 s{sT1}, s{sJ}, {196 * 1024}
s_mul_i32 s{sT5}, s{sW}, 12288
s_add_u32 s{sG}, s{sT1}, s{sT5}
s_add_u32 s{sG}, s{sG}, {WIF + 42 * 1024}
s_add_u32 s{sL}, s{sT5}, {106 * 1024}''')
        p(f'''s_lshr_b32 s{sT0}, s{sRT}, 1
s_lshl_b32 s{sT0}, s{sT0}, 1
s_add_u32 s{sT0}, s{sT0}, s{sCH}
s_lshl_b32 s{sT0}, s{sT0}, 7
s_add_u32 s{sT0}, s{sT0}, {CNT + C_S2 * 128}
v_mov_b32 {vr(vA)}, s{sT0}
s_lshl_b32 s{sT0}, s{sRT}, 14
s_add_u32 s{sT0}, s{sT0}, {OF}''')
        self.poll(vA, 16)
        self.stamp(8)
        for g in range(4):
            for k in range(4):
                p(f'buffer_load_dwordx4 {vr(OB + 4 * (4 * g + k), 4)}, {vr(vL16)}, {srd(sWS)}, s{sT0} offen'
                  f'{off(1024 * k)} sc1')
            if g < 3:
                p(f's_add_u32 s{sT0}, s{sT0}, 4096')
        for n in range(13):
            if n % 4 == 0:
                if n:
                    p(f's_add_u32 s{sG}, s{sG}, 4096\ns_add_u32 s{sL}, s{sL}, 4096')
                if n == 12:
                    p(f's_add_u32 s{sG}, s{sT1}, {WIF + 90 * 1024}\ns_mov_b32 s{sL}, {154 * 1024}')
                p(f's_mov_b32 m0, s{sL}')
            p(f'buffer_load_dwordx4 {vr(vL16)}, {srd(sWS)}, s{sG} offen{off((n % 4) * 1024)} sc1 lds', tokw=['z2b'])
        p(f'''s_mul_i32 s{sT0}, s{sRT}, 14336
s_mul_i32 s{sT2}, s{sJ}, {7 * 256}
s_add_u32 s{sT0}, s{sT0}, s{sT2}
s_add_u32 s{sT0}, s{sT0}, {HF}
v_cmp_eq_u32 vcc, 3, {vr(vQ)}
v_mov_b32 {vr(vB)}, {OOR}
v_cndmask_b32 {vr(vB)}, {vr(vL16)}, {vr(vB)}, vcc''')
        self.gemm_lds(16, 4, lambda ks, ct: (ks * 4 + ct) * 1024, lambda ks: vr(OB + 4 * ks, 4),
                      lambda ct: ACC + 4 * ct, RING, 8, True)
        for k in range(8):
            x = vXR + k
            a = ACC + 2 * k
            p(f'''v_lshlrev_b32 {vr(t)}, 16, {vr(x)}
v_and_b32 {vr(t + 1)}, 0xffff0000, {vr(x)}
v_pk_add_f32 {vr(a, 2)}, {vr(a, 2)}, {vr(t, 2)}
v_cvt_pk_bf16_f32 {vr(x)}, {vr(a)}, {vr(a + 1)}''')
            if k == 3:
                p(f'buffer_store_dwordx4 {vr(vXR, 4)}, {vr(vL16)}, {srd(sWS)}, s{sT0} offen sc1', tokw=['st3'])
        p(f'buffer_store_dwordx4 {vr(vXR + 4, 4)}, {vr(vB)}, {srd(sWS)}, s{sT0} offen offset:1024 sc1', tokw=['st3'])
        p(f'''s_lshl_b32 s{sT0}, s{sRT}, 8
s_add_u32 s{sT0}, s{sT0}, {CNT + C_S3 * 128}
v_lshlrev_b32 {vr(vA)}, 7, {vr(vL)}
v_add_u32 {vr(vA)}, s{sT0}, {vr(vA)}''')
        p.need('st3')
        self.arrive(vA, 3)
        self.stamp(9)
        p('s_barrier')

    def phase4(self):
        p = self.p
        HB, SA, RING, Z2, Z1 = 16, 72, 80, 112, 140
        ONES, NA, NB, G = 172, 176, 178, 180
        vA, vPerm, vS, vZ, vZo = 7, 8, 9, 12, 13
        t = 10
        K = 1024

        def z2addr(ks, ct):
            return (64 * K + (ks * 7 + ct) * K) if ks < 13 else ct * K

        def z1addr(ks, ct):
            return (7 * K + (ks * 7 + ct) * K) if ks < 8 else 64 * K + ((ks - 8) * 7 + ct) * K
        p(f'''s_lshl_b32 s{sT0}, s{sRT}, 1
s_add_u32 s{sT0}, s{sT0}, s{sCH}
s_lshl_b32 s{sT0}, s{sT0}, 7
s_add_u32 s{sT0}, s{sT0}, {CNT + C_S3 * 128}
v_mov_b32 {vr(vA)}, s{sT0}
s_mul_i32 s{sT0}, s{sRT}, 14336
s_add_u32 s{sT0}, s{sT0}, {HF}
s_mul_i32 s{sT1}, s{sJ}, {196 * K}''')
        for r in range(4):
            p(f'v_mov_b32 {vr(ONES + r)}, 0x3f803f80')
        k1 = -2.0 * math.sqrt(2.0 / math.pi) * math.log2(math.e)
        p(f'''v_mov_b32 v168, {hx(k1 * 0.044715)}
v_mov_b32 v169, {hx(k1 * 0.044715)}
v_mov_b32 v170, {hx(k1)}
v_mov_b32 v171, {hx(k1)}''')
        self.ln_masks(vPerm)
        self.poll(vA, 8)
        self.stamp(10)
        for ks in range(14):
            if ks and ks % 4 == 0:
                p(f's_add_u32 s{sT0}, s{sT0}, 4096')
            p(f'buffer_load_dwordx4 {vr(HB + 4 * ks, 4)}, {vr(vL16)}, {srd(sWS)}, s{sT0} offen{off((ks % 4) * K)} sc1')
        self.emit_groups(self.dma_list(sT1, WIF + 91 * K, 0, 63, 'z1a'))
        for ks in range(14):
            h = vr(HB + 4 * ks, 4)
            p(mf16(SA, vr(ONES, 4), h, None if ks == 0 else SA))
            p(mf16(SA + 4, h, h, None if ks == 0 else SA + 4))
        p.add(self.ln_finish(SA, SA + 4, NA, NB, t, vPerm))

        def norm(ks):
            o = []
            for r in range(4):
                o += self.norm_reg(HB + 4 * ks + r, NA, NB, (t, 14)[r % 2])
            return o
        p.add(norm(0))
        p.need('z2b')
        p('s_barrier')
        self.stamp(11)
        fill = []
        for ks in range(1, 14):
            fill += norm(ks)

        def bar(tok):
            def f():
                p.need(tok)
                p('s_barrier')
            return f
        self.gemm_lds(14, 7, z2addr, lambda ks: vr(HB + 4 * ks, 4), lambda ct: Z2 + 4 * ct, RING, 8, False,
                      fill=fill, per=len(norm(0)) / 7.0 + 0.001, hooks={13: bar('z1a')})
        p('s_barrier')
        self.stamp(12)
        p(f's_mul_i32 s{sT2}, s{sJ}, {112 * K}')
        d = self.dma_list(sT1, WIF + (98 + 56) * K, 64 * K, 42, 'z1b') + self.dma_list(sT2, WUF, 106 * K, 48, 'wua')
        self.emit_groups(d)
        p.add(self.gelu(list(range(Z2, Z2 + 28)), G))
        SS, SQ = G, G + 4
        for ct in range(7):
            for h in range(2):
                z = vr(Z2 + 4 * ct + 2 * h, 2)
                if ct == 0:
                    p(f'v_pk_mul_f32 {vr(SQ + 2 * h, 2)}, {z}, {z}')
                else:
                    p(f'v_pk_fma_f32 {vr(SQ + 2 * h, 2)}, {z}, {z}, {vr(SQ + 2 * h, 2)}')
                    a = vr(Z2 + 2 * h, 2) if ct == 1 else vr(SS + 2 * h, 2)
                    p(f'v_pk_add_f32 {vr(SS + 2 * h, 2)}, {z}, {a}')
        for sh in (8, 4, 2, 1):
            for r in range(8):
                p(f'v_add_f32_dpp {vr(G + r)}, {vr(G + r)}, {vr(G + r)} row_ror:{sh} row_mask:0xf bank_mask:0xf')
        PB = G + 8
        p(f'''v_cndmask_b32 {vr(PB)}, {vr(SS)}, {vr(SS + 2)}, {sp(sM0)}
v_cndmask_b32 {vr(PB + 1)}, {vr(SQ)}, {vr(SQ + 2)}, {sp(sM0)}
v_cndmask_b32 {vr(PB + 2)}, {vr(SS + 1)}, {vr(SS + 3)}, {sp(sM0)}
v_cndmask_b32 {vr(PB + 3)}, {vr(SQ + 1)}, {vr(SQ + 3)}, {sp(sM0)}
v_lshlrev_b32 {vr(vS)}, 5, {vr(vQ)}
v_lshl_add_u32 {vr(vA)}, {vr(vC)}, 4, {vr(vS)}
s_lshl_b32 s{sT0}, s{sRT}, 10
s_add_u32 s{sT0}, s{sT0}, {ST}
s_lshl_b32 s{sT3}, s{sJ}, 7
s_add_u32 s{sT3}, s{sT3}, s{sT0}''')
        for r in range(4):
            p(f'v_min_u32 {vr(PB + r)}, -2, {vr(PB + r)}')
        p(f's_mov_b32 exec_lo, 0x00030003\ns_mov_b32 exec_hi, 0x00030003')
        p(f'buffer_store_dwordx4 {vr(PB, 4)}, {vr(vA)}, {srd(sWS)}, s{sT3} offen sc1')
        p('s_mov_b64 exec, -1')
        self.stamp(13)
        p(f'''v_and_b32 {vr(vA)}, 7, {vr(vC)}
v_lshl_add_u32 {vr(vS)}, {vr(vA)}, 7, {vr(vS)}
v_lshrrev_b32 {vr(vA)}, 3, {vr(vC)}
v_lshl_add_u32 {vr(vS)}, {vr(vA)}, 4, {vr(vS)}''')
        self.gemm_lds(14, 7, z1addr, lambda ks: vr(HB + 4 * ks, 4), lambda ct: Z1 + 4 * ct, RING, 8, True,
                      hooks={8: bar('z1b')})
        self.stamp(14)
        L, Dn = p.label('st'), p.label('std')
        p(f'{L}:')
        p(f'buffer_load_dwordx4 {vr(PB, 4)}, {vr(vS)}, {srd(sWS)}, s{sT0} offen sc1')
        p(f'''v_max3_u32 {vr(t)}, {vr(PB)}, {vr(PB + 1)}, {vr(PB + 2)}
v_max_u32 {vr(t)}, {vr(t)}, {vr(PB + 3)}
v_cmp_eq_u32 vcc, -1, {vr(t)}
s_cbranch_vccz {Dn}
s_sub_u32 s{sTO}, s{sTO}, 1
s_cmp_lg_u32 s{sTO}, 0
s_cbranch_scc1 {L}
s_branch .Lexit
{Dn}:''')
        self.stamp(15)
        for m in ('quad_perm:[1,0,3,2]', 'quad_perm:[2,3,0,1]', 'row_half_mirror'):
            for r in range(4):
                p(f'v_add_f32_dpp {vr(PB + r)}, {vr(PB + r)}, {vr(PB + r)} {m} row_mask:0xf bank_mask:0xf')
        for r in range(2):
            s, q = PB + 2 * r, PB + 2 * r + 1
            p(f'''v_mul_f32 {vr(s)}, {hx(1.0 / 896)}, {vr(s)}
v_mul_f32 {vr(t + r)}, {vr(s)}, {vr(s)}
v_sub_f32 {vr(t + r)}, {hx(1e-5)}, {vr(t + r)}
v_fmac_f32 {vr(t + r)}, {hx(1.0 / 896)}, {vr(q)}
v_max_f32 {vr(t + r)}, {hx(1e-5)}, {vr(t + r)}
v_rsq_f32 {vr(q)}, {vr(t + r)}''')
        for r in range(2):
            s, q = PB + 2 * r, PB + 2 * r + 1
            p(f'v_mul_f32 {vr(s)}, {vr(s)}, {vr(q)}')
            p(f'v_sub_f32 {vr(s)}, 0, {vr(s)}')
        RA, RB = G, G + 4
        for r in range(4):
            p(f'v_mov_b32 {vr(RA + r)}, {vr(PB + 2 * (r % 2) + 1)}')
            p(f'v_mov_b32 {vr(RB + r)}, {vr(PB + 2 * (r % 2))}')
        for r in range(4):
            bm = '0xc' if r < 2 else '0x3'
            p(f'v_mov_b32_dpp {vr(RA + r)}, {vr(PB + 2 * (r % 2) + 1)} row_ror:8 row_mask:0xf bank_mask:{bm}')
            p(f'v_mov_b32_dpp {vr(RB + r)}, {vr(PB + 2 * (r % 2))} row_ror:8 row_mask:0xf bank_mask:{bm}')
        p(f'''s_lshl_b32 s{sT0}, s{sJ}, 6
s_lshr_b32 s{sT3}, s{sRT}, 1
s_add_u32 s{sT0}, s{sT0}, s{sT3}
s_mul_i32 s{sT0}, s{sT0}, 7168
s_and_b32 s{sT3}, s{sW}, 1
s_lshl_b32 s{sT3}, s{sT3}, 9
s_add_u32 s{sT0}, s{sT0}, s{sT3}
s_add_u32 s{sT0}, s{sT0}, {ZF}
s_add_u32 s{sT3}, s{sT0}, 4096
v_and_b32 {vr(vA)}, 1, {vr(vQ)}
v_cmp_ne_u32 vcc, 0, {vr(vA)}
v_lshlrev_b32 {vr(vZ)}, 10, {vr(vA)}
v_lshrrev_b32 {vr(vA)}, 1, {vr(vQ)}
v_lshl_add_u32 {vr(vZ)}, {vr(vA)}, 8, {vr(vZ)}
v_lshl_add_u32 {vr(vZ)}, {vr(vC)}, 4, {vr(vZ)}
v_mov_b32 {vr(vZo)}, {OOR}
v_cndmask_b32 {vr(vZo)}, {vr(vZ)}, {vr(vZo)}, vcc''')
        D = RING
        for a in range(4):
            d = D + 4 * a
            for e in range(2):
                ct = 2 * a + e
                if ct < 7:
                    for h in range(2):
                        z = Z2 + 4 * ct + 2 * h
                        p(f'v_pk_fma_f32 {vr(z, 2)}, {vr(z, 2)}, {vr(RA + 2 * h, 2)}, {vr(RB + 2 * h, 2)}')
                    for h in range(2):
                        z = Z2 + 4 * ct + 2 * h
                        p(f'v_cvt_pk_bf16_f32 {vr(d + 2 * e + h)}, {vr(z)}, {vr(z + 1)}')
            p(f'v_permlane16_swap_b32 {vr(d)}, {vr(d + 2)}')
            p(f'v_permlane16_swap_b32 {vr(d + 1)}, {vr(d + 3)}')
            p(f'buffer_store_dwordx4 {vr(d, 4)}, {vr(vZ if a < 3 else vZo)}, {srd(sWS)}, s{sT0 if a < 2 else sT3} offen'
              f'{off((a % 2) * 2048)} sc1', tokw=['st5'])
        p(f'''s_lshl_b32 s{sT0}, s{sJ}, 2
s_add_u32 s{sT0}, s{sT0}, s{sRQ}
s_lshl_b32 s{sT0}, s{sT0}, 9
s_add_u32 s{sT0}, s{sT0}, {CNT + C_S5 * 128}
v_lshlrev_b32 {vr(vA)}, 7, {vr(vL)}
v_add_u32 {vr(vA)}, s{sT0}, {vr(vA)}''')
        p.need('st5')
        p('s_barrier')
        Ls = p.label('noarr')
        p(f's_cmp_lg_u32 s{sW}, 0\ns_cbranch_scc1 {Ls}')
        self.arrive(vA, 15)
        p(f'{Ls}:')
        self.stamp(16)
        self.emit_groups(self.dma_list(sT2, WUF + 48 * K, 84 * K, 20, 'wub'))
        p.add(self.gelu(list(range(Z1, Z1 + 28)), G))
        for k in range(14):
            p(f'v_cvt_pk_bf16_f32 {vr(vZ1 + k)}, {vr(Z1 + 2 * k)}, {vr(Z1 + 2 * k + 1)}')

    def phase5(self):
        p = self.p
        ZB, ACC = 16, 100
        vA, vW0, vY, vYo = 7, 8, 11, 12
        t = 14
        K = 1024
        acc = lambda a, ct: ACC + (a * 7 + ct) * 4
        zb = lambda ks, ct: ZB + ((ks % 3) * 7 + ct) * 4
        p(f'''s_lshl_b32 s{sT0}, s{sJ}, 2
s_add_u32 s{sT0}, s{sT0}, s{sW}
s_lshl_b32 s{sT0}, s{sT0}, 2
s_add_u32 s{sT0}, s{sT0}, s{sRQ}
s_lshl_b32 s{sT0}, s{sT0}, 7
s_add_u32 s{sT0}, s{sT0}, {CNT + C_S5 * 128}
v_mov_b32 {vr(vA)}, s{sT0}
s_lshl_b32 s{sT0}, s{sJ}, 2
s_add_u32 s{sT0}, s{sT0}, s{sW}
s_mul_i32 s{sT0}, s{sT0}, {16 * 7168}
s_add_u32 s{sA0}, s{sT0}, {ZF}
s_add_u32 s{sA1}, s{sA0}, 4096''')
        for a in range(3):
            p(f'''s_add_u32 s{sT0}, s{sW}, {1 + a}
s_and_b32 s{sT0}, s{sT0}, 3
s_mul_i32 s{sT0}, s{sT0}, {3 * 7168}
s_add_u32 s{sT0}, s{sT0}, {a * 7168}
v_add_u32 {vr(vW0 + a)}, s{sT0}, {vr(vL16)}''')
        self.stamp(17)
        self.poll(vA, 8)
        self.stamp(18)

        def zl(ks, ct):
            o = []
            if ct == 0 and ks:
                o += [f's_add_u32 s{sA0}, s{sA0}, 7168']
            if ct == 4 and ks:
                o += [f's_add_u32 s{sA1}, s{sA1}, 7168']
            o.append(f'buffer_load_dwordx4 {vr(zb(ks, ct), 4)}, {vr(vL16)}, {srd(sWS)}, s{sA0 if ct < 4 else sA1} offen'
                     f'{off((ct % 4) * K)} sc1')
            return o
        for ks in range(3):
            for ct in range(7):
                p.add(zl(ks, ct))
        mm = lambda a, ks, ct: mf16(acc(a, ct), vr(zb(ks, ct), 4), ar((a * 16 + ks) * 4, 4),
                                    None if ks == 0 else acc(a, ct))
        for ks in range(13):
            for ct in range(7):
                for a in range(4):
                    p(mm(a, ks, ct))
                p.add(zl(ks + 3, ct))
        for a in range(4):
            w = []
            if a:
                w = [(f'ds_write_b128 {vr(vW0 + a - 1)}, {vr(acc(a - 1, ct), 4)}{off(ct * K)}', ['pw'])
                     for ct in range(7)]
            n = 0
            for ks in (13, 14, 15):
                for ct in range(7):
                    p(mm(a, ks, ct))
                    n += 1
                    if w and n >= 2 and (n % 3) == 2:
                        p.add(w.pop(0))
            p.add(w)
        self.stamp(19)
        p(f's_mul_i32 s{sT0}, s{sW}, {3 * 7168}\nv_add_u32 {vr(vW0)}, s{sT0}, {vr(vL16)}')
        p(f'''s_mul_i32 s{sT0}, s{sRT}, 28672
s_mul_i32 s{sT1}, s{sJ}, {14 * 256}
s_add_u32 s{sT0}, s{sT0}, s{sT1}
s_add_u32 s{sT0}, s{sT0}, {YF}
v_and_b32 {vr(vA)}, 1, {vr(vQ)}
v_cmp_ne_u32 vcc, 0, {vr(vA)}
v_lshrrev_b32 {vr(vA)}, 1, {vr(vQ)}
v_lshlrev_b32 {vr(vYo)}, 8, {vr(vA)}
v_lshl_add_u32 {vr(vYo)}, {vr(vC)}, 4, {vr(vYo)}
v_mov_b32 {vr(vA)}, {OOR}
v_cndmask_b32 {vr(vYo)}, {vr(vYo)}, {vr(vA)}, vcc
v_lshlrev_b32 {vr(vBS)}, 16, {vr(vBS)}
v_mov_b32 {vr(t)}, {vr(vBS)}
v_mov_b32 {vr(t + 1)}, {vr(vBS)}''')
        p.need('pw', 'wua', 'wub')
        p('s_barrier')
        for a in range(3):
            for ct in range(7):
                p(f'ds_read_b128 {vr(ZB + (a * 7 + ct) * 4, 4)}, {vr(vW0)}{off((a * 7 + ct) * K)}', tokw=['pr'])
        G = acc(3, 0)
        for k in range(14):
            p(f'v_pk_add_f32 {vr(G + 2 * k, 2)}, {vr(G + 2 * k, 2)}, {vr(t, 2)}')
        for a in range(3):
            for k in range(14):
                p(f'v_pk_add_f32 {vr(G + 2 * k, 2)}, {vr(G + 2 * k, 2)}, {vr(ZB + a * 28 + 2 * k, 2)}')
        D = ACC
        for k in range(14):
            u = ZB + 2 * (k % 4)
            p(f'''v_lshlrev_b32 {vr(u)}, 16, {vr(vZ1 + k)}
v_and_b32 {vr(u + 1)}, 0xffff0000, {vr(vZ1 + k)}
v_pk_mul_f32 {vr(G + 2 * k, 2)}, {vr(G + 2 * k, 2)}, {vr(u, 2)}
v_cvt_pk_bf16_f32 {vr(D + k)}, {vr(G + 2 * k)}, {vr(G + 2 * k + 1)}''')
            if k % 4 == 3:
                a = k // 4
                p(f'buffer_store_dwordx4 {vr(D + 4 * a, 4)}, {vr(vL16)}, {srd(sWS)}, s{sT0} offen{off(1024 * a)} sc1',
                  tokw=['st6'])
        p(f'''v_mov_b32 {vr(D + 14)}, {vr(D + 12)}
v_mov_b32 {vr(D + 15)}, {vr(D + 13)}
v_permlane16_swap_b32 {vr(D + 12)}, {vr(D + 14)}
v_permlane16_swap_b32 {vr(D + 13)}, {vr(D + 15)}''')
        p(f'buffer_store_dwordx4 {vr(D + 12, 4)}, {vr(vYo)}, {srd(sWS)}, s{sT0} offen offset:3072 sc1', tokw=['st6'])
        p(f'''s_lshl_b32 s{sT0}, s{sRT}, 8
s_add_u32 s{sT0}, s{sT0}, {CNT + C_S6 * 128}
v_lshlrev_b32 {vr(vA)}, 7, {vr(vL)}
v_add_u32 {vr(vA)}, s{sT0}, {vr(vA)}''')
        p.need('st6')
        self.arrive(vA, 3)
        self.stamp(20)
        p.need('pr')
        p('s_barrier')

    def phase6(self):
        p = self.p
        YB, RING, ACC = 16, 128, 160
        vA, vO, vOo, t = 7, 8, 9, 10
        K = 1024

        def wuaddr(ks, ct):
            if ks < 12:
                return 106 * K + (ks * 4 + ct) * K
            if ks < 17:
                return 84 * K + ((ks - 12) * 4 + ct) * K
            return ((ks - 17) * 4 + ct) * K
        p(f's_mul_i32 s{sT2}, s{sJ}, {112 * K}')
        self.emit_groups(self.dma_list(sT2, WUF + 68 * K, 0, 44, 'wuc'))
        p(f'''s_lshl_b32 s{sT0}, s{sRT}, 1
s_add_u32 s{sT0}, s{sT0}, s{sCH}
s_lshl_b32 s{sT0}, s{sT0}, 7
s_add_u32 s{sT0}, s{sT0}, {CNT + C_S6 * 128}
v_mov_b32 {vr(vA)}, s{sT0}
s_mul_i32 s{sT0}, s{sRT}, 28672
s_add_u32 s{sT0}, s{sT0}, {YF}
s_mul_i32 s{sT1}, s{sRT}, {16 * 896}
s_mul_i32 s{sT3}, s{sJ}, 112
s_add_u32 s{sT1}, s{sT1}, s{sT3}
v_mul_u32_u24 {vr(vO)}, 896, {vr(vC)}
v_lshl_add_u32 {vr(vO)}, {vr(vQ)}, 4, {vr(vO)}
v_cmp_eq_u32 vcc, 3, {vr(vQ)}
v_mov_b32 {vr(vOo)}, {OOR}
v_cndmask_b32 {vr(vOo)}, {vr(vO)}, {vr(vOo)}, vcc''')
        self.poll(vA, 8)
        self.stamp(21)
        for ks in range(28):
            if ks and ks % 4 == 0:
                p(f's_add_u32 s{sT0}, s{sT0}, 4096')
            p(f'buffer_load_dwordx4 {vr(YB + 4 * ks, 4)}, {vr(vL16)}, {srd(sWS)}, s{sT0} offen{off((ks % 4) * K)} sc1')
        p.need('wuc')
        p('s_barrier')
        self.gemm_lds(28, 4, wuaddr, lambda ks: vr(YB + 4 * ks, 4), lambda ct: ACC + 4 * ct, RING, 8, True)
        self.stamp(22)
        for k in range(8):
            x = vXR + k
            a = ACC + 2 * k
            p(f'''v_lshlrev_b32 {vr(t)}, 16, {vr(x)}
v_and_b32 {vr(t + 1)}, 0xffff0000, {vr(x)}
v_pk_add_f32 {vr(a, 2)}, {vr(a, 2)}, {vr(t, 2)}
v_cvt_pk_bf16_f32 {vr(x)}, {vr(a)}, {vr(a + 1)}''')
            if k == 3:
                p(f'buffer_store_dwordx4 {vr(vXR, 4)}, {vr(vO)}, {srd(sOUT)}, s{sT1} offen')
        p(f'buffer_store_dwordx4 {vr(vXR + 4, 4)}, {vr(vOo)}, {srd(sOUT)}, s{sT1} offen offset:64')

    def build(self):
        p = self.p
        c = self.c
        self.truemax = None
        self.prologue()
        self.phase1()
        self.spare()
        self.attention()
        for n, ph in ((3, self.phase3), (4, self.phase4), (5, self.phase5), (6, self.phase6)):
            if c.stop >= n and c.stop > 1:
                ph()
        p('.Lexit:')
        if c.diag:
            p('s_waitcnt vmcnt(0)')
            self.stamp(23)
            p(f'''s_lshl_b32 s{sT0}, s2, 2
s_add_u32 s{sT0}, s{sT0}, s{sW}
s_lshl_b32 s{sT0}, s{sT0}, 8
s_add_u32 s{sT0}, s{sT0}, {STAMP}
v_lshlrev_b32 {vr(vT)}, 2, {vr(vL)}
buffer_store_dword {vr(vST)}, {vr(vT)}, {srd(sWS)}, s{sT0} offen''')
        p('s_endpgm')
        if self.truemax:
            self.truemax()
        p('.Lend:')
        p('s_endpgm')
        p.insert_waits()
        nn = p.insert_nops()
        hdr = open('sequential_preLN__softmax_full_mha__mixer_gmlp__prompt.s.ref').read()
        hdr = hdr[:hdr.index('; Override launch')]
        txt = hdr + '; @launch grid=(256,1,1) block=(256,1,1) lds=163840\n'
        txt += f'''.amdgcn_target "amdgcn-amd-amdhsa--gfx950"
.text
.globl {NAME}
.p2align 8
.type {NAME},@function
{NAME}:
'''
        txt += p.text()
        txt += f'''.section .rodata,"a"
.p2align 6
.amdhsa_kernel {NAME}
  .amdhsa_next_free_vgpr 512
  .amdhsa_next_free_sgpr 102
  .amdhsa_accum_offset 256
  .amdhsa_group_segment_fixed_size 0
  .amdhsa_kernarg_size 88
  .amdhsa_user_sgpr_count 2
  .amdhsa_user_sgpr_kernarg_segment_ptr 1
  .amdhsa_system_sgpr_workgroup_id_x 1
  .amdhsa_float_denorm_mode_32 3
  .amdhsa_ieee_mode 0
.end_amdhsa_kernel
'''
        return txt, nn


def generate(**kw):
    c = Cfg()
    for k, v in kw.items():
        assert hasattr(c, k), k
        setattr(c, k, v)
    return Gen(c).build()


if __name__ == '__main__':
    out = sys.argv[1]
    kw = {}
    for a in sys.argv[2:]:
        k, v = a.split('=')
        kw[k] = eval(v)
    txt, nn = generate(**kw)
    open(out, 'w').write(txt)
    print('written', out, len(txt), 'bytes; nop states inserted:', nn)
```

```python
import sys, math, struct
sys.path.insert(0, 'work')
from asmlib import *

NAME = 'sequential_preLN__softmax_full_mha__mixer_gmlp__prompt_kernel'


class Cfg:
    diag = False
    stop = 99
    force_fb = False
    touch = False
    spf = False
    fine = 0
    rot1 = True
    rotkv = True
    rot5 = True
    rot36 = True


def f2u(x):
    return struct.unpack('<I', struct.pack('<f', x))[0]


def hx(x):
    return hex(f2u(x))


CNT = 0x000000
ST = 0x020000
QF = 0x100000
KV = 0x300000
OF = 0x700000
HF = 0x900000
ZF = 0xB00000
YF = 0xF00000
WOF = 0x1300000
WIF = 0x1400000
WUF = 0x1600000
STAMP = 0x1700000
WS_SIZE = 0x1800000
OOR = 0x7F000000
C_S1, C_S2, C_S3, C_S6, C_S5, C_RDY, C_END = 0, 224, 352, 608, 864, 992, 1024

sX, sWQ, sWS, sSP, sBS, sOUT, sDBG, sWO, sWI, sWU = 8, 12, 16, 20, 24, 28, 32, 36, 40, 44
sW, sI, sJ, sQB, sHD, sXC, sIDX, sRB, sCB, sRQ, sCH = 48, 49, 50, 51, 52, 53, 54, 55, 56, 57, 58
sTO, sFB, sRT = 59, 60, 61
sT0, sT1, sT2, sT3, sT4, sT5 = 62, 63, 64, 65, 66, 67
sM0, sM1, sM2 = 68, 70, 72
sA0, sA1, sA2, sA3 = 74, 75, 76, 77
sKV, sG, sL = 78, 79, 80
sK1, sK2 = 82, 84
sPC = 86
sRB4 = 4
sRA, sRAd, sRBs, sRBd, sRBj = 94, 95, 3, 81, 101
sTM = 96

vL, vL16, vC, vQ, vA1, vA2 = 0, 1, 2, 3, 4, 5
vT = 6
vXR = 216
vBS = 224
vZ1 = 226
vONE = 225
vST = 255


def srd(n):
    return f's[{n}:{n + 3}]'


def vr(b, n=1):
    return f'v{b}' if n == 1 else f'v[{b}:{b + n - 1}]'


def ar(b, n=1):
    return f'a{b}' if n == 1 else f'a[{b}:{b + n - 1}]'


def sp(n):
    return f's[{n}:{n + 1}]'


def mf16(d, a, b, c):
    cs = '0' if c is None else vr(c, 4)
    return f'v_mfma_f32_16x16x32_bf16 {vr(d, 4)}, {a}, {b}, {cs}'


def mf32(d, a, b, c):
    cs = '0' if c is None else vr(c, 16)
    return f'v_mfma_f32_32x32x16_bf16 {vr(d, 16)}, {vr(a, 4)}, {vr(b, 4)}, {cs}'


def off(o):
    return f' offset:{o}' if o else ''


def lds_rd(dst, byte):
    base = (vL16, vA1, vA2)[byte >> 16]
    return f'ds_read_b128 {vr(dst, 4)}, {vr(base)}{off(byte & 0xffff)}'


class Gen:
    def __init__(self, cfg):
        self.c = cfg
        self.p = Prog()
        self.nstamp = 0

    def stamp(self, n):
        if self.c.diag:
            self.p(f's_memrealtime {sp(sTM)}\ns_memtime {sp(sTM + 2)}\ns_waitcnt lgkmcnt(0)\n'
                   f'v_writelane_b32 {vr(vST)}, s{sTM}, {n}\nv_writelane_b32 {vr(vST)}, s{sTM + 2}, {32 + n}')

    def finish(self):
        self.p('s_branch .Lexit')

    def poll(self, vaddr, expect, srdn=sWS, vtmp=vT):
        p = self.p
        L = p.label('poll')
        D = p.label('got')
        p(f'{L}:')
        p(f'buffer_load_dword {vr(vtmp)}, {vr(vaddr)}, {srd(srdn)}, 0 offen sc1')
        p(f'v_cmp_gt_u32 vcc, {expect}, {vr(vtmp)}')
        p(f's_cbranch_vccz {D}')
        p(f's_sub_u32 s{sTO}, s{sTO}, 1\ns_cmp_lg_u32 s{sTO}, 0\ns_cbranch_scc1 {L}')
        p('s_branch .Lexit')
        p(f'{D}:')

    def check(self, vval, vaddr, expect, srdn=sWS):
        p = self.p
        D = p.label('ok')
        p(f'v_cmp_gt_u32 vcc, {expect}, {vr(vval)}')
        p(f's_cbranch_vccz {D}')
        self.poll(vaddr, expect, srdn, vval)
        p(f'{D}:')

    def arrive(self, vaddr, mask):
        p = self.p
        p(f's_mov_b64 exec, {mask}')
        p(f'buffer_atomic_add {vr(vONE)}, {vr(vaddr)}, {srd(sWS)}, 0 offen sc1')
        p('s_mov_b64 exec, -1')

    def dma_list(self, gsreg, gofs, ldsofs, nfrag, tok):
        k = (nfrag + 3) // 4
        out = []
        pre = [f's_mul_i32 s{sT5}, s{sW}, {k * 1024}',
               f's_min_u32 s{sT5}, s{sT5}, {(nfrag - k) * 1024}',
               f's_add_u32 s{sG}, s{gsreg}, s{sT5}',
               f's_add_u32 s{sL}, s{sT5}, {ldsofs}',
               f's_add_u32 s{sG}, s{sG}, {gofs}']
        out.append(pre)
        for n in range(k):
            g = []
            if n % 4 == 0:
                if n:
                    g += [f's_add_u32 s{sG}, s{sG}, 4096', f's_add_u32 s{sL}, s{sL}, 4096']
                g.append(f's_mov_b32 m0, s{sL}')
                out.append(g)
            out.append([(f'buffer_load_dwordx4 {vr(vL16)}, {srd(sWS)}, s{sG} offen{off((n % 4) * 1024)} sc1 lds',
                         [tok])])
        return out

    def dma_wu(self, n0, cnt, ldsofs, tok):
        k = (cnt + 3) // 4
        out = [[f's_mul_i32 s{sT5}, s{sW}, {k}', f's_min_u32 s{sT5}, s{sT5}, {cnt - k}'],
               [f's_lshl_b32 s{sL}, s{sT5}, 12', f's_add_u32 s{sL}, s{sL}, {ldsofs}'],
               [f's_and_b32 s{sG}, s{sJ}, 3' if self.c.rot36 else f's_mov_b32 s{sG}, 0', f's_mul_i32 s{sG}, s{sG}, 7'],
               [f's_add_u32 s{sT5}, s{sT5}, s{sG}', f's_add_u32 s{sT5}, s{sT5}, {n0}']]
        for n in range(k):
            g = []
            if n:
                g += [f's_add_u32 s{sT5}, s{sT5}, 1', f's_add_u32 s{sL}, s{sL}, 4096']
            g += [f's_sub_u32 s{sG}, s{sT5}, 28', f's_cmp_ge_u32 s{sT5}, 28', f's_cselect_b32 s{sG}, s{sG}, s{sT5}']
            out.append(g)
            out.append([f's_lshl_b32 s{sG}, s{sG}, 12', f's_add_u32 s{sG}, s{sG}, s{sT2}', f's_mov_b32 m0, s{sL}'])
            for e in range(4):
                out.append([(f'buffer_load_dwordx4 {vr(vL16)}, {srd(sWS)}, s{sG} offen{off(e * 1024)} sc1 lds', [tok])])
        return out

    def emit_groups(self, groups):
        for g in groups:
            self.p.add(list(g))

    def prologue(self):
        p = self.p
        p(f's_getpc_b64 {sp(sPC)}')
        p('.Lpc0:')
        p('s_cmp_ge_u32 s2, 256\ns_cbranch_scc1 .Lend')
        for reg, slot in ((sX, 0), (sWQ, 1), (sWS, 10), (sWO, 2), (sWI, 4), (sSP, 5), (sBS, 6), (sWU, 7), (sOUT, 8),
                          (sDBG, 9)):
            p(f's_load_dwordx2 {sp(reg)}, s[0:1], {slot * 8}')
        p(f'v_lshrrev_b32 {vr(vT)}, 6, v0')
        p(f'v_and_b32 {vr(vL)}, 63, v0')
        p(f'v_readfirstlane_b32 s{sW}, {vr(vT)}')
        for reg, size in ((sX, 1835008), (sWQ, 1204224), (sWS, WS_SIZE), (sWO, 401408), (sWI, 1605632),
                          (sSP, 8388608 + 4096), (sBS, 4096), (sWU, 802816), (sOUT, 1835008), (sDBG, 256)):
            p(f's_mov_b32 s{reg + 2}, {size}\ns_mov_b32 s{reg + 3}, 0x20000')
        p(f'''v_lshlrev_b32 {vr(vL16)}, 4, {vr(vL)}
v_and_b32 {vr(vC)}, 15, {vr(vL)}
v_lshrrev_b32 {vr(vQ)}, 4, {vr(vL)}
v_add_u32 {vr(vA1)}, 0x10000, {vr(vL16)}
v_add_u32 {vr(vA2)}, 0x20000, {vr(vL16)}
v_mov_b32 {vr(vONE)}, 1
s_and_b32 s{sXC}, s2, 7
s_lshr_b32 s{sIDX}, s2, 3
s_lshr_b32 s{sRQ}, s{sXC}, 1
s_and_b32 s{sCH}, s{sXC}, 1
s_mov_b32 s{sTO}, 200000
s_mov_b32 s{sFB}, 0''')
        p(f'''s_lshr_b32 s{sT0}, s{sIDX}, 2
s_lshl_b32 s{sI}, s{sRQ}, 3
s_add_u32 s{sI}, s{sI}, s{sT0}
s_and_b32 s{sT0}, s{sIDX}, 3
s_lshl_b32 s{sJ}, s{sCH}, 2
s_add_u32 s{sJ}, s{sJ}, s{sT0}
s_lshl_b32 s{sRT}, s{sI}, 2
s_add_u32 s{sRT}, s{sRT}, s{sW}''')
        p(f'''s_and_b32 s{sT0}, s{sIDX}, 1
s_lshl_b32 s{sHD}, s{sXC}, 1
s_add_u32 s{sHD}, s{sHD}, s{sT0}
s_lshr_b32 s{sQB}, s{sIDX}, 1''')
        p(f'''s_mul_i32 s{sT0}, s{sIDX}, 37
s_lshr_b32 s{sT0}, s{sT0}, 8
s_mul_i32 s{sT1}, s{sT0}, 7
s_sub_u32 s{sCB}, s{sIDX}, s{sT1}
s_lshl_b32 s{sRB}, s{sXC}, 2
s_add_u32 s{sRB}, s{sRB}, s{sT0}''')
        if self.c.diag:
            p(f'v_mov_b32 {vr(vST)}, 0')
        p('s_waitcnt lgkmcnt(0)')
        p(f's_sub_u32 s{sSP}, s{sSP}, 4096\ns_subb_u32 s{sSP + 1}, s{sSP + 1}, 0')
        self.stamp(0)
        if self.c.touch:
            p(f'''s_lshl_b32 s{sT0}, s{sIDX}, 2
s_add_u32 s{sT0}, s{sT0}, s{sW}
s_mul_i32 s{sT1}, s{sT0}, {74 * 128}
s_mul_i32 s{sT2}, s{sT0}, {14 * 128}
s_mul_i32 s{sT3}, s{sXC}, {256 * 896}
s_add_u32 s{sT2}, s{sT2}, s{sT3}
s_add_u32 s{sT3}, s{sT1}, 8192
v_lshlrev_b32 {vr(vT)}, 7, {vr(vL)}
s_mov_b64 exec, 0x3fff
buffer_load_dword v252, {vr(vT)}, {srd(sX)}, s{sT2} offen
s_mov_b64 exec, -1
buffer_load_dword v253, {vr(vT)}, {srd(sWQ)}, s{sT1} offen
s_mov_b64 exec, 0x3ff
buffer_load_dword v254, {vr(vT)}, {srd(sWQ)}, s{sT3} offen
s_mov_b64 exec, -1''')
        p(f's_cmp_ge_u32 s{sIDX}, 28\ns_cbranch_scc1 .Lspare')

    RST = 128 * 1024
    vRI, vRB, vRT0, vRT1, vRD2, vRD = 240, 241, 242, 243, 244, 196

    def r_setup(self):
        p = self.p
        t = 6
        vI, vB, R0, R1, D2 = self.vRI, self.vRB, self.vRT0, self.vRT1, self.vRD2
        p(f"""s_cmp_ge_u32 s{sRT}, 56
s_cselect_b32 s{sT0}, 1, 0
s_mul_i32 s{sT1}, s{sT0}, 56
s_sub_u32 s{sT1}, s{sRT}, s{sT1}
s_lshr_b32 s{sT1}, s{sT1}, 2
s_and_b32 s{sT2}, s{sRT}, 3
s_mul_i32 s{sRA}, s{sT1}, {32 * 3584}
s_mul_i32 s{sT3}, s{sJ}, 224
s_add_u32 s{sRA}, s{sRA}, s{sT3}
s_lshl_b32 s{sT3}, s{sT2}, 6
s_add_u32 s{sRA}, s{sRA}, s{sT3}
s_xor_b32 s{sT3}, s{sT0}, 1
s_mul_i32 s{sT3}, s{sT3}, 1792
s_add_u32 s{sRA}, s{sRA}, s{sT3}
s_lshl_b32 s{sRAd}, s{sJ}, 1
s_add_u32 s{sRAd}, s{sRAd}, s{sT0}
s_mul_i32 s{sRAd}, s{sRAd}, 105
s_mul_i32 s{sT3}, s{sT1}, 7
s_add_u32 s{sRAd}, s{sRAd}, s{sT3}
s_lshl_b32 s{sT3}, s{sT2}, 1
s_add_u32 s{sRAd}, s{sRAd}, s{sT3}
s_lshl_b32 s{sRAd}, s{sRAd}, 10
s_add_u32 s{sRAd}, s{sRAd}, {WIF}
s_cmp_ge_u32 s{sRT}, 112
s_cselect_b32 s{sRA}, {OOR}, s{sRA}
s_cselect_b32 s{sRAd}, {OOR}, s{sRAd}
s_cmp_eq_u32 s{sT2}, 3
s_cselect_b64 vcc, -1, 0
s_lshl_b32 s{sT4}, s{sW}, 12
s_add_u32 s{sT4}, s{sT4}, {self.RST}
v_and_b32 {vr(t + 1)}, 3, {vr(vC)}
v_add_u32 {vr(R0)}, s{sT4}, {vr(vL16)}
v_and_b32 {vr(t)}, 60, {vr(vL)}
v_lshrrev_b32 {vr(R1)}, 1, {vr(t + 1)}
v_add_u32 {vr(t)}, {vr(t)}, {vr(R1)}
v_lshlrev_b32 {vr(t)}, 4, {vr(t)}
v_and_b32 {vr(R1)}, 1, {vr(t + 1)}
v_lshl_add_u32 {vr(t)}, {vr(R1)}, 3, {vr(t)}
v_add_u32 {vr(t)}, s{sT4}, {vr(t)}
v_mov_b32 {vr(D2)}, {OOR}
v_cndmask_b32 {vr(R1)}, {vr(R0)}, {vr(t)}, vcc
v_cndmask_b32 {vr(D2)}, {vr(vL16)}, {vr(D2)}, vcc
v_lshrrev_b32 {vr(t + 2)}, 2, {vr(vC)}
v_lshl_add_u32 {vr(t)}, {vr(vQ)}, 3, {vr(t + 2)}
v_mul_u32_u24 {vr(vI)}, 3584, {vr(t)}
v_lshl_add_u32 {vr(vI)}, {vr(t + 1)}, 4, {vr(vI)}
v_lshrrev_b32 {vr(vB)}, 1, {vr(vQ)}
v_lshlrev_b32 {vr(vB)}, 4, {vr(vB)}
v_and_b32 {vr(t + 3)}, 1, {vr(vQ)}
v_lshl_add_u32 {vr(vB)}, {vr(t + 3)}, 2, {vr(vB)}
v_add_u32 {vr(vB)}, {vr(vB)}, {vr(t + 2)}""")
        p(f"""s_mov_b32 s{sRBj}, {4 * 896}
s_mov_b32 s{sT1}, {32 * 896}
s_mov_b32 s{sT3}, {WUF}
s_cmp_ge_u32 s{sRT}, 96
s_cselect_b64 vcc, -1, 0
s_cselect_b64 {sp(sRB4)}, {sp(sWO)}, {sp(sWU)}
s_cselect_b32 s{sRB4 + 2}, s{sWO + 2}, s{sWU + 2}
s_cselect_b32 s{sRBj}, {8 * 896}, s{sRBj}
s_cselect_b32 s{sT0}, 96, 0
s_cselect_b32 s{sT1}, {28 * 896}, s{sT1}
s_cselect_b32 s{sT2}, 16, 28
s_cselect_b32 s{sT3}, {WOF}, s{sT3}
s_mov_b32 s{sRB4 + 3}, 0x20000
s_sub_u32 s{sT0}, s{sRT}, s{sT0}
s_lshr_b32 s{sT0}, s{sT0}, 1
s_mul_i32 s{sRBs}, s{sT0}, s{sT1}
s_mul_i32 s{sT1}, s{sJ}, 112
s_add_u32 s{sRBs}, s{sRBs}, s{sT1}
s_and_b32 s{sT1}, s{sRT}, 1
s_lshl_b32 s{sT4}, s{sT1}, 6
s_add_u32 s{sRBs}, s{sRBs}, s{sT4}
s_mul_i32 s{sRBd}, s{sJ}, s{sT2}
s_add_u32 s{sRBd}, s{sRBd}, s{sT0}
s_lshl_b32 s{sRBd}, s{sRBd}, 1
s_add_u32 s{sRBd}, s{sRBd}, s{sT1}
s_lshl_b32 s{sRBd}, s{sRBd}, 11
s_add_u32 s{sRBd}, s{sRBd}, s{sT3}
s_sub_u32 s{sT0}, s{sRT}, 56
s_cmp_lt_u32 s{sT0}, 40
s_cselect_b32 s{sRBs}, {OOR}, s{sRBs}
s_cselect_b32 s{sRBd}, {OOR}, s{sRBd}
v_cndmask_b32 {vr(vB)}, {vr(t)}, {vr(vB)}, vcc
v_mul_u32_u24 {vr(vB)}, 896, {vr(vB)}
v_lshl_add_u32 {vr(vB)}, {vr(t + 1)}, 4, {vr(vB)}""")

    def r_issue(self):
        o = [[f's_lshl_b32 s{sL}, s{sW}, 12', f's_add_u32 m0, s{sL}, {self.RST}'],
             [(f'buffer_load_dwordx4 {vr(self.vRI)}, {srd(sWI)}, s{sRA} offen lds', ['rl'])],
             [f's_add_u32 s{sG}, s{sRA}, {4 * 3584 - 1024}'],
             [(f'buffer_load_dwordx4 {vr(self.vRI)}, {srd(sWI)}, s{sG} offen offset:1024 lds', ['rl'])],
             [f's_add_u32 m0, s{sL}, {self.RST + 2048}'],
             [(f'buffer_load_dwordx4 {vr(self.vRB)}, {srd(sRB4)}, s{sRBs} offen lds', ['rl'])],
             [f's_add_u32 s{sG}, s{sRBs}, s{sRBj}', f's_sub_u32 s{sG}, s{sG}, 1024'],
             [(f'buffer_load_dwordx4 {vr(self.vRB)}, {srd(sRB4)}, s{sG} offen offset:1024 lds', ['rl'])]]
        return o

    def r_finish(self):
        p = self.p
        p.need('rl')
        for n in range(2):
            d = self.vRD + 8 * n
            for e in range(2):
                for jj in range(2):
                    base = self.vRT1 if (n == 0 and e == 0) else self.vRT0
                    p(f'ds_read_b64_tr_b16 {vr(d + 4 * e + 2 * jj, 2)}, {vr(base)}{off(n * 2048 + jj * 1024 + 8 * e)}')
        for n in range(2):
            d = self.vRD + 8 * n
            sd = (sRAd, sRBd)[n]
            p(f'buffer_store_dwordx4 {vr(d, 4)}, {vr(vL16)}, {srd(sWS)}, s{sd} offen sc1', tokw=['rst'])
            p(f'buffer_store_dwordx4 {vr(d + 4, 4)}, {vr(self.vRD2 if n == 0 else vL16)}, {srd(sWS)}, s{sd} offen'
              f' offset:1024 sc1', tokw=['rst'])

    def sentinel_init(self):
        p = self.p
        a, d = vT, vT + 2
        p(f'''s_lshl_b32 s{sT0}, s{sRT}, 3
s_add_u32 s{sT0}, s{sT0}, s{sJ}
s_lshl_b32 s{sT0}, s{sT0}, 7
s_add_u32 s{sT0}, s{sT0}, {ST}
v_mov_b32 {vr(d)}, -1
v_mov_b32 {vr(d + 1)}, -1
v_mov_b32 {vr(d + 2)}, -1
v_mov_b32 {vr(d + 3)}, -1
s_mov_b64 exec, 0xff''')
        p(f'buffer_store_dwordx4 {vr(d, 4)}, {vr(vL16)}, {srd(sWS)}, s{sT0} offen sc1', tokw=['sent'])
        p('s_mov_b64 exec, -1')

    def ln_finish(self, sumreg, sqreg, va, t, vperm):
        return [
            f'v_cndmask_b32 {vr(t)}, {vr(sqreg)}, {vr(sqreg + 1)}, {sp(sM0)}',
            f'v_cndmask_b32 {vr(t + 1)}, {vr(sqreg + 2)}, {vr(sqreg + 3)}, {sp(sM0)}',
            f'v_cndmask_b32 {vr(t)}, {vr(t)}, {vr(t + 1)}, {sp(sM1)}',
            f'ds_bpermute_b32 {vr(t)}, {vr(vperm)}, {vr(t)}',
            f'v_mul_f32 {vr(va + 1)}, {hx(-1.0 / 448)}, {vr(sumreg)}',
            f'v_mul_f32 {vr(t + 1)}, {vr(va + 1)}, {vr(va + 1)}',
            f'v_sub_f32 {vr(t + 1)}, {hx(1e-5)}, {vr(t + 1)}',
            f'v_fmac_f32 {vr(t + 1)}, {hx(1.0 / 448)}, {vr(t)}',
            f'v_max_f32 {vr(t + 1)}, {hx(1e-5)}, {vr(t + 1)}',
            f'v_rsq_f32 {vr(va)}, {vr(t + 1)}',
        ]

    def ln_masks(self, vperm):
        p = self.p
        p(f"""v_and_b32 {vr(vT)}, 1, {vr(vC)}
v_cmp_ne_u32 {sp(sM0)}, 0, {vr(vT)}
v_and_b32 {vr(vT)}, 2, {vr(vC)}
v_cmp_ne_u32 {sp(sM1)}, 0, {vr(vT)}
v_lshrrev_b32 {vr(vT)}, 2, {vr(vC)}
v_lshl_add_u32 {vr(vT)}, {vr(vT)}, 4, {vr(vC)}
v_lshlrev_b32 {vr(vperm)}, 2, {vr(vT)}""")

    def phase1(self):
        p = self.p
        ACC, CS, SA, XF, WF, ONES = 16, 64, 76, 84, 124, 148
        acc = lambda sec, tt: ACC + (sec * 4 + tt) * 4
        xf = lambda b, tt: XF + (b * 5 + tt) * 4
        wf = lambda b, sec: WF + (b * 3 + sec) * 4
        vX0, vX1, vW0, vW1 = 152, 153, 154, 155
        rX0, rX1, rO0, rO1, rW = 156, 157, 158, 159, 160
        vPerm, vFl, t = 161, 162, 6
        CH = 32768
        STS = 156 * 1024
        p(f"""v_lshrrev_b32 {vr(t)}, 3, {vr(vL)}
v_and_b32 {vr(t + 1)}, 7, {vr(vL)}
v_xor_b32 {vr(t + 2)}, {vr(t + 1)}, {vr(vQ)}
v_mul_u32_u24 {vr(vX0)}, 896, {vr(t)}
v_xor_b32 {vr(t + 3)}, 4, {vr(t + 2)}
v_lshl_add_u32 {vr(vX1)}, {vr(t + 3)}, 4, {vr(vX0)}
v_lshl_add_u32 {vr(vX0)}, {vr(t + 2)}, 4, {vr(vX0)}
v_add_u32 {vr(vX1)}, {8 * 896 - 1024}, {vr(vX1)}
v_and_b32 {vr(t + 2)}, 1, {vr(vQ)}
v_lshlrev_b32 {vr(t + 2)}, 1, {vr(t + 2)}
v_xor_b32 {vr(t + 2)}, {vr(t + 2)}, {vr(t + 1)}
v_mul_u32_u24 {vr(vW0)}, 2688, {vr(t)}
v_xor_b32 {vr(t + 3)}, 4, {vr(t + 2)}
v_lshl_add_u32 {vr(vW1)}, {vr(t + 3)}, 4, {vr(vW0)}
v_lshl_add_u32 {vr(vW0)}, {vr(t + 2)}, 4, {vr(vW0)}
v_add_u32 {vr(vW1)}, {8 * 2688 - 1024}, {vr(vW1)}
s_lshl_b32 s{sT0}, s{sRB}, 2
s_add_u32 s{sT0}, s{sT0}, s{sW}
s_mul_i32 s{sA0}, s{sT0}, {16 * 896}
s_mul_i32 s{sA1}, s{sW}, {16 * 2688}
s_lshl_b32 s{sT0}, s{sCB}, 7
s_add_u32 s{sA1}, s{sA1}, s{sT0}
s_lshl_b32 s{sA2}, s{sW}, 11""")
        if self.c.rot1:
            p(f"""s_and_b32 s{sA3}, s{sRB}, 3
s_lshl_b32 s{sA3}, s{sA3}, 1
s_add_u32 s{sA3}, s{sA3}, s{sCB}
s_sub_u32 s{sT0}, s{sA3}, 7
s_cmp_ge_u32 s{sA3}, 7
s_cselect_b32 s{sA3}, s{sT0}, s{sA3}""")
        else:
            p(f's_mov_b32 s{sA3}, 0')

        def chunk(m):
            base = (m % 4) * CH
            o = []
            if m:
                o.append([f's_add_u32 s{sA3}, s{sA3}, 1', f's_cmp_eq_u32 s{sA3}, 7', f's_cselect_b32 s{sA3}, 0, s{sA3}'])
            o += [[f's_add_u32 m0, s{sA2}, {base}', f's_lshl_b32 s{sT4}, s{sA3}, 7', f's_add_u32 s{sT4}, s{sT4}, s{sA0}'],
                 [(f'buffer_load_dwordx4 {vr(vX0)}, {srd(sX)}, s{sT4} offen lds', [f'c{m}'])],
                 [(f'buffer_load_dwordx4 {vr(vX1)}, {srd(sX)}, s{sT4} offen offset:1024 lds', [f'c{m}'])]]
            for sec in range(3):
                o += [[f's_add_u32 m0, s{sA2}, {base + 8192 * (sec + 1)}'] +
                      ([f's_mul_i32 s{sT4}, s{sA3}, {64 * 2688}', f's_add_u32 s{sT4}, s{sT4}, s{sA1}'] if sec == 0 else
                       [f's_add_u32 s{sT4}, s{sT4}, 896']),
                      [(f'buffer_load_dwordx4 {vr(vW0)}, {srd(sWQ)}, s{sT4} offen lds', [f'c{m}'])],
                      [(f'buffer_load_dwordx4 {vr(vW1)}, {srd(sWQ)}, s{sT4} offen offset:1024 lds', [f'c{m}'])]]
            return o
        self.emit_groups(chunk(0))
        self.emit_groups(chunk(1))
        p(f"""v_lshrrev_b32 {vr(t)}, 1, {vr(vC)}
v_xor_b32 {vr(t)}, {vr(t)}, {vr(vQ)}
v_lshlrev_b32 {vr(t)}, 4, {vr(t)}
v_lshl_add_u32 {vr(rX0)}, {vr(vC)}, 7, {vr(t)}
v_xor_b32 {vr(rX1)}, 64, {vr(rX0)}
v_add_u32 {vr(rO0)}, s{sA2}, {vr(rX0)}
v_add_u32 {vr(rO1)}, s{sA2}, {vr(rX1)}
v_lshrrev_b32 {vr(t)}, 2, {vr(vC)}
v_lshl_add_u32 {vr(rW)}, {vr(vQ)}, 3, {vr(t)}
v_lshlrev_b32 {vr(rW)}, 7, {vr(rW)}
v_lshrrev_b32 {vr(t)}, 3, {vr(vC)}
v_and_b32 {vr(t + 1)}, 1, {vr(vQ)}
v_lshl_add_u32 {vr(t)}, {vr(t + 1)}, 1, {vr(t)}
v_xor_b32 {vr(t)}, s{sW}, {vr(t)}
v_lshl_add_u32 {vr(rW)}, {vr(t)}, 5, {vr(rW)}
v_and_b32 {vr(t)}, 3, {vr(vC)}
v_lshl_add_u32 {vr(rW)}, {vr(t)}, 3, {vr(rW)}""")
        for r in range(4):
            p(f'v_mov_b32 {vr(ONES + r)}, 0x3f803f80')
        self.ln_masks(vPerm)
        vP, vH, vS, vQa, vKa, vQb, vKb, vVa, vVc, vAr = 164, 165, 166, 167, 168, 169, 170, 171, 172, 173
        vVd, vK0, vK1, vSt, vSv = 176, 174, 175, 180, 181
        p(f"""s_lshl_b32 s{sT0}, s{sCB}, 2
s_add_u32 s{sKV}, s{sT0}, s{sW}
s_lshl_b32 s{sT0}, s{sKV}, 1
v_lshrrev_b32 {vr(vP)}, 1, {vr(vQ)}
v_add_u32 {vr(vP)}, s{sT0}, {vr(vP)}
v_mul_u32_u24 {vr(vH)}, 37, {vr(vP)}
v_lshrrev_b32 {vr(vH)}, 8, {vr(vH)}
v_mul_u32_u24 {vr(vS)}, 7, {vr(vH)}
v_sub_u32 {vr(vP)}, {vr(vP)}, {vr(vS)}
v_cmp_eq_u32 {sp(sM2)}, 3, {vr(vP)}
v_lshrrev_b32 {vr(vS)}, 2, {vr(vP)}
v_lshl_add_u32 {vr(vH)}, {vr(vH)}, 1, {vr(vS)}
v_and_b32 {vr(vS)}, 3, {vr(vP)}
v_lshlrev_b32 {vr(vS)}, 9, {vr(vS)}
v_lshl_add_u32 {vr(vQa)}, {vr(vH)}, 17, {vr(vS)}
v_lshl_add_u32 {vr(vKa)}, {vr(vH)}, 18, {vr(vS)}
v_and_b32 {vr(vS)}, 31, {vr(vL)}
v_lshl_add_u32 {vr(vQa)}, {vr(vS)}, 4, {vr(vQa)}
v_and_b32 {vr(vS)}, 8, {vr(vC)}
v_add_u32 {vr(vS)}, {vr(vS)}, {vr(vC)}
v_and_b32 {vr(vP)}, 1, {vr(vQ)}
v_lshl_add_u32 {vr(vS)}, {vr(vP)}, 3, {vr(vS)}
v_lshl_add_u32 {vr(vKa)}, {vr(vS)}, 4, {vr(vKa)}
v_mov_b32 {vr(vS)}, {OOR}
v_add_u32 {vr(vQb)}, 0x20000, {vr(vQa)}
v_add_u32 {vr(vKb)}, 0x40000, {vr(vKa)}
v_cndmask_b32 {vr(vQb)}, {vr(vS)}, {vr(vQb)}, {sp(sM2)}
v_cndmask_b32 {vr(vKb)}, {vr(vS)}, {vr(vKb)}, {sp(sM2)}
s_lshl_b32 s{sT0}, s{sKV}, 4
v_add_u32 {vr(vP)}, s{sT0}, {vr(vC)}
v_mul_u32_u24 {vr(vH)}, 2341, {vr(vP)}
v_lshrrev_b32 {vr(vH)}, 16, {vr(vH)}
v_mul_u32_u24 {vr(vVa)}, 28, {vr(vH)}
v_sub_u32 {vr(vP)}, {vr(vP)}, {vr(vVa)}
v_lshlrev_b32 {vr(vVa)}, 18, {vr(vH)}
v_lshl_add_u32 {vr(vVa)}, {vr(vQ)}, 9, {vr(vVa)}
v_lshl_add_u32 {vr(vVa)}, {vr(vP)}, 4, {vr(vVa)}
v_cmp_le_u32 vcc, 24, {vr(vP)}
v_add_u32 {vr(vVc)}, 64, {vr(vVa)}
v_cndmask_b32 {vr(vVc)}, {vr(vS)}, {vr(vVc)}, vcc
v_cmp_eq_u32 vcc, 24, {vr(vP)}
v_mov_b32 {vr(vK0)}, 0x3f803f80
v_mov_b32 {vr(vK1)}, 0x3f80
v_cndmask_b32 {vr(vVd)}, 0, {vr(vK0)}, vcc
v_mov_b32 {vr(vVd + 1)}, {vr(vVd)}
v_mov_b32 {vr(vVd + 2)}, {vr(vVd)}
v_mov_b32 {vr(vVd + 3)}, {vr(vVd)}
s_lshl_b32 s{sT0}, s{sKV}, 2
s_lshr_b32 s{sT1}, s{sRB}, 3
s_add_u32 s{sT0}, s{sT0}, s{sT1}
s_lshl_b32 s{sT0}, s{sT0}, 8
v_lshlrev_b32 {vr(vAr)}, 7, {vr(vL)}
v_add_u32 {vr(vAr)}, s{sT0}, {vr(vAr)}
s_lshl_b32 s{sT0}, s{sW}, 7
s_add_u32 s{sT0}, s{sT0}, {STS}
v_lshlrev_b32 {vr(vSt)}, 3, {vr(vC)}
v_add_u32 {vr(vH)}, s{sT0}, {vr(vSt)}
v_add_u32 {vr(vSt)}, {STS}, {vr(vSt)}
v_lshlrev_b32 {vr(vSv)}, 5, {vr(vQ)}
v_add_u32 {vr(vSv)}, {STS}, {vr(vSv)}""")
        vSw = vH
        self.r_setup()

        def rds(ks):
            m, e, b = ks // 2, ks % 2, ks % 2
            base = (m % 2) * CH
            o = []
            for sec in (1, 2, 0):
                for jj in range(2):
                    o.append(f'ds_read_b64_tr_b16 {vr(wf(b, sec) + 2 * jj, 2)}, {vr(rW)}'
                             f'{off(base + 8192 * (sec + 1) + e * 4096 + jj * 512)}')
                if sec == 1:
                    for tt in range(4):
                        o.append(f'ds_read_b128 {vr(xf(b, tt), 4)}, {vr((rX0, rX1)[e])}{off(base + tt * 2048)}')
            o.append(f'ds_read_b128 {vr(xf(b, 4), 4)}, {vr((rO0, rO1)[e])}{off(base)}')
            return o

        def move(delta):
            return [f'v_add_u32 {vr(r)}, {delta & 0xffffffff}, {vr(r)}' for r in (rX0, rX1, rO0, rO1, rW)]
        p.need('c0')
        p('s_barrier')
        self.stamp(1)
        p.add(rds(0))
        ones = vr(ONES, 4)
        side = chunk(2)
        for ks in range(14):
            b = ks % 2
            nx = ks + 1
            if nx < 14 and nx % 2 == 0:
                m = nx // 2
                self.emit_groups(side)
                side = []
                p.need(f'c{m}')
                p('s_barrier')
                if m % 2 == 0:
                    p.add(move(2 * CH if m % 4 == 2 else -2 * CH))
                if m + 2 < 7:
                    side = chunk(m + 2)
                elif m == 5:
                    side = self.r_issue()
            if self.c.fine == 1 and ks % 2 == 1:
                self.stamp(24 + ks // 2)
            R = rds(nx) if nx < 14 else []
            z = ks == 0
            ms = []
            for sec in (1, 2, 0):
                w_ = vr(wf(b, sec), 4)
                for tt in range(4):
                    x_ = vr(xf(b, tt), 4)
                    a_, b_ = (w_, x_) if sec < 2 else (x_, w_)
                    ms.append(mf16(acc(sec, tt), a_, b_, None if z else acc(sec, tt)))
                a_, b_ = (w_, ones) if sec < 2 else (ones, w_)
                ms.append(mf16(CS + 4 * sec, a_, b_, None if z else CS + 4 * sec))
            xo = vr(xf(b, 4), 4)
            st = [mf16(SA, ones, xo, None if z else SA), mf16(SA + 4, xo, xo, None if z else SA + 4)]
            ms = (st + ms) if ks == 13 else (ms + st)
            fin = self.ln_finish(SA, SA + 4, t + 4, t, vPerm) if ks == 13 else []
            for n, m_ in enumerate(ms):
                p(m_)
                if R:
                    p(R.pop(0))
                elif side:
                    p.add(list(side.pop(0)))
                    if side and ks % 2 == 0 and len(ms) - n <= len(side):
                        p.add(list(side.pop(0)))
                elif fin and n >= 5:
                    p(fin.pop(0))
            p.add(fin)
            if ks == 8:
                p(f'v_mov_b32 {vr(vFl)}, 0')
                p(f'buffer_load_dword {vr(vFl)}, {vr(vFl)}, {srd(sDBG)}, 0 offen sc1')
        self.stamp(2)
        p('s_mov_b64 exec, 0xffff')
        p(f'ds_write_b64 {vr(vSw)}, {vr(t + 4, 2)}', tokw=['lnw'])
        p('s_mov_b64 exec, -1')
        qs = math.log2(math.e) / math.sqrt(28.0)
        p(f"""s_lshl_b32 s{sT0}, s{sRB}, 12
s_add_u32 s{sT0}, s{sT0}, {QF}
s_lshl_b32 s{sT1}, s{sRB}, 13
s_add_u32 s{sT1}, s{sT1}, {KV}
s_add_u32 s{sT2}, s{sT1}, 4096""")
        p.need('lnw')
        p('s_barrier')
        TK, TV, D = XF, XF + 8, 184
        for tt in range(4):
            p(f'ds_read_b64 {vr(TK + 2 * tt, 2)}, {vr(vSt)}{off(128 * tt)}')
        for tt in range(4):
            for h in range(2):
                p(f'ds_read_b128 {vr(TV + 8 * tt + 4 * h, 4)}, {vr(vSv)}{off(128 * tt + 16 * h)}')

        def qk_store(sec, tp, d):
            for e in range(2):
                tt = 2 * tp + e
                st = vr(TK + 2 * tt, 2)
                for h in range(2):
                    a = vr(acc(sec, tt) + 2 * h, 2)
                    p(f'v_pk_fma_f32 {a}, {vr(CS + 4 * sec + 2 * h, 2)}, {st}, {a} op_sel:[0,1,0] op_sel_hi:[1,1,1]')
                    p(f'v_pk_mul_f32 {a}, {a}, {st} op_sel_hi:[1,0]')
                a = acc(sec, tt)
                p(f'v_cvt_pk_bf16_f32 {vr(d + 2 * e)}, {vr(a)}, {vr(a + 1)}')
                p(f'v_cvt_pk_bf16_f32 {vr(d + 2 * e + 1)}, {vr(a + 2)}, {vr(a + 3)}')
            c0, c1 = ('0', '0') if sec == 0 else (vr(vK0), vr(vK1))
            p(f'v_mov_b32 {vr(d + 6)}, {c0}\nv_mov_b32 {vr(d + 7)}, {c1}')
            p(f'v_permlane16_swap_b32 {vr(d)}, {vr(d + 2)}')
            p(f'v_permlane16_swap_b32 {vr(d + 1)}, {vr(d + 3)}')
            p(f"""v_mov_b32 {vr(d + 4)}, {vr(d + 2)}
v_mov_b32 {vr(d + 5)}, {vr(d + 3)}
v_cndmask_b32 {vr(d + 2)}, {vr(d + 2)}, {vr(d + 6)}, {sp(sM2)}
v_cndmask_b32 {vr(d + 3)}, {vr(d + 3)}, {vr(d + 7)}, {sp(sM2)}""")
            va, vb, so, o = (vQa, vQb, sT0, 2048 * tp) if sec == 0 else (vKa, vKb, (sT1, sT2)[tp], 0)
            p(f'buffer_store_dwordx4 {vr(d, 4)}, {vr(va)}, {srd(sWS)}, s{so} offen{off(o)} sc1', tokw=['st1'])
            p(f'buffer_store_dwordx4 {vr(d + 4, 4)}, {vr(vb)}, {srd(sWS)}, s{so} offen{off(o)} sc1', tokw=['st1'])

        qk_store(1, 0, D)
        qk_store(1, 1, D + 8)
        for tp in range(2):
            d = D + 16 + 4 * tp
            for e in range(2):
                tt = 2 * tp + e
                for r in range(4):
                    a = acc(2, tt) + r
                    st = TV + 8 * tt + 2 * r
                    p(f'v_fmac_f32 {vr(a)}, {vr(st + 1)}, {vr(CS + 8)}')
                    p(f'v_mul_f32 {vr(a)}, {vr(a)}, {vr(st)}')
                a = acc(2, tt)
                p(f'v_cvt_pk_bf16_f32 {vr(d + 2 * e)}, {vr(a)}, {vr(a + 1)}')
                p(f'v_cvt_pk_bf16_f32 {vr(d + 2 * e + 1)}, {vr(a + 2)}, {vr(a + 3)}')
            so = (sT1, sT2)[tp]
            p(f'buffer_store_dwordx4 {vr(d, 4)}, {vr(vVa)}, {srd(sWS)}, s{so} offen offset:2048 sc1', tokw=['st1'])
            p(f'buffer_store_dwordx4 {vr(vVd, 4)}, {vr(vVc)}, {srd(sWS)}, s{so} offen offset:2048 sc1', tokw=['st1'])
        for tt in range(4):
            p(f'v_mul_f32 {vr(TK + 2 * tt)}, {hx(qs)}, {vr(TK + 2 * tt)}')
        qk_store(0, 0, D + 24)
        qk_store(0, 1, D + 32)
        self.sentinel_init()
        p(f'v_mov_b32 {vr(vP)}, 0')
        self.check(vFl, vP, 1, sDBG)
        p.need('st1', 'sent')
        self.arrive(vAr, 3)
        self.stamp(3)
        self.r_finish()
        p('s_barrier')
        p('s_branch .Lattn')

    def spare(self):
        p = self.p
        p('.Lspare:')
        sSPI, sOM = sT0, sA0
        t = 6
        p(f'''s_sub_u32 s{sT1}, s{sIDX}, 28
s_lshl_b32 s{sT1}, s{sT1}, 2
s_add_u32 s{sT1}, s{sT1}, s{sW}
s_lshl_b32 s{sT1}, s{sT1}, 13
v_lshlrev_b32 {vr(t)}, 7, {vr(vL)}
v_add_u32 {vr(t)}, s{sT1}, {vr(t)}
s_mov_b32 s{sT1}, .Lend-.Lpc0
v_min_u32 {vr(t)}, s{sT1}, {vr(t)}
global_load_dword {vr(250)}, {vr(t)}, {sp(sPC)}''')
        p(f'''s_lshl_b32 s{sOM}, s{sXC}, 2
s_add_u32 s{sOM}, s{sOM}, s{sIDX}
s_sub_u32 s{sOM}, s{sOM}, 28
s_cmp_lg_u32 s{sOM}, 0
s_cbranch_scc1 .Lnozero''')
        p(f'''v_lshlrev_b32 {vr(t)}, 7, {vr(vL)}
s_lshl_b32 s{sT1}, s{sW}, 15
v_mov_b32 {vr(t + 1)}, 0''')
        for n in range(4):
            p(f's_add_u32 s{sT2}, s{sT1}, {CNT + n * 8192}')
            p(f'buffer_store_dword {vr(t + 1)}, {vr(t)}, {srd(sWS)}, s{sT2} offen sc1', tokw=['z'])
        p.need('z')
        p('s_barrier')
        p(f's_mov_b64 exec, 1\nbuffer_store_dword {vr(vONE)}, {vr(t + 1)}, {srd(sDBG)}, 0 offen sc1\ns_mov_b64 exec, -1')
        p('.Lnozero:')
        p(f's_lshl_b32 s{sOM}, s{sOM}, 2\ns_add_u32 s{sOM}, s{sOM}, s{sW}')
        self.r_setup()
        self.emit_groups(self.r_issue())
        vI, vR0, vR1, vD2 = self.vRI, 10, 11, 12
        vc_ = 14
        sj, sh, sa4, skp = sA1, sT0, sT1, sT2
        sS1 = 89
        p(f'''s_lshr_b32 s{sj}, s{sOM}, 4
s_bfe_u32 s{sh}, s{sOM}, 0x10003
s_bfe_u32 s{sa4}, s{sOM}, 0x20001
s_and_b32 s{skp}, s{sOM}, 1
s_mul_i32 s{sA2}, s{sW}, 14336
s_mul_i32 s{sS1}, s{skp}, {7 * 32 * 3584}
s_mul_i32 s{sT3}, s{sj}, 224
s_add_u32 s{sS1}, s{sS1}, s{sT3}
s_lshl_b32 s{sT3}, s{sa4}, 6
s_add_u32 s{sS1}, s{sS1}, s{sT3}
s_xor_b32 s{sT3}, s{sh}, 1
s_mul_i32 s{sT3}, s{sT3}, 1792
s_add_u32 s{sS1}, s{sS1}, s{sT3}
s_lshl_b32 s90, s{sj}, 1
s_add_u32 s90, s90, s{sh}
s_mul_i32 s90, s90, {105 * 1024}
s_lshl_b32 s{sT3}, s{sa4}, 11
s_add_u32 s90, s90, s{sT3}
s_add_u32 s90, s90, {WIF + 98 * 1024}''')
        for n in range(7):
            for jj in range(2):
                p(f's_add_u32 m0, s{sA2}, {n * 2048 + jj * 1024}')
                p(f's_add_u32 s{sT3}, s{sS1}, {n * 32 * 3584 + jj * 4 * 3584}')
                p(f'buffer_load_dwordx4 {vr(vI)}, {srd(sWI)}, s{sT3} offen lds', tokw=[f'r{n}'])
        p(f'''v_and_b32 {vr(vc_)}, 3, {vr(vC)}
v_add_u32 {vr(vR0)}, s{sA2}, {vr(vL16)}
v_and_b32 {vr(t)}, 60, {vr(vL)}
v_lshrrev_b32 {vr(vR1)}, 1, {vr(vc_)}
v_add_u32 {vr(t)}, {vr(t)}, {vr(vR1)}
v_lshlrev_b32 {vr(t)}, 4, {vr(t)}
v_and_b32 {vr(vR1)}, 1, {vr(vc_)}
v_lshl_add_u32 {vr(t)}, {vr(vR1)}, 3, {vr(t)}
v_add_u32 {vr(t)}, s{sA2}, {vr(t)}
s_cmp_eq_u32 s{sa4}, 3
s_cselect_b64 {sp(sM0)}, -1, 0
v_mov_b32 {vr(vD2)}, {OOR}
v_cndmask_b32 {vr(vR1)}, {vr(vR0)}, {vr(t)}, {sp(sM0)}
v_cndmask_b32 {vr(vD2)}, {vr(vL16)}, {vr(vD2)}, {sp(sM0)}''')
        self.r_finish()
        for n in range(7):
            d = 32 + 8 * n
            p.need(f'r{n}')
            for e in range(2):
                for jj in range(2):
                    base = vR1 if e == 0 else vR0
                    p(f'ds_read_b64_tr_b16 {vr(d + 4 * e + 2 * jj, 2)}, {vr(base)}{off(n * 2048 + jj * 1024 + 8 * e)}')
        ON, CSA, E = 124, 128, 136
        for r in range(4):
            p(f'v_mov_b32 {vr(ON + r)}, 0x3f803f80')
        for n in range(2, 9):
            for e in range(2):
                p(mf16(CSA + 4 * e, vr(ON, 4), vr(16 + 8 * n + 4 * e, 4), None if n == 2 else CSA + 4 * e))
        p(f'''v_cmp_gt_u32 vcc, 2, {vr(vQ)}
v_and_b32 {vr(t)}, 1, {vr(vQ)}
v_cmp_eq_u32 {sp(sM1)}, s{skp}, {vr(t)}
v_mov_b32 {vr(t)}, {OOR}
v_cndmask_b32 {vr(vR0)}, {vr(t)}, {vr(vL16)}, {sp(sM1)}
v_cndmask_b32 {vr(vR1)}, {vr(t)}, {vr(vD2)}, {sp(sM1)}''')
        for e in range(2):
            a, d = CSA + 4 * e, E + 4 * e
            p(f'''v_cvt_pk_bf16_f32 {vr(d)}, {vr(a)}, {vr(a)}
v_and_b32 {vr(a + 1)}, 0xffff0000, {vr(d)}
v_sub_f32 {vr(a)}, {vr(a)}, {vr(a + 1)}
v_cvt_pk_bf16_f32 {vr(d + 1)}, {vr(a)}, {vr(a)}
v_cndmask_b32 {vr(d)}, 0, {vr(d)}, vcc
v_cndmask_b32 {vr(d + 1)}, 0, {vr(d + 1)}, vcc
v_mov_b32 {vr(d + 2)}, 0
v_mov_b32 {vr(d + 3)}, 0''')
            p(f'buffer_store_dwordx4 {vr(d, 4)}, {vr((vR0, vR1)[e])}, {srd(sWS)}, s90 offen{off(1024 * e)} sc1',
              tokw=['cst'])
        self.sentinel_init()
        p(f'v_mov_b32 {vr(12)}, 0')
        self.poll(12, 1, sDBG, 13)
        p(f'''s_lshl_b32 s{sT0}, s{sj}, 9
s_add_u32 s{sT0}, s{sT0}, {CNT + C_RDY * 128}
v_lshlrev_b32 {vr(12)}, 7, {vr(vL)}
v_add_u32 {vr(12)}, s{sT0}, {vr(12)}''')
        p.need('cst', 'sent')
        self.arrive(12, 15)
        self.stamp(3)
        p('s_barrier')

    def attention(self):
        p = self.p
        c = self.c
        Q, O, S, P, KB = 16, 48, 112, 144, 152
        SCR, FLG = 106 * 1024, 155 * 1024
        vPo, vSP, vRdy, vRv, vW0 = 7, 8, 9, 10, 11
        vM = 240
        t = 244
        vRa = 14
        qf = lambda a, u: Q + 8 * a + 4 * u
        kf = lambda b, u: KB + 16 * b + 4 * u
        vf = lambda b, u: KB + 16 * b + 8 + 4 * u
        p('.Lattn:')
        if c.stop <= 1:
            self.finish()
            return
        p(f'''s_mul_i32 s{sT0}, s{sHD}, 28
s_lshr_b32 s{sT1}, s{sT0}, 4
s_add_u32 s{sT0}, s{sT0}, 27
s_lshr_b32 s{sT2}, s{sT0}, 4
s_lshr_b32 s{sT3}, s{sQB}, 2
s_lshr_b32 s{sT4}, s{sHD}, 1
v_and_b32 {vr(vPo)}, 3, {vr(vL)}
v_add_u32 {vr(vPo)}, s{sT1}, {vr(vPo)}
v_min_u32 {vr(vPo)}, s{sT2}, {vr(vPo)}
v_mul_u32_u24 {vr(t)}, {16 * 2341}, {vr(vPo)}
v_lshrrev_b32 {vr(t)}, 17, {vr(t)}
v_sub_u32 {vr(t)}, s{sT4}, {vr(t)}
v_lshl_add_u32 {vr(vPo)}, {vr(vPo)}, 3, {vr(t)}
v_mov_b32 {vr(t)}, s{sW}
v_mov_b32 {vr(t + 2)}, s{sT3}
v_and_b32 {vr(t + 1)}, 4, {vr(vL)}
v_cmp_ne_u32 vcc, 0, {vr(t + 1)}
v_cndmask_b32 {vr(t)}, {vr(t)}, {vr(t + 2)}, vcc
v_lshl_add_u32 {vr(vPo)}, {vr(t)}, 1, {vr(vPo)}
v_lshlrev_b32 {vr(vPo)}, 7, {vr(vPo)}''')
        vD, vE = 226, 234
        p(f'''s_lshl_b32 s{sT0}, s{sJ}, 9
s_add_u32 s{sT0}, s{sT0}, {CNT + C_RDY * 128}
v_lshlrev_b32 {vr(vRv)}, 7, {vr(vL)}
v_add_u32 {vr(vRa)}, s{sT0}, {vr(vRv)}
s_lshl_b32 s{sT1}, s{sRQ}, 7
s_add_u32 s{sT0}, s{sT0}, s{sT1}
v_mov_b32 {vr(vRdy)}, s{sT0}
v_cmp_lt_u32 {sp(sM2)}, 31, {vr(vL)}
v_lshrrev_b32 {vr(t)}, 3, {vr(vL)}
v_and_b32 {vr(t + 1)}, 7, {vr(vL)}
v_xor_b32 {vr(t + 1)}, {vr(t + 1)}, {vr(vQ)}
v_lshlrev_b32 {vr(t)}, 12, {vr(t)}
v_lshl_add_u32 {vr(t)}, {vr(t + 1)}, 4, {vr(t)}
v_xor_b32 {vr(t + 1)}, 64, {vr(t)}
v_lshrrev_b32 {vr(t + 2)}, 1, {vr(vC)}
v_xor_b32 {vr(t + 2)}, {vr(t + 2)}, {vr(vQ)}
v_lshlrev_b32 {vr(t + 2)}, 4, {vr(t + 2)}
v_lshl_add_u32 {vr(t + 2)}, {vr(vC)}, 7, {vr(t + 2)}
v_xor_b32 {vr(t + 3)}, 64, {vr(t + 2)}
s_lshl_b32 s{sA1}, s{sW}, 14
s_mul_i32 s{sA2}, s{sW}, 12288
s_add_u32 s{sA2}, s{sA2}, {SCR}
v_add_u32 {vr(vE)}, s{sA1}, {vr(t + 2)}
v_add_u32 {vr(vE + 1)}, s{sA1}, {vr(t + 3)}
v_add_u32 {vr(vE + 2)}, s{sA2}, {vr(t + 2)}
v_add_u32 {vr(vE + 3)}, s{sA2}, {vr(t + 3)}
v_add_u32 {vr(vSP)}, s{sA2}, {vr(vL16)}
s_lshl_b32 s{sA0}, s{sI}, 18''')
        for a in range(4):
            p(f's_add_u32 s{sT0}, s{sW}, {1 + a}\ns_and_b32 s{sT0}, s{sT0}, 3')
            p(f'''s_lshl_b32 s{sT1}, s{sT0}, 16
s_lshl_b32 s{sT2}, s{sW}, 10
s_add_u32 s{sT1}, s{sT1}, s{sT2}
s_add_u32 s{sT2}, s{sT1}, {4096 - 2048 * (a % 2)}
v_add_u32 {vr(vD + 2 * a)}, s{sT2}, {vr(t)}
s_add_u32 s{sT2}, s{sT1}, {4096 + 8 * 4096 - 2048 * (a % 2) - 1024}
v_add_u32 {vr(vD + 2 * a + 1)}, s{sT2}, {vr(t + 1)}''')
            if a < 3:
                p(f'''s_add_u32 s{sT1}, s{sW}, {3 - a}
s_and_b32 s{sT1}, s{sT1}, 3
s_mul_i32 s{sT1}, s{sT1}, 12288
s_add_u32 s{sT1}, s{sT1}, {SCR + a * 4096}
v_add_u32 {vr(vW0 + a)}, s{sT1}, {vr(vL16)}''')
            p(f'''s_lshl_b32 s{sT1}, s{sHD}, 6
s_lshl_b32 s{sT2}, s{sQB}, 2
s_add_u32 s{sT1}, s{sT1}, s{sT2}
s_add_u32 s{sT1}, s{sT1}, s{sT0}
s_lshl_b32 s{sT1}, s{sT1}, 11
s_add_u32 s{88 + a}, s{sT1}, {QF}''')
        p(f'''s_lshl_b32 s{sT0}, s{sHD}, 18
s_add_u32 s{sT0}, s{sT0}, {KV}
s_lshl_b32 s{sT1}, s{sQB}, 14
s_add_u32 s{92}, s{sT0}, s{sT1}
s_lshl_b32 s{sT1}, s{sW}, 16
s_add_u32 s{93}, s{sT0}, s{sT1}''')
        sKR, sSR = sK2, sK2 + 1
        if c.rot5:
            p(f's_add_u32 s{sSR}, s{sI}, s{sJ}\ns_and_b32 s{sSR}, s{sSR}, 3\ns_lshl_b32 s{sSR}, s{sSR}, 8')
        else:
            p(f's_mov_b32 s{sSR}, 0')
        self.poll(vPo, 8)
        self.stamp(4)
        for u in range(2):
            p(f'buffer_load_dwordx4 {vr(kf(3, u), 4)}, {vr(vL16)}, {srd(sWS)}, s92 offen{off(1024 * u)} sc1')
        for a in range(4):
            for u in range(2):
                p(f'buffer_load_dwordx4 {vr(qf(a, u), 4)}, {vr(vL16)}, {srd(sWS)}, s{88 + a} offen{off(1024 * u)} sc1')

        def kvload(tl, which):
            b = tl % 4
            return f'buffer_load_dwordx4 {vr(KB + 16 * b + 4 * which, 4)}, {vr(vL16)}, {srd(sWS)}, s{sKV} offen' \
                   f'{off(1024 * which)} sc1'

        def kvnext():
            return [f's_add_u32 s{sKR}, s{sKR}, 4096', f's_and_b32 s{sKR}, s{sKR}, 0xffff', f's_add_u32 s{sKV}, s93, s{sKR}']

        def first_kv():
            p(f's_lshl_b32 s{sKR}, s{sQB}, 12' if c.rotkv else f's_mov_b32 s{sKR}, 0')
            for tl in range(3):
                p.add(kvnext())
                for wch in range(4):
                    p(kvload(tl, wch))
        first_kv()

        def tile_max(a, b, first):
            s = S + 16 * (a % 2)
            o = [mf32(s, kf(b, 0), qf(a, 0), None), mf32(s, kf(b, 1), qf(a, 1), s)]
            m = vM + a
            v = [f'v_max3_f32 {vr(m)}, {vr(s)}, {vr(s + 1)}, {vr(s + 2) if first else vr(m)}']
            rest = list(range(3 if first else 2, 16))
            while len(rest) >= 2:
                v.append(f'v_max3_f32 {vr(m)}, {vr(s + rest[0])}, {vr(s + rest[1])}, {vr(m)}')
                rest = rest[2:]
            if rest:
                v.append(f'v_max_f32 {vr(m)}, {vr(s + rest[0])}, {vr(m)}')
            return o, v

        def max_pass(b, first):
            ms = [tile_max(a, b, first) for a in range(4)]
            p.add(ms[0][0])
            for a in range(4):
                if a < 3:
                    p.add(ms[a + 1][0])
                p.add(ms[a][1])

        def half_max():
            for a in range(4):
                p(f'v_mov_b32 {vr(t + a)}, {vr(vM + a)}')
            for a in range(4):
                p(f'v_permlane32_swap_b32 {vr(t + a)}, {vr(vM + a)}')
            for a in range(4):
                p(f'v_max_f32 {vr(vM + a)}, {vr(t + a)}, {vr(vM + a)}')

        def patch_q(full):
            for a in range(4):
                m = vM + a
                p(f'v_sub_f32 {vr(m)}, 0, {vr(m)}')
                p(f'v_cvt_pk_bf16_f32 {vr(t)}, {vr(m)}, 0')
                if full:
                    p(f'''v_lshlrev_b32 {vr(t + 1)}, 16, {vr(t)}
v_sub_f32 {vr(m)}, {vr(m)}, {vr(t + 1)}
v_cvt_pk_bf16_f32 {vr(t + 1)}, {vr(m)}, 0
v_lshlrev_b32 {vr(t + 1)}, 16, {vr(t + 1)}
v_sub_f32 {vr(m)}, {vr(m)}, {vr(t + 1)}
v_or_b32 {vr(t)}, {vr(t)}, {vr(t + 1)}
v_cvt_pk_bf16_f32 {vr(t + 1)}, {vr(m)}, 0
v_cndmask_b32 {vr(qf(a, 1) + 3)}, {vr(qf(a, 1) + 3)}, {vr(t + 1)}, {sp(sM2)}''')
                p(f'v_cndmask_b32 {vr(qf(a, 1) + 2)}, {vr(qf(a, 1) + 2)}, {vr(t)}, {sp(sM2)}')
        max_pass(3, True)
        half_max()
        patch_q(False)
        p('.Lsweep:')
        self.stamp(5)
        side = [[] for _ in range(16)]
        for g in range(8):
            sl = g % 3
            sb, ob = (sA1, 8192 * sl) if sl < 2 else (sA2, 0)
            dm = []
            for n in range(8):
                it = []
                if n == 0:
                    if g >= 3:
                        it.append(('; need', [], [f'sr{g - 3}']))
                    it += [f's_add_u32 s{sT4}, s{sSR}, {128 * g}', f's_and_b32 s{sT4}, s{sT4}, 1023',
                           f's_add_u32 s{sT4}, s{sT4}, s{sA0}']
                if n % 4 == 0 or (g < 2 and n % 2 == 0):
                    it.append(f's_add_u32 m0, s{sb}, {ob + 1024 * (n - n % 4)}')
                    dm.append(it)
                dm.append([(f'buffer_load_dwordx4 {vr(vD + n)}, {srd(sSP)}, s{sT4} offen{off(1024 * (n % 4))} lds',
                            [f'sd{g}'])])
            if g < 2:
                for n, it in enumerate(dm):
                    side[3 * g + (0, 1, 1, 2)[n // 3]].append(it)
            else:
                side[g + 4] += dm
            rd = []
            for a in range(4):
                for e in range(2):
                    it = []
                    if a == 0 and e == 0:
                        it.append(('; need', [], [f'sd{g}']))
                    it.append((f'ds_read_b128 {ar((a * 16 + 2 * g + e) * 4, 4)}, {vr(vE + e + (2 if sl == 2 else 0))}'
                               f'{off(ob + a * 2048)}', [f'sr{g}']))
                    rd.append(it)
            rt_ = (5, 7, 8, 9, 10, 11, 12, 12)[g]
            side[rt_] = (side[rt_] + rd) if g == 7 else (rd + side[rt_])
        side[1].append('ARRIVE')
        side[3].append([f'buffer_load_dword {vr(vRv)}, {vr(vRdy)}, {srd(sWS)}, 0 offen sc1'])
        side[4].append('CHECK')
        side[4].append([f's_mul_i32 s{sT1}, s{sJ}, {210 * 1024}'])
        d = self.dma_list(sT1, WIF, 64 * 1024, 42, 'z2a')
        side[4] += d[:6]
        side[5] += d[6:11]
        side[6] += d[11:]
        d = [[('; need', [], ['sr6', 'sr7']), f's_lshl_b32 s{sT0}, s{sJ}, 16'],
             [f's_add_u32 s{sT1}, s{sW}, s{sJ}' if c.rot36 else f's_mov_b32 s{sT1}, s{sW}', f's_and_b32 s{sT1}, s{sT1}, 3'],
             [f's_lshl_b32 s{sT1}, s{sT1}, 14', f's_add_u32 s{sT0}, s{sT0}, s{sT1}'],
             [f's_add_u32 s{sT0}, s{sT0}, {WOF}', f's_lshl_b32 s{sT1}, s{sI}, 12']]
        for n in range(4):
            d.append([f's_add_u32 s{sT1}, s{sT1}, 4096', f's_and_b32 s{sT1}, s{sT1}, 0x3000'])
            d.append([f's_add_u32 m0, s{sT1}, s{sA1}', f's_add_u32 s{sG}, s{sT1}, s{sT0}'])
            for k in range(4):
                d.append([(f'buffer_load_dwordx4 {vr(vL16)}, {srd(sWS)}, s{sG} offen{off(k * 1024)} sc1 lds', ['wo'])])
        side[13] += d[:16]
        side[14] += d[16:]
        side[2].append([f's_mul_i32 s{sT0}, s{sRT}, {16 * 896}', f's_mul_i32 s{sT1}, s{sJ}, 112'])
        side[2].append([f's_add_u32 s{sT0}, s{sT0}, s{sT1}', f'v_mul_u32_u24 {vr(t)}, 896, {vr(vC)}',
                         f'v_lshl_add_u32 {vr(t)}, {vr(vQ)}, 4, {vr(t)}'])
        side[2].append([f'buffer_load_dwordx4 {vr(vXR, 4)}, {vr(t)}, {srd(sX)}, s{sT0} offen'])
        side[2].append([f'buffer_load_dwordx4 {vr(vXR + 4, 4)}, {vr(t)}, {srd(sX)}, s{sT0} offen offset:64'])
        side[0].append([f's_lshl_b32 s{sT0}, s{sRT}, 5', f'v_lshlrev_b32 {vr(t)}, 1, {vr(vC)}'])
        side[0].append([f'buffer_load_ushort {vr(vBS)}, {vr(t)}, {srd(sBS)}, s{sT0} offen'])

        def owrite(a):
            return [[(f'ds_write_b128 {vr(vSP)}, {vr(O + 16 * a + 4 * k, 4)}{off(4096 * a + 1024 * k)}', ['ow'])]
                    for k in range(4)]

        p.add(kvnext())
        p(mf32(S, kf(0, 0), qf(0, 0), None))
        p(mf32(S, kf(0, 1), qf(0, 1), S))
        for n in range(64):
            tl, a = n // 4, n % 4
            if c.fine == 2 and n % 8 == 0 and n:
                self.stamp(24 + n // 8 - 1)
            sc, sn = S + 16 * (n % 2), S + 16 * ((n + 1) % 2)
            ms = [None] * 4
            if n < 63:
                t1, a1 = (n + 1) // 4, (n + 1) % 4
                ms[0] = mf32(sn, kf(t1 % 4, 0), qf(a1, 0), None)
                ms[1] = mf32(sn, kf(t1 % 4, 1), qf(a1, 1), sn)
            if n > 0:
                t0, a0 = (n - 1) // 4, (n - 1) % 4
                ms[2] = mf32(O + 16 * a0, vf(t0 % 4, 1), P + 4, O + 16 * a0)
            ms[3] = mf32(O + 16 * a, vf(tl % 4, 0), P, None if tl == 0 else O + 16 * a)
            ex = [[] for _ in range(4)]
            if tl + 3 < 16:
                if a == 0:
                    ex[0] = [kvload(tl + 3, 0)]
                    ex[1] = [kvload(tl + 3, 1)]
                if a == 1:
                    ex[0] = [kvload(tl + 3, 2)]
                    ex[1] = [kvload(tl + 3, 3)]
            if tl == 15 and a >= 2:
                w = owrite(a - 2)
                for g in range(4):
                    ex[g] = w[g]
            for g in range(4):
                if ms[g]:
                    p(ms[g])
                if a == 3 and g > 0 and tl < 12:
                    p(kvnext()[g - 1])
                if not ex[g] and side[tl]:
                    left = sum(1 for a2 in range(a, 4) for g2 in range(4)
                               if (a2, g2) >= (a, g) and not (tl + 3 < 16 and a2 < 2 and g2 < 2))
                    for _ in range(-(-len(side[tl]) // left)):
                        it = side[tl].pop(0)
                        if it == 'CHECK':
                            self.check(vRv, vRdy, 144)
                        elif it == 'ARRIVE':
                            La = p.label('noarr')
                            p(f's_cmp_lg_u32 s{sFB}, 0\ns_cbranch_scc1 {La}')
                            p.need('rst')
                            self.arrive(vRa, 15)
                            p(f'{La}:')
                        else:
                            p.add(list(it))
                else:
                    p.add(list(ex[g]))
                for jx in range(4):
                    p(f'v_exp_f32 {vr(sc + 4 * g + jx)}, {vr(sc + 4 * g + jx)}')
                p(f'v_cvt_pk_bf16_f32 {vr(P + 2 * g)}, {vr(sc + 4 * g)}, {vr(sc + 4 * g + 1)}')
                p(f'v_cvt_pk_bf16_f32 {vr(P + 2 * g + 1)}, {vr(sc + 4 * g + 2)}, {vr(sc + 4 * g + 3)}')
            if a == 3:
                assert not side[tl], (tl, side[tl])
        p(mf32(O + 48, vf(3, 1), P + 4, O + 48))
        for g in owrite(2):
            p.add(list(g))
        self.stamp(6)
        p(f'''v_max3_f32 {vr(t)}, abs({vr(O + 12)}), abs({vr(O + 28)}), abs({vr(O + 44)})
v_add_f32 {vr(t + 1)}, {vr(O + 12)}, {vr(O + 28)}
v_add_f32 {vr(t + 1)}, {vr(t + 1)}, {vr(O + 44)}
v_add_f32 {vr(t + 1)}, {vr(t + 1)}, {vr(O + 60)}
v_max3_f32 {vr(t)}, {vr(t)}, abs({vr(O + 60)}), abs({vr(O + 60)})
v_cmp_nge_f32 vcc, {hx(2.0 ** 60)}, {vr(t)}
v_cmp_u_f32 {sp(sM0)}, {vr(t + 1)}, {vr(t + 1)}
s_or_b64 vcc, vcc, {sp(sM0)}
s_cmp_lg_u64 vcc, 0
s_cselect_b32 s{sT0}, 1, {1 if c.force_fb else 0}
s_lshl_b32 s{sT1}, s{sW}, 2
s_add_u32 s{sT1}, s{sT1}, {FLG}
v_mov_b32 {vr(t)}, s{sT0}
v_mov_b32 {vr(t + 1)}, s{sT1}''')
        p(f'ds_write_b32 {vr(t + 1)}, {vr(t)}', tokw=['ow'])
        p(f'v_mov_b32 {vr(t + 1)}, {FLG}')
        p.need('ow', 'wo', 'z2a')
        p('s_barrier')
        p(f'ds_read_b128 {vr(t + 4, 4)}, {vr(t + 1)}')
        R = S
        for a in range(3):
            for k in range(4):
                p(f'ds_read_b128 {vr(R + 16 * a + 4 * k, 4)}, {vr(vW0 + a)}{off(k * 1024)}')
        p(f'''v_or_b32 {vr(t + 4)}, {vr(t + 4)}, {vr(t + 5)}
v_or3_b32 {vr(t + 4)}, {vr(t + 4)}, {vr(t + 6)}, {vr(t + 7)}
v_readfirstlane_b32 s{sT0}, {vr(t + 4)}
s_andn2_b32 s{sT0}, s{sT0}, s{sFB}
s_cmp_lg_u32 s{sT0}, 0
s_cbranch_scc1 .Ltruemax''')
        Oo = O + 48
        for a in range(3):
            for k in range(8):
                p(f'v_pk_add_f32 {vr(Oo + 2 * k, 2)}, {vr(Oo + 2 * k, 2)}, {vr(R + 16 * a + 2 * k, 2)}')
        p(f'''v_mov_b32 {vr(t)}, {vr(Oo + 12)}
v_mov_b32 {vr(t + 2)}, {vr(Oo + 12)}
v_permlane32_swap_b32 {vr(t)}, {vr(t + 2)}
v_rcp_f32 {vr(t)}, {vr(t + 2)}
v_mov_b32 {vr(t + 1)}, {vr(t)}
v_cndmask_b32 {vr(t + 2)}, {vr(t)}, 0, {sp(sM2)}
v_mov_b32 {vr(t + 3)}, {vr(t + 2)}''')
        p(f'''s_lshl_b32 s{sT0}, s{sQB}, 3
s_lshl_b32 s{sT1}, s{sW}, 1
s_add_u32 s{sT0}, s{sT0}, s{sT1}
s_lshl_b32 s{sT0}, s{sT0}, 4
s_add_u32 s{sT0}, s{sT0}, s{sHD}
s_lshl_b32 s{sT0}, s{sT0}, 10
s_add_u32 s{sT0}, s{sT0}, {OF}
v_and_b32 {vr(vPo)}, 1, {vr(vQ)}
v_lshlrev_b32 {vr(vPo)}, 14, {vr(vPo)}
v_lshrrev_b32 {vr(vRv)}, 1, {vr(vQ)}
v_lshl_add_u32 {vr(vPo)}, {vr(vRv)}, 8, {vr(vPo)}
v_lshl_add_u32 {vr(vPo)}, {vr(vC)}, 4, {vr(vPo)}''')
        for k in range(8):
            sc = t if k < 6 else t + 2
            p(f'v_pk_mul_f32 {vr(Oo + 2 * k, 2)}, {vr(Oo + 2 * k, 2)}, {vr(sc, 2)}')
        for k in range(8):
            p(f'v_cvt_pk_bf16_f32 {vr(O + k)}, {vr(Oo + 2 * k)}, {vr(Oo + 2 * k + 1)}')
        for a in range(2):
            p(f'buffer_store_dwordx4 {vr(O + 4 * a, 4)}, {vr(vPo)}, {srd(sWS)}, s{sT0} offen{off(512 * a)} sc1',
              tokw=['st2'])
        p(f'''s_lshl_b32 s{sT0}, s{sQB}, 2
s_add_u32 s{sT0}, s{sT0}, s{sW}
s_lshl_b32 s{sT0}, s{sT0}, 8
s_add_u32 s{sT0}, s{sT0}, {CNT + C_S2 * 128}
v_lshlrev_b32 {vr(vSP)}, 7, {vr(vL)}
v_add_u32 {vr(vSP)}, s{sT0}, {vr(vSP)}''')
        p.need('st2')
        self.arrive(vSP, 3)
        self.stamp(7)

        def truemax():
            p('.Ltruemax:')
            p('s_waitcnt vmcnt(0) lgkmcnt(0)\ns_barrier')
            p(f's_mov_b32 s{sFB}, 1')
            for a in range(4):
                for r in (2, 3):
                    p(f'v_cndmask_b32 {vr(qf(a, 1) + r)}, {vr(qf(a, 1) + r)}, 0, {sp(sM2)}')
                p(f'v_mov_b32 {vr(vM + a)}, 0xff7fffff')
            p(f's_mov_b32 s{sKV}, s93\ns_mov_b32 s{sT0}, 16')
            p('.Ltm_loop:')
            p(kvload(3, 0))
            p(kvload(3, 1))
            max_pass(3, False)
            p(f's_add_u32 s{sKV}, s{sKV}, 4096\ns_sub_u32 s{sT0}, s{sT0}, 1\ns_cmp_lg_u32 s{sT0}, 0')
            p('s_cbranch_scc1 .Ltm_loop')
            half_max()
            for a in range(4):
                p(f'''s_add_u32 s{sT0}, s{sW}, {1 + a}
s_and_b32 s{sT0}, s{sT0}, 3
s_lshl_b32 s{sT0}, s{sT0}, 10
s_add_u32 s{sT0}, s{sT0}, {SCR}
v_lshlrev_b32 {vr(t + a)}, 2, {vr(vL)}
v_add_u32 {vr(t + a)}, s{sT0}, {vr(t + a)}
s_lshl_b32 s{sT0}, s{sW}, 8
v_add_u32 {vr(t + 4)}, s{sT0}, {vr(t + a)}''')
                p(f'ds_write_b32 {vr(t + 4)}, {vr(vM + a)}', tokw=['tm'])
            p.need('tm')
            p('s_barrier')
            for a in range(4):
                for k in range(4):
                    p(f'ds_read_b32 {vr(S + 4 * a + k)}, {vr(t + a)}{off(256 * k)}')
            for a in range(4):
                p(f'v_max3_f32 {vr(vM + a)}, {vr(S + 4 * a)}, {vr(S + 4 * a + 1)}, {vr(S + 4 * a + 2)}')
                p(f'v_max_f32 {vr(vM + a)}, {vr(vM + a)}, {vr(S + 4 * a + 3)}')
            patch_q(True)
            p('s_waitcnt lgkmcnt(0)\ns_barrier')
            first_kv()
            p('s_branch .Lsweep')
        self.truemax = truemax

    def gemm_lds(self, nks, nct, lds_addr, act, acc, ring, nring, w_is_a, fill=(), per=0.0, hooks=None, ahead=6,
                 pre=None, fstart=0, side=None):
        p = self.p
        seq = [(ks, ct) for ks in range(nks) for ct in range(nct)]
        fill = list(fill)
        hooks = hooks or {}
        rd = lambda n: lds_rd(ring + 4 * (n % nring), lds_addr(*seq[n]))
        issued = 0
        accu = 0.0

        def run_hook(n):
            if n < len(seq) and seq[n][1] == 0 and seq[n][0] in hooks:
                hooks.pop(seq[n][0])()
        while issued < min(ahead, len(seq)):
            run_hook(issued)
            p(rd(issued))
            issued += 1
        for n, (ks, ct) in enumerate(seq):
            if ct == 0 and pre and ks in pre:
                p.add(pre[ks])
            wf = vr(ring + 4 * (n % nring), 4)
            a, b = (wf, act(ks)) if w_is_a else (act(ks), wf)
            p(mf16(acc(ct), a, b, None if ks == 0 else acc(ct)))
            if issued < len(seq):
                run_hook(issued)
                p(rd(issued))
                issued += 1
            if side and n in side:
                p.add(side[n])
            if n >= fstart:
                accu += per
            while accu >= 1 and fill:
                p.add(fill.pop(0))
                accu -= 1
        p.add(fill)

    def gelu(self, regs, t, scale):
        o = []
        for n in range(0, len(regs), 2):
            r = regs[n]
            u = t + 2 * ((n // 2) % 4)
            o.append([f'v_pk_mul_f32 {vr(r, 2)}, {vr(r, 2)}, {scale(n // 2)}',
                      f'v_pk_mul_f32 {vr(u, 2)}, {vr(r, 2)}, {vr(r, 2)}',
                      f'v_pk_fma_f32 {vr(u, 2)}, {vr(u, 2)}, {vr(168, 2)}, {vr(170, 2)}',
                      f'v_pk_mul_f32 {vr(u, 2)}, {vr(u, 2)}, {vr(r, 2)}',
                      f'v_exp_f32 {vr(u)}, {vr(u)}',
                      f'v_exp_f32 {vr(u + 1)}, {vr(u + 1)}',
                      f'v_pk_add_f32 {vr(u, 2)}, {vr(u, 2)}, 1.0 op_sel_hi:[1,0]',
                      f'v_rcp_f32 {vr(u)}, {vr(u)}',
                      f'v_rcp_f32 {vr(u + 1)}, {vr(u + 1)}',
                      f'v_pk_mul_f32 {vr(r, 2)}, {vr(r, 2)}, {vr(u, 2)}'])
        out = []
        for n in range(0, len(o), 2):
            if n + 1 < len(o):
                for a, b in zip(o[n], o[n + 1]):
                    out += [a, b]
            else:
                out += o[n]
        return out

    def phase3(self):
        p = self.p
        OB, RING, ACC = 16, 80, 112
        vA, vB, t = 7, 8, 10
        p(f's_mul_i32 s{sT1}, s{sJ}, {210 * 1024}')
        for a in range(4):
            if a < 3:
                p(f'''s_add_u32 s{sT5}, s{sW}, {3 - a}
s_and_b32 s{sT5}, s{sT5}, 3
s_mul_i32 s{sT5}, s{sT5}, 12288
s_add_u32 s{sT5}, s{sT5}, {a * 4096}''')
            else:
                p(f's_mov_b32 s{sT5}, {48 * 1024}')
            p(f'''s_add_u32 s{sG}, s{sT1}, s{sT5}
s_add_u32 s{sG}, s{sG}, {WIF + 42 * 1024}
s_add_u32 m0, s{sT5}, {106 * 1024}''')
            for n in range(4 if a < 3 else 1):
                p(f'buffer_load_dwordx4 {vr(vL16)}, {srd(sWS)}, s{sG} offen{off(n * 1024)} sc1 lds', tokw=['z2b'])
        p(f'''s_lshr_b32 s{sT0}, s{sRT}, 1
s_lshl_b32 s{sT0}, s{sT0}, 1
s_add_u32 s{sT0}, s{sT0}, s{sCH}
s_lshl_b32 s{sT0}, s{sT0}, 7
s_add_u32 s{sT0}, s{sT0}, {CNT + C_S2 * 128}
v_mov_b32 {vr(vA)}, s{sT0}
s_lshl_b32 s{sT0}, s{sRT}, 14
s_add_u32 s{sT0}, s{sT0}, {OF}''')
        for g in range(4):
            p(f's_add_u32 s{sT2}, s{sJ}, {g}' if self.c.rot36 else f's_mov_b32 s{sT2}, {g}')
            p(f's_and_b32 s{sT2}, s{sT2}, 3\ns_lshl_b32 s{sT2}, s{sT2}, 12\ns_add_u32 s{sA0 + g}, s{sT2}, s{sT0}')
        self.poll(vA, 16)
        self.stamp(8)
        def old(ks):
            return f'buffer_load_dwordx4 {vr(OB + 4 * ks, 4)}, {vr(vL16)}, {srd(sWS)}, s{sA0 + ks // 4} offen' \
                   f'{off(1024 * (ks % 4))} sc1'
        for ks in range(8):
            p(old(ks))
        p(f'''s_mul_i32 s{sT0}, s{sRT}, 14336
s_mul_i32 s{sT2}, s{sJ}, {7 * 256}
s_add_u32 s{sT0}, s{sT0}, s{sT2}
s_add_u32 s{sT0}, s{sT0}, {HF}
v_cmp_eq_u32 vcc, 3, {vr(vQ)}
v_mov_b32 {vr(vB)}, {OOR}
v_cndmask_b32 {vr(vB)}, {vr(vL16)}, {vr(vB)}, vcc''')
        self.gemm_lds(16, 4, lambda ks, ct: (ks * 4 + ct) * 1024, lambda ks: vr(OB + 4 * ks, 4),
                      lambda ct: ACC + 4 * ct, RING, 8, True, side={4 * ks: [old(ks + 8)] for ks in range(8)})
        for k in range(8):
            x = vXR + k
            a = ACC + 2 * k
            p(f'''v_lshlrev_b32 {vr(t)}, 16, {vr(x)}
v_and_b32 {vr(t + 1)}, 0xffff0000, {vr(x)}
v_pk_add_f32 {vr(a, 2)}, {vr(a, 2)}, {vr(t, 2)}
v_cvt_pk_bf16_f32 {vr(x)}, {vr(a)}, {vr(a + 1)}''')
            if k == 3:
                p(f'buffer_store_dwordx4 {vr(vXR, 4)}, {vr(vL16)}, {srd(sWS)}, s{sT0} offen sc1', tokw=['st3'])
        p(f'buffer_store_dwordx4 {vr(vXR + 4, 4)}, {vr(vB)}, {srd(sWS)}, s{sT0} offen offset:1024 sc1', tokw=['st3'])
        p(f'''s_lshl_b32 s{sT0}, s{sRT}, 8
s_add_u32 s{sT0}, s{sT0}, {CNT + C_S3 * 128}
v_lshlrev_b32 {vr(vA)}, 7, {vr(vL)}
v_add_u32 {vr(vA)}, s{sT0}, {vr(vA)}''')
        p.need('st3')
        self.arrive(vA, 3)
        self.stamp(9)
        p('s_barrier')

    def phase4(self):
        p = self.p
        HB, RING, Z2, Z1 = 16, 80, 112, 140
        ONES, NA, G, SA, RS = 172, 176, 180, 192, 200
        vA, vPerm, vS, vZ, vZo, vP4 = 7, 8, 9, 12, 13, 14
        t = 10
        K = 1024

        def z2addr(ks, ct):
            return (64 * K + (ks * 7 + ct) * K) if ks < 13 else ((ks - 13) * 7 + ct) * K

        def z1addr(ks, ct):
            return (14 * K + (ks * 7 + ct) * K) if ks < 7 else 64 * K + ((ks - 7) * 7 + ct) * K
        p(f's_mul_i32 s{sT1}, s{sJ}, {210 * K}')
        self.emit_groups(self.dma_list(sT1, WIF + 91 * K, 0, 63, 'z1a'))
        p(f'''s_lshl_b32 s{sT0}, s{sRT}, 1
s_add_u32 s{sT0}, s{sT0}, s{sCH}
s_lshl_b32 s{sT0}, s{sT0}, 7
s_add_u32 s{sT0}, s{sT0}, {CNT + C_S3 * 128}
v_mov_b32 {vr(vA)}, s{sT0}
s_mul_i32 s{sT0}, s{sRT}, 14336
s_add_u32 s{sT0}, s{sT0}, {HF}''')
        for r in range(4):
            p(f'v_mov_b32 {vr(ONES + r)}, 0x3f803f80')
        k1 = -2.0 * math.sqrt(2.0 / math.pi) * math.log2(math.e)
        p(f'''v_mov_b32 v168, {hx(k1 * 0.044715)}
v_mov_b32 v169, {hx(k1 * 0.044715)}
v_mov_b32 v170, {hx(k1)}
v_mov_b32 v171, {hx(k1)}
v_mov_b32 {vr(HB + 58)}, 0
v_mov_b32 {vr(HB + 59)}, 0
v_lshlrev_b32 {vr(vP4)}, 4, {vr(vQ)}
v_cmp_gt_u32 {sp(sM2)}, 2, {vr(vQ)}''')
        self.ln_masks(vPerm)
        for g in range(4):
            p(f's_add_u32 s{sA0 + g}, s{sT0}, {4096 * g}')
        p.need('z2b', 'z1a')
        p('s_barrier')
        self.poll(vA, 8)
        self.stamp(10)

        def hld(ks):
            return f'buffer_load_dwordx4 {vr(HB + 4 * ks, 4)}, {vr(vL16)}, {srd(sWS)}, s{sA0 + ks // 4} offen' \
                   f'{off((ks % 4) * K)} sc1'
        for ks in range(8):
            p(hld(ks))
        pre = {}
        for ks in range(7):
            pre[ks] = []
            for k2 in (2 * ks, 2 * ks + 1):
                h = vr(HB + 4 * k2, 4)
                pre[ks] += [mf16(SA, vr(ONES, 4), h, None if k2 == 0 else SA),
                            mf16(SA + 4, h, h, None if k2 == 0 else SA + 4)]
        fill = self.ln_finish(SA, SA + 4, NA, t, vPerm)
        E = HB + 56
        fill += [f'v_cvt_pk_bf16_f32 {vr(E)}, {vr(NA + 1)}, {vr(NA + 1)}',
                 f'v_and_b32 {vr(t)}, 0xffff0000, {vr(E)}',
                 f'v_sub_f32 {vr(t)}, {vr(NA + 1)}, {vr(t)}',
                 f'v_cvt_pk_bf16_f32 {vr(E)}, {vr(NA + 1)}, {vr(t)}',
                 f'v_cndmask_b32 {vr(E)}, 0, {vr(E)}, {sp(sM2)}',
                 f'v_mov_b32 {vr(E + 1)}, {vr(E)}']
        fill += [f'ds_bpermute_b32 {vr(RS + r)}, {vr(vP4)}, {vr(NA)}{off(4 * r)}' for r in range(4)]

        def bar(tok):
            def f():
                p.need(tok)
                p('s_barrier')
            return f
        self.gemm_lds(15, 7, z2addr, lambda ks: vr(HB + 4 * ks, 4), lambda ct: Z2 + 4 * ct, RING, 8, False,
                      fill=fill, per=0.5, fstart=52, pre=pre, side={3 * n: [hld(8 + n)] for n in range(6)})
        p('s_barrier')
        self.stamp(12)
        p(f's_mul_i32 s{sT2}, s{sJ}, {112 * K}\ns_add_u32 s{sT2}, s{sT2}, {WUF}')
        d = self.dma_list(sT1, WIF + (105 + 49) * K, 64 * K, 56, 'z1b')
        g = self.gelu(list(range(Z2, Z2 + 28)), G, lambda n: vr(RS + 2 * (n % 2), 2))
        p.add(interleave(g, [list(x) for x in d], per=len(d) / float(len(g)) + 0.01))
        SS, SQ = G, G + 4
        for ct in range(7):
            for h in range(2):
                z = vr(Z2 + 4 * ct + 2 * h, 2)
                if ct == 0:
                    p(f'v_pk_mul_f32 {vr(SQ + 2 * h, 2)}, {z}, {z}')
                else:
                    p(f'v_pk_fma_f32 {vr(SQ + 2 * h, 2)}, {z}, {z}, {vr(SQ + 2 * h, 2)}')
                    a = vr(Z2 + 2 * h, 2) if ct == 1 else vr(SS + 2 * h, 2)
                    p(f'v_pk_add_f32 {vr(SS + 2 * h, 2)}, {z}, {a}')
        for sh in (8, 4, 2, 1):
            for r in range(8):
                p(f'v_add_f32_dpp {vr(G + r)}, {vr(G + r)}, {vr(G + r)} row_ror:{sh} row_mask:0xf bank_mask:0xf')
        PB = G + 8
        p(f'''v_cndmask_b32 {vr(PB)}, {vr(SS)}, {vr(SS + 2)}, {sp(sM0)}
v_cndmask_b32 {vr(PB + 1)}, {vr(SQ)}, {vr(SQ + 2)}, {sp(sM0)}
v_cndmask_b32 {vr(PB + 2)}, {vr(SS + 1)}, {vr(SS + 3)}, {sp(sM0)}
v_cndmask_b32 {vr(PB + 3)}, {vr(SQ + 1)}, {vr(SQ + 3)}, {sp(sM0)}
v_lshlrev_b32 {vr(vS)}, 5, {vr(vQ)}
v_lshl_add_u32 {vr(vA)}, {vr(vC)}, 4, {vr(vS)}
s_lshl_b32 s{sT0}, s{sRT}, 10
s_add_u32 s{sT0}, s{sT0}, {ST}
s_lshl_b32 s{sT3}, s{sJ}, 7
s_add_u32 s{sT3}, s{sT3}, s{sT0}''')
        for r in range(4):
            p(f'v_min_u32 {vr(PB + r)}, -2, {vr(PB + r)}')
        p(f's_mov_b32 exec_lo, 0x00030003\ns_mov_b32 exec_hi, 0x00030003')
        p(f'buffer_store_dwordx4 {vr(PB, 4)}, {vr(vA)}, {srd(sWS)}, s{sT3} offen sc1')
        p('s_mov_b64 exec, -1')
        self.stamp(13)
        p(f'''v_and_b32 {vr(vA)}, 7, {vr(vC)}
v_lshl_add_u32 {vr(vS)}, {vr(vA)}, 7, {vr(vS)}
v_lshrrev_b32 {vr(vA)}, 3, {vr(vC)}
v_lshl_add_u32 {vr(vS)}, {vr(vA)}, 4, {vr(vS)}''')
        d = [list(x) for x in self.dma_wu(0, 8, 120 * K, 'wua')]
        self.gemm_lds(15, 7, z1addr, lambda ks: vr(HB + 4 * ks, 4), lambda ct: Z1 + 4 * ct, RING, 8, True,
                      hooks={7: bar('z1b')}, fill=d, per=0.25)
        self.stamp(14)
        L, Dn = p.label('st'), p.label('std')
        p(f'{L}:')
        p(f'buffer_load_dwordx4 {vr(PB, 4)}, {vr(vS)}, {srd(sWS)}, s{sT0} offen sc1')
        p(f'''v_max3_u32 {vr(t)}, {vr(PB)}, {vr(PB + 1)}, {vr(PB + 2)}
v_max_u32 {vr(t)}, {vr(t)}, {vr(PB + 3)}
v_cmp_eq_u32 vcc, -1, {vr(t)}
s_cbranch_vccz {Dn}
s_sub_u32 s{sTO}, s{sTO}, 1
s_cmp_lg_u32 s{sTO}, 0
s_cbranch_scc1 {L}
s_branch .Lexit
{Dn}:''')
        self.stamp(15)
        for m in ('quad_perm:[1,0,3,2]', 'quad_perm:[2,3,0,1]', 'row_half_mirror'):
            for r in range(4):
                p(f'v_add_f32_dpp {vr(PB + r)}, {vr(PB + r)}, {vr(PB + r)} {m} row_mask:0xf bank_mask:0xf')
        for r in range(2):
            s, q = PB + 2 * r, PB + 2 * r + 1
            p(f'''v_mul_f32 {vr(s)}, {hx(1.0 / 896)}, {vr(s)}
v_mul_f32 {vr(t + r)}, {vr(s)}, {vr(s)}
v_sub_f32 {vr(t + r)}, {hx(1e-5)}, {vr(t + r)}
v_fmac_f32 {vr(t + r)}, {hx(1.0 / 896)}, {vr(q)}
v_max_f32 {vr(t + r)}, {hx(1e-5)}, {vr(t + r)}
v_rsq_f32 {vr(q)}, {vr(t + r)}''')
        for r in range(2):
            s, q = PB + 2 * r, PB + 2 * r + 1
            p(f'v_mul_f32 {vr(s)}, {vr(s)}, {vr(q)}')
            p(f'v_sub_f32 {vr(s)}, 0, {vr(s)}')
        RA, RB = G, G + 4
        for r in range(4):
            p(f'v_mov_b32 {vr(RA + r)}, {vr(PB + 2 * (r % 2) + 1)}')
            p(f'v_mov_b32 {vr(RB + r)}, {vr(PB + 2 * (r % 2))}')
        for r in range(4):
            bm = '0xc' if r < 2 else '0x3'
            p(f'v_mov_b32_dpp {vr(RA + r)}, {vr(PB + 2 * (r % 2) + 1)} row_ror:8 row_mask:0xf bank_mask:{bm}')
            p(f'v_mov_b32_dpp {vr(RB + r)}, {vr(PB + 2 * (r % 2))} row_ror:8 row_mask:0xf bank_mask:{bm}')
        p(f'''s_lshl_b32 s{sT0}, s{sJ}, 6
s_lshr_b32 s{sT3}, s{sRT}, 1
s_add_u32 s{sT0}, s{sT0}, s{sT3}
s_mul_i32 s{sT0}, s{sT0}, 7168
s_and_b32 s{sT3}, s{sW}, 1
s_lshl_b32 s{sT3}, s{sT3}, 9
s_add_u32 s{sT0}, s{sT0}, s{sT3}
s_add_u32 s{sT0}, s{sT0}, {ZF}
s_add_u32 s{sT3}, s{sT0}, 4096
v_and_b32 {vr(vA)}, 1, {vr(vQ)}
v_cmp_ne_u32 vcc, 0, {vr(vA)}
v_lshlrev_b32 {vr(vZ)}, 10, {vr(vA)}
v_lshrrev_b32 {vr(vA)}, 1, {vr(vQ)}
v_lshl_add_u32 {vr(vZ)}, {vr(vA)}, 8, {vr(vZ)}
v_lshl_add_u32 {vr(vZ)}, {vr(vC)}, 4, {vr(vZ)}
v_mov_b32 {vr(vZo)}, {OOR}
v_cndmask_b32 {vr(vZo)}, {vr(vZ)}, {vr(vZo)}, vcc''')
        D = RING
        for a in range(4):
            d = D + 4 * a
            for e in range(2):
                ct = 2 * a + e
                if ct < 7:
                    for h in range(2):
                        z = Z2 + 4 * ct + 2 * h
                        p(f'v_pk_fma_f32 {vr(z, 2)}, {vr(z, 2)}, {vr(RA + 2 * h, 2)}, {vr(RB + 2 * h, 2)}')
                    for h in range(2):
                        z = Z2 + 4 * ct + 2 * h
                        p(f'v_cvt_pk_bf16_f32 {vr(d + 2 * e + h)}, {vr(z)}, {vr(z + 1)}')
            p(f'v_permlane16_swap_b32 {vr(d)}, {vr(d + 2)}')
            p(f'v_permlane16_swap_b32 {vr(d + 1)}, {vr(d + 3)}')
            p(f'buffer_store_dwordx4 {vr(d, 4)}, {vr(vZ if a < 3 else vZo)}, {srd(sWS)}, s{sT0 if a < 2 else sT3} offen'
              f'{off((a % 2) * 2048)} sc1', tokw=['st5'])
        p(f'''s_lshl_b32 s{sT0}, s{sJ}, 2
s_add_u32 s{sT0}, s{sT0}, s{sRQ}
s_lshl_b32 s{sT0}, s{sT0}, 9
s_add_u32 s{sT0}, s{sT0}, {CNT + C_S5 * 128}
v_lshlrev_b32 {vr(vA)}, 7, {vr(vL)}
v_add_u32 {vr(vA)}, s{sT0}, {vr(vA)}''')
        p.need('st5')
        p('s_barrier')
        Ls = p.label('noarr')
        p(f's_cmp_lg_u32 s{sW}, 0\ns_cbranch_scc1 {Ls}')
        self.arrive(vA, 15)
        p(f'{Ls}:')
        self.stamp(16)
        d = self.dma_wu(8, 9, 84 * K, 'wub')
        g = self.gelu(list(range(Z1, Z1 + 28)), G, lambda n: f'{vr(NA, 2)} op_sel_hi:[1,0]')
        p.add(interleave(g, [list(x) for x in d], per=len(d) / float(len(g)) + 0.01))
        for k in range(14):
            p(f'v_cvt_pk_bf16_f32 {vr(vZ1 + k)}, {vr(Z1 + 2 * k)}, {vr(Z1 + 2 * k + 1)}')

    def phase5(self):
        p = self.p
        ZB, ACC = 16, 100
        vA, vW0, vY, vYo = 7, 8, 11, 12
        t = 14
        K = 1024
        acc = lambda a, ct: ACC + (a * 7 + ct) * 4
        zb = lambda ks, ct: ZB + ((ks % 3) * 7 + ct) * 4
        p(f'''s_lshl_b32 s{sT0}, s{sJ}, 2
s_add_u32 s{sT0}, s{sT0}, s{sW}
s_lshl_b32 s{sT0}, s{sT0}, 2
s_add_u32 s{sT0}, s{sT0}, s{sRQ}
s_lshl_b32 s{sT0}, s{sT0}, 7
s_add_u32 s{sT0}, s{sT0}, {CNT + C_S5 * 128}
v_mov_b32 {vr(vA)}, s{sT0}
s_lshl_b32 s{sT0}, s{sJ}, 2
s_add_u32 s{sT0}, s{sT0}, s{sW}
s_mul_i32 s{sT0}, s{sT0}, {16 * 7168}
s_add_u32 s{sA2}, s{sT0}, {ZF}
s_mul_i32 s{sA3}, s{sK2 + 1}, {7168 * 4 // 256}
s_add_u32 s{sA0}, s{sA2}, s{sA3}
s_add_u32 s{sA1}, s{sA0}, 4096
s_and_b32 s{sT0}, s{sI}, 7
s_lshl_b32 s{sT0}, s{sT0}, 7
s_add_u32 s{sT0}, s{sT0}, s{sA0}
s_add_u32 s{sK1}, s{sWS}, s{sT0}
s_addc_u32 s{sK1 + 1}, s{sWS + 1}, 0''')
        for a in range(3):
            p(f'''s_add_u32 s{sT0}, s{sW}, {1 + a}
s_and_b32 s{sT0}, s{sT0}, 3
s_mul_i32 s{sT0}, s{sT0}, {3 * 7168}
s_add_u32 s{sT0}, s{sT0}, {a * 7168}
v_add_u32 {vr(vW0 + a)}, s{sT0}, {vr(vL16)}''')
        self.stamp(17)
        self.poll(vA, 8)
        self.stamp(18)

        def zl(ks, ct):
            o = []
            if ct == 0 and ks:
                o += [f's_add_u32 s{sA3}, s{sA3}, 7168']
                if ks % 4 == 0:
                    o += [f's_cmp_eq_u32 s{sA3}, {16 * 7168}', f's_cselect_b32 s{sA3}, 0, s{sA3}']
                o += [f's_add_u32 s{sA0}, s{sA2}, s{sA3}']
            if ct == 4 and ks:
                o += [f's_add_u32 s{sA1}, s{sA0}, 4096']
            o.append(f'buffer_load_dwordx4 {vr(zb(ks, ct), 4)}, {vr(vL16)}, {srd(sWS)}, s{sA0 if ct < 4 else sA1} offen'
                     f'{off((ct % 4) * K)} sc1')
            return o
        for ks in range(3):
            for ct in range(7):
                p.add(zl(ks, ct))
        mm = lambda a, ks, ct: mf16(acc(a, ct), vr(zb(ks, ct), 4), ar((a * 16 + ks) * 4, 4),
                                    None if ks == 0 else acc(a, ct))
        PF = 6
        if self.c.spf:
            for ks in range(3, PF):
                for ct in range(7):
                    p(f's_load_dword s100, {sp(sK1)}, {ks * 7168 + ct * 1024} ; nodst')
        for ks in range(13):
            if self.c.fine == 5 and ks % 2 == 1:
                self.stamp(24 + ks // 2)
            for ct in range(7):
                for a in range(4):
                    p(mm(a, ks, ct))
                    if a == 1 and self.c.spf and ks + PF < 16:
                        p(f's_load_dword s100, {sp(sK1)}, {(ks + PF) * 7168 + ct * 1024} ; nodst')
                p.add(zl(ks + 3, ct))
        if self.c.spf:
            p('s_waitcnt lgkmcnt(0)')
        for a in range(4):
            w = []
            if a:
                w = [(f'ds_write_b128 {vr(vW0 + a - 1)}, {vr(acc(a - 1, ct), 4)}{off(ct * K)}', ['pw'])
                     for ct in range(7)]
            n = 0
            for ks in (13, 14, 15):
                for ct in range(7):
                    p(mm(a, ks, ct))
                    n += 1
                    if w and n >= 2 and (n % 3) == 2:
                        p.add(w.pop(0))
            p.add(w)
        self.stamp(19)
        p(f's_mul_i32 s{sT0}, s{sW}, {3 * 7168}\nv_add_u32 {vr(vW0)}, s{sT0}, {vr(vL16)}')
        p(f'''s_mul_i32 s{sT0}, s{sRT}, 28672
s_mul_i32 s{sT1}, s{sJ}, {14 * 256}
s_add_u32 s{sT0}, s{sT0}, s{sT1}
s_add_u32 s{sT0}, s{sT0}, {YF}
v_and_b32 {vr(vA)}, 1, {vr(vQ)}
v_cmp_ne_u32 vcc, 0, {vr(vA)}
v_lshrrev_b32 {vr(vA)}, 1, {vr(vQ)}
v_lshlrev_b32 {vr(vYo)}, 8, {vr(vA)}
v_lshl_add_u32 {vr(vYo)}, {vr(vC)}, 4, {vr(vYo)}
v_mov_b32 {vr(vA)}, {OOR}
v_cndmask_b32 {vr(vYo)}, {vr(vYo)}, {vr(vA)}, vcc
v_lshlrev_b32 {vr(vBS)}, 16, {vr(vBS)}
v_mov_b32 {vr(t)}, {vr(vBS)}
v_mov_b32 {vr(t + 1)}, {vr(vBS)}''')
        p.need('pw', 'wua', 'wub')
        p('s_barrier')
        for a in range(3):
            for ct in range(7):
                p(f'ds_read_b128 {vr(ZB + (a * 7 + ct) * 4, 4)}, {vr(vW0)}{off((a * 7 + ct) * K)}', tokw=['pr'])
        G = acc(3, 0)
        for k in range(14):
            p(f'v_pk_add_f32 {vr(G + 2 * k, 2)}, {vr(G + 2 * k, 2)}, {vr(t, 2)}')
        for a in range(3):
            for k in range(14):
                p(f'v_pk_add_f32 {vr(G + 2 * k, 2)}, {vr(G + 2 * k, 2)}, {vr(ZB + a * 28 + 2 * k, 2)}')
        D = ACC
        for k in range(14):
            u = ZB + 2 * (k % 4)
            p(f'''v_lshlrev_b32 {vr(u)}, 16, {vr(vZ1 + k)}
v_and_b32 {vr(u + 1)}, 0xffff0000, {vr(vZ1 + k)}
v_pk_mul_f32 {vr(G + 2 * k, 2)}, {vr(G + 2 * k, 2)}, {vr(u, 2)}
v_cvt_pk_bf16_f32 {vr(D + k)}, {vr(G + 2 * k)}, {vr(G + 2 * k + 1)}''')
            if k % 4 == 3:
                a = k // 4
                p(f'buffer_store_dwordx4 {vr(D + 4 * a, 4)}, {vr(vL16)}, {srd(sWS)}, s{sT0} offen{off(1024 * a)} sc1',
                  tokw=['st6'])
        p(f'''v_mov_b32 {vr(D + 14)}, {vr(D + 12)}
v_mov_b32 {vr(D + 15)}, {vr(D + 13)}
v_permlane16_swap_b32 {vr(D + 12)}, {vr(D + 14)}
v_permlane16_swap_b32 {vr(D + 13)}, {vr(D + 15)}''')
        p(f'buffer_store_dwordx4 {vr(D + 12, 4)}, {vr(vYo)}, {srd(sWS)}, s{sT0} offen offset:3072 sc1', tokw=['st6'])
        p(f'''s_lshl_b32 s{sT0}, s{sRT}, 8
s_add_u32 s{sT0}, s{sT0}, {CNT + C_S6 * 128}
v_lshlrev_b32 {vr(vA)}, 7, {vr(vL)}
v_add_u32 {vr(vA)}, s{sT0}, {vr(vA)}''')
        p.need('st6')
        self.arrive(vA, 3)
        self.stamp(20)
        p.need('pr')
        p('s_barrier')

    def phase6(self):
        p = self.p
        YB, RING, ACC = 16, 128, 160
        vA, vO, vOo, t = 7, 8, 9, 10
        K = 1024

        def wuaddr(ks, ct):
            if ks < 8:
                return 120 * K + (ks * 4 + ct) * K
            if ks < 17:
                return 84 * K + ((ks - 8) * 4 + ct) * K
            return ((ks - 17) * 4 + ct) * K
        p(f's_mul_i32 s{sT2}, s{sJ}, {112 * K}\ns_add_u32 s{sT2}, s{sT2}, {WUF}')
        self.emit_groups(self.dma_wu(17, 11, 0, 'wuc'))
        p(f'''s_lshl_b32 s{sT0}, s{sRT}, 1
s_add_u32 s{sT0}, s{sT0}, s{sCH}
s_lshl_b32 s{sT0}, s{sT0}, 7
s_add_u32 s{sT0}, s{sT0}, {CNT + C_S6 * 128}
v_mov_b32 {vr(vA)}, s{sT0}
s_mul_i32 s{sT0}, s{sRT}, 28672
s_add_u32 s{sT0}, s{sT0}, {YF}
s_mul_i32 s{sT1}, s{sRT}, {16 * 896}
s_mul_i32 s{sT3}, s{sJ}, 112
s_add_u32 s{sT1}, s{sT1}, s{sT3}
v_mul_u32_u24 {vr(vO)}, 896, {vr(vC)}
v_lshl_add_u32 {vr(vO)}, {vr(vQ)}, 4, {vr(vO)}
v_cmp_eq_u32 vcc, 3, {vr(vQ)}
v_mov_b32 {vr(vOo)}, {OOR}
v_cndmask_b32 {vr(vOo)}, {vr(vO)}, {vr(vOo)}, vcc''')
        for g in range(4):
            p(f's_add_u32 s{sT2}, s{sJ}, {g}' if self.c.rot36 else f's_mov_b32 s{sT2}, {g}')
            p(f's_and_b32 s{sT2}, s{sT2}, 3\ns_mul_i32 s{sT2}, s{sT2}, 7168\ns_add_u32 s{88 + 2 * g}, s{sT2}, s{sT0}')
            p(f's_add_u32 s{89 + 2 * g}, s{88 + 2 * g}, 4096')
        p.need('wuc')
        p('s_barrier')
        self.poll(vA, 8)
        self.stamp(21)

        def yld(ks):
            g, r = ks // 7, ks % 7
            return f'buffer_load_dwordx4 {vr(YB + 4 * ks, 4)}, {vr(vL16)}, {srd(sWS)}, s{88 + 2 * g + r // 4} offen' \
                   f'{off((r % 4) * K)} sc1'
        for ks in range(10):
            p(yld(ks))
        self.gemm_lds(28, 4, wuaddr, lambda ks: vr(YB + 4 * ks, 4), lambda ct: ACC + 4 * ct, RING, 8, True,
                      side={4 * ks: [yld(ks + 10)] for ks in range(18)})
        self.stamp(22)
        for k in range(8):
            x = vXR + k
            a = ACC + 2 * k
            p(f'''v_lshlrev_b32 {vr(t)}, 16, {vr(x)}
v_and_b32 {vr(t + 1)}, 0xffff0000, {vr(x)}
v_pk_add_f32 {vr(a, 2)}, {vr(a, 2)}, {vr(t, 2)}
v_cvt_pk_bf16_f32 {vr(x)}, {vr(a)}, {vr(a + 1)}''')
            if k == 3:
                p(f'buffer_store_dwordx4 {vr(vXR, 4)}, {vr(vO)}, {srd(sOUT)}, s{sT1} offen')
        p(f'buffer_store_dwordx4 {vr(vXR + 4, 4)}, {vr(vOo)}, {srd(sOUT)}, s{sT1} offen offset:64')

    def build(self):
        p = self.p
        c = self.c
        self.truemax = None
        self.prologue()
        self.phase1()
        self.spare()
        self.attention()
        for n, ph in ((3, self.phase3), (4, self.phase4), (5, self.phase5), (6, self.phase6)):
            if c.stop >= n and c.stop > 1:
                ph()
        p('.Lexit:')
        if c.diag:
            p('s_waitcnt vmcnt(0)')
            self.stamp(23)
            p(f'''s_lshl_b32 s{sT0}, s2, 2
s_add_u32 s{sT0}, s{sT0}, s{sW}
s_lshl_b32 s{sT0}, s{sT0}, 8
s_add_u32 s{sT0}, s{sT0}, {STAMP}
v_lshlrev_b32 {vr(vT)}, 2, {vr(vL)}
buffer_store_dword {vr(vST)}, {vr(vT)}, {srd(sWS)}, s{sT0} offen''')
        p('s_endpgm')
        if self.truemax:
            self.truemax()
        p('.Lend:')
        p('s_endpgm')
        p.insert_waits()
        nn = p.insert_nops()
        hdr = open('sequential_preLN__softmax_full_mha__mixer_gmlp__prompt.s.ref').read()
        hdr = hdr[:hdr.index('; Override launch')]
        txt = hdr + '; @launch grid=(256,1,1) block=(256,1,1) lds=163840\n'
        txt += f'''.amdgcn_target "amdgcn-amd-amdhsa--gfx950"
.text
.globl {NAME}
.p2align 8
.type {NAME},@function
{NAME}:
'''
        txt += p.text()
        txt += f'''.section .rodata,"a"
.p2align 6
.amdhsa_kernel {NAME}
  .amdhsa_next_free_vgpr 512
  .amdhsa_next_free_sgpr 102
  .amdhsa_accum_offset 256
  .amdhsa_group_segment_fixed_size 0
  .amdhsa_kernarg_size 88
  .amdhsa_user_sgpr_count 2
  .amdhsa_user_sgpr_kernarg_segment_ptr 1
  .amdhsa_system_sgpr_workgroup_id_x 1
  .amdhsa_float_denorm_mode_32 3
  .amdhsa_ieee_mode 0
.end_amdhsa_kernel
'''
        return txt, nn


def generate(**kw):
    c = Cfg()
    for k, v in kw.items():
        assert hasattr(c, k), k
        setattr(c, k, v)
    return Gen(c).build()


if __name__ == '__main__':
    out = sys.argv[1]
    kw = {}
    for a in sys.argv[2:]:
        k, v = a.split('=')
        kw[k] = eval(v)
    txt, nn = generate(**kw)
    open(out, 'w').write(txt)
    print('written', out, len(txt), 'bytes; nop states inserted:', nn)
```

```python
import sys, math, struct
sys.path.insert(0, 'work')
from asmlib import *

NAME = 'sequential_preLN__softmax_full_mha__mixer_gmlp__prompt_kernel'


class Cfg:
    diag = False
    stop = 99
    force_fb = False
    touch = False
    spf = False
    probe = -1
    fine = 0
    rot1 = True
    rotkv = True
    rot5 = True
    rot36 = True


def f2u(x):
    return struct.unpack('<I', struct.pack('<f', x))[0]


def hx(x):
    return hex(f2u(x))


CNT = 0x000000
ST = 0x020000
QF = 0x100000
KV = 0x300000
OF = 0x700000
HF = 0x900000
ZF = 0xB00000
YF = 0xF00000
WOF = 0x1300000
WIF = 0x1400000
WUF = 0x1600000
STAMP = 0x1700000
WS_SIZE = 0x1800000
OOR = 0x7F000000
C_S1, C_S2, C_S3, C_S6, C_S5, C_RDY, C_END = 0, 224, 352, 608, 864, 992, 1024

sX, sWQ, sWS, sSP, sBS, sOUT, sDBG, sWO, sWI, sWU = 8, 12, 16, 20, 24, 28, 32, 36, 40, 44
sW, sI, sJ, sQB, sHD, sXC, sIDX, sRB, sCB, sRQ, sCH = 48, 49, 50, 51, 52, 53, 54, 55, 56, 57, 58
sTO, sFB, sRT = 59, 60, 61
sT0, sT1, sT2, sT3, sT4, sT5 = 62, 63, 64, 65, 66, 67
sM0, sM1, sM2 = 68, 70, 72
sA0, sA1, sA2, sA3 = 74, 75, 76, 77
sKV, sG, sL = 78, 79, 80
sK1, sK2 = 82, 84
sPC = 86
sRB4 = 4
sRA, sRAd, sRBs, sRBd, sRBj = 94, 95, 3, 81, 101
sTM = 96

vL, vL16, vC, vQ, vA1, vA2 = 0, 1, 2, 3, 4, 5
vT = 6
vXR = 216
vBS = 224
vZ1 = 226
vONE = 225
vST = 255


def srd(n):
    return f's[{n}:{n + 3}]'


def vr(b, n=1):
    return f'v{b}' if n == 1 else f'v[{b}:{b + n - 1}]'


def ar(b, n=1):
    return f'a{b}' if n == 1 else f'a[{b}:{b + n - 1}]'


def sp(n):
    return f's[{n}:{n + 1}]'


def mf16(d, a, b, c):
    cs = '0' if c is None else vr(c, 4)
    return f'v_mfma_f32_16x16x32_bf16 {vr(d, 4)}, {a}, {b}, {cs}'


def mf32(d, a, b, c):
    cs = '0' if c is None else vr(c, 16)
    return f'v_mfma_f32_32x32x16_bf16 {vr(d, 16)}, {vr(a, 4)}, {vr(b, 4)}, {cs}'


def off(o):
    return f' offset:{o}' if o else ''


def lds_rd(dst, byte):
    base = (vL16, vA1, vA2)[byte >> 16]
    return f'ds_read_b128 {vr(dst, 4)}, {vr(base)}{off(byte & 0xffff)}'


class Gen:
    def __init__(self, cfg):
        self.c = cfg
        self.p = Prog()
        self.nstamp = 0

    def stamp(self, n):
        if self.c.probe == n:
            self.p(f's_memrealtime {sp(sTM)}\ns_waitcnt lgkmcnt(0)')
        if self.c.diag:
            self.p(f's_memrealtime {sp(sTM)}\ns_memtime {sp(sTM + 2)}\ns_waitcnt lgkmcnt(0)\n'
                   f'v_writelane_b32 {vr(vST)}, s{sTM}, {n}\nv_writelane_b32 {vr(vST)}, s{sTM + 2}, {32 + n}')

    def finish(self):
        self.p('s_branch .Lexit')

    def poll(self, vaddr, expect, srdn=sWS, vtmp=vT):
        p = self.p
        L = p.label('poll')
        D = p.label('got')
        p(f'{L}:')
        p(f'buffer_load_dword {vr(vtmp)}, {vr(vaddr)}, {srd(srdn)}, 0 offen sc1')
        p(f'v_cmp_gt_u32 vcc, {expect}, {vr(vtmp)}')
        p(f's_cbranch_vccz {D}')
        p(f's_sub_u32 s{sTO}, s{sTO}, 1\ns_cmp_lg_u32 s{sTO}, 0\ns_cbranch_scc1 {L}')
        p('s_branch .Lexit')
        p(f'{D}:')

    def check(self, vval, vaddr, expect, srdn=sWS):
        p = self.p
        D = p.label('ok')
        p(f'v_cmp_gt_u32 vcc, {expect}, {vr(vval)}')
        p(f's_cbranch_vccz {D}')
        self.poll(vaddr, expect, srdn, vval)
        p(f'{D}:')

    def arrive(self, vaddr, mask):
        p = self.p
        p(f's_mov_b64 exec, {mask}')
        p(f'buffer_atomic_add {vr(vONE)}, {vr(vaddr)}, {srd(sWS)}, 0 offen sc1')
        p('s_mov_b64 exec, -1')

    def dma_list(self, gsreg, gofs, ldsofs, nfrag, tok):
        k = (nfrag + 3) // 4
        out = []
        pre = [f's_mul_i32 s{sT5}, s{sW}, {k * 1024}',
               f's_min_u32 s{sT5}, s{sT5}, {(nfrag - k) * 1024}',
               f's_add_u32 s{sG}, s{gsreg}, s{sT5}',
               f's_add_u32 s{sL}, s{sT5}, {ldsofs}',
               f's_add_u32 s{sG}, s{sG}, {gofs}']
        out.append(pre)
        for n in range(k):
            g = []
            if n % 4 == 0:
                if n:
                    g += [f's_add_u32 s{sG}, s{sG}, 4096', f's_add_u32 s{sL}, s{sL}, 4096']
                g.append(f's_mov_b32 m0, s{sL}')
                out.append(g)
            out.append([(f'buffer_load_dwordx4 {vr(vL16)}, {srd(sWS)}, s{sG} offen{off((n % 4) * 1024)} sc1 lds',
                         [tok])])
        return out

    def dma_wu(self, n0, cnt, ldsofs, tok):
        k = (cnt + 3) // 4
        out = [[f's_mul_i32 s{sT5}, s{sW}, {k}', f's_min_u32 s{sT5}, s{sT5}, {cnt - k}'],
               [f's_lshl_b32 s{sL}, s{sT5}, 12', f's_add_u32 s{sL}, s{sL}, {ldsofs}'],
               [f's_and_b32 s{sG}, s{sJ}, 3' if self.c.rot36 else f's_mov_b32 s{sG}, 0', f's_mul_i32 s{sG}, s{sG}, 7'],
               [f's_add_u32 s{sT5}, s{sT5}, s{sG}', f's_add_u32 s{sT5}, s{sT5}, {n0}']]
        for n in range(k):
            g = []
            if n:
                g += [f's_add_u32 s{sT5}, s{sT5}, 1', f's_add_u32 s{sL}, s{sL}, 4096']
            g += [f's_sub_u32 s{sG}, s{sT5}, 28', f's_cmp_ge_u32 s{sT5}, 28', f's_cselect_b32 s{sG}, s{sG}, s{sT5}']
            out.append(g)
            out.append([f's_lshl_b32 s{sG}, s{sG}, 12', f's_add_u32 s{sG}, s{sG}, s{sT2}', f's_mov_b32 m0, s{sL}'])
            for e in range(4):
                out.append([(f'buffer_load_dwordx4 {vr(vL16)}, {srd(sWS)}, s{sG} offen{off(e * 1024)} sc1 lds', [tok])])
        return out

    def emit_groups(self, groups):
        for g in groups:
            self.p.add(list(g))

    def prologue(self):
        p = self.p
        p(f's_getpc_b64 {sp(sPC)}')
        p('.Lpc0:')
        p('s_cmp_ge_u32 s2, 256\ns_cbranch_scc1 .Lend')
        for reg, slot in ((sX, 0), (sWQ, 1), (sWS, 10), (sWO, 2), (sWI, 4), (sSP, 5), (sBS, 6), (sWU, 7), (sOUT, 8),
                          (sDBG, 9)):
            p(f's_load_dwordx2 {sp(reg)}, s[0:1], {slot * 8}')
        p(f'v_lshrrev_b32 {vr(vT)}, 6, v0')
        p(f'v_and_b32 {vr(vL)}, 63, v0')
        p(f'v_readfirstlane_b32 s{sW}, {vr(vT)}')
        for reg, size in ((sX, 1835008), (sWQ, 1204224), (sWS, WS_SIZE), (sWO, 401408), (sWI, 1605632),
                          (sSP, 8388608 + 4096), (sBS, 4096), (sWU, 802816), (sOUT, 1835008), (sDBG, 256)):
            p(f's_mov_b32 s{reg + 2}, {size}\ns_mov_b32 s{reg + 3}, 0x20000')
        p(f'''v_lshlrev_b32 {vr(vL16)}, 4, {vr(vL)}
v_and_b32 {vr(vC)}, 15, {vr(vL)}
v_lshrrev_b32 {vr(vQ)}, 4, {vr(vL)}
v_add_u32 {vr(vA1)}, 0x10000, {vr(vL16)}
v_add_u32 {vr(vA2)}, 0x20000, {vr(vL16)}
v_mov_b32 {vr(vONE)}, 1
s_and_b32 s{sXC}, s2, 7
s_lshr_b32 s{sIDX}, s2, 3
s_lshr_b32 s{sRQ}, s{sXC}, 1
s_and_b32 s{sCH}, s{sXC}, 1
s_mov_b32 s{sTO}, 200000
s_mov_b32 s{sFB}, 0''')
        p(f'''s_lshr_b32 s{sT0}, s{sIDX}, 2
s_lshl_b32 s{sI}, s{sRQ}, 3
s_add_u32 s{sI}, s{sI}, s{sT0}
s_and_b32 s{sT0}, s{sIDX}, 3
s_lshl_b32 s{sJ}, s{sCH}, 2
s_add_u32 s{sJ}, s{sJ}, s{sT0}
s_lshl_b32 s{sRT}, s{sI}, 2
s_add_u32 s{sRT}, s{sRT}, s{sW}''')
        p(f'''s_and_b32 s{sT0}, s{sIDX}, 1
s_lshl_b32 s{sHD}, s{sXC}, 1
s_add_u32 s{sHD}, s{sHD}, s{sT0}
s_lshr_b32 s{sQB}, s{sIDX}, 1''')
        p(f'''s_mul_i32 s{sT0}, s{sIDX}, 37
s_lshr_b32 s{sT0}, s{sT0}, 8
s_mul_i32 s{sT1}, s{sT0}, 7
s_sub_u32 s{sCB}, s{sIDX}, s{sT1}
s_lshl_b32 s{sRB}, s{sXC}, 2
s_add_u32 s{sRB}, s{sRB}, s{sT0}''')
        if self.c.diag:
            p(f'v_mov_b32 {vr(vST)}, 0')
        if self.c.probe >= 0:
            p(f's_memrealtime {sp(sTM)}')
        p('s_waitcnt lgkmcnt(0)')
        p(f's_sub_u32 s{sSP}, s{sSP}, 4096\ns_subb_u32 s{sSP + 1}, s{sSP + 1}, 0')
        self.stamp(0)
        if self.c.touch:
            p(f'''s_lshl_b32 s{sT0}, s{sIDX}, 2
s_add_u32 s{sT0}, s{sT0}, s{sW}
s_mul_i32 s{sT1}, s{sT0}, {74 * 128}
s_mul_i32 s{sT2}, s{sT0}, {14 * 128}
s_mul_i32 s{sT3}, s{sXC}, {256 * 896}
s_add_u32 s{sT2}, s{sT2}, s{sT3}
s_add_u32 s{sT3}, s{sT1}, 8192
v_lshlrev_b32 {vr(vT)}, 7, {vr(vL)}
s_mov_b64 exec, 0x3fff
buffer_load_dword v252, {vr(vT)}, {srd(sX)}, s{sT2} offen
s_mov_b64 exec, -1
buffer_load_dword v253, {vr(vT)}, {srd(sWQ)}, s{sT1} offen
s_mov_b64 exec, 0x3ff
buffer_load_dword v254, {vr(vT)}, {srd(sWQ)}, s{sT3} offen
s_mov_b64 exec, -1''')
        p(f's_cmp_ge_u32 s{sIDX}, 28\ns_cbranch_scc1 .Lspare')

    RST = 128 * 1024
    vRI, vRB, vRT0, vRT1, vRD2, vRD = 240, 241, 242, 243, 244, 196

    def r_setup(self):
        p = self.p
        t = 6
        vI, vB, R0, R1, D2 = self.vRI, self.vRB, self.vRT0, self.vRT1, self.vRD2
        p(f"""s_cmp_ge_u32 s{sRT}, 56
s_cselect_b32 s{sT0}, 1, 0
s_mul_i32 s{sT1}, s{sT0}, 56
s_sub_u32 s{sT1}, s{sRT}, s{sT1}
s_lshr_b32 s{sT1}, s{sT1}, 2
s_and_b32 s{sT2}, s{sRT}, 3
s_mul_i32 s{sRA}, s{sT1}, {32 * 3584}
s_mul_i32 s{sT3}, s{sJ}, 224
s_add_u32 s{sRA}, s{sRA}, s{sT3}
s_lshl_b32 s{sT3}, s{sT2}, 6
s_add_u32 s{sRA}, s{sRA}, s{sT3}
s_xor_b32 s{sT3}, s{sT0}, 1
s_mul_i32 s{sT3}, s{sT3}, 1792
s_add_u32 s{sRA}, s{sRA}, s{sT3}
s_lshl_b32 s{sRAd}, s{sJ}, 1
s_add_u32 s{sRAd}, s{sRAd}, s{sT0}
s_mul_i32 s{sRAd}, s{sRAd}, 105
s_mul_i32 s{sT3}, s{sT1}, 7
s_add_u32 s{sRAd}, s{sRAd}, s{sT3}
s_lshl_b32 s{sT3}, s{sT2}, 1
s_add_u32 s{sRAd}, s{sRAd}, s{sT3}
s_lshl_b32 s{sRAd}, s{sRAd}, 10
s_add_u32 s{sRAd}, s{sRAd}, {WIF}
s_cmp_ge_u32 s{sRT}, 112
s_cselect_b32 s{sRA}, {OOR}, s{sRA}
s_cselect_b32 s{sRAd}, {OOR}, s{sRAd}
s_cmp_eq_u32 s{sT2}, 3
s_cselect_b64 vcc, -1, 0
s_lshl_b32 s{sT4}, s{sW}, 12
s_add_u32 s{sT4}, s{sT4}, {self.RST}
v_and_b32 {vr(t + 1)}, 3, {vr(vC)}
v_add_u32 {vr(R0)}, s{sT4}, {vr(vL16)}
v_and_b32 {vr(t)}, 60, {vr(vL)}
v_lshrrev_b32 {vr(R1)}, 1, {vr(t + 1)}
v_add_u32 {vr(t)}, {vr(t)}, {vr(R1)}
v_lshlrev_b32 {vr(t)}, 4, {vr(t)}
v_and_b32 {vr(R1)}, 1, {vr(t + 1)}
v_lshl_add_u32 {vr(t)}, {vr(R1)}, 3, {vr(t)}
v_add_u32 {vr(t)}, s{sT4}, {vr(t)}
v_mov_b32 {vr(D2)}, {OOR}
v_cndmask_b32 {vr(R1)}, {vr(R0)}, {vr(t)}, vcc
v_cndmask_b32 {vr(D2)}, {vr(vL16)}, {vr(D2)}, vcc
v_lshrrev_b32 {vr(t + 2)}, 2, {vr(vC)}
v_lshl_add_u32 {vr(t)}, {vr(vQ)}, 3, {vr(t + 2)}
v_mul_u32_u24 {vr(vI)}, 3584, {vr(t)}
v_lshl_add_u32 {vr(vI)}, {vr(t + 1)}, 4, {vr(vI)}
v_lshrrev_b32 {vr(vB)}, 1, {vr(vQ)}
v_lshlrev_b32 {vr(vB)}, 4, {vr(vB)}
v_and_b32 {vr(t + 3)}, 1, {vr(vQ)}
v_lshl_add_u32 {vr(vB)}, {vr(t + 3)}, 2, {vr(vB)}
v_add_u32 {vr(vB)}, {vr(vB)}, {vr(t + 2)}""")
        p(f"""s_mov_b32 s{sRBj}, {4 * 896}
s_mov_b32 s{sT1}, {32 * 896}
s_mov_b32 s{sT3}, {WUF}
s_cmp_ge_u32 s{sRT}, 96
s_cselect_b64 vcc, -1, 0
s_cselect_b64 {sp(sRB4)}, {sp(sWO)}, {sp(sWU)}
s_cselect_b32 s{sRB4 + 2}, s{sWO + 2}, s{sWU + 2}
s_cselect_b32 s{sRBj}, {8 * 896}, s{sRBj}
s_cselect_b32 s{sT0}, 96, 0
s_cselect_b32 s{sT1}, {28 * 896}, s{sT1}
s_cselect_b32 s{sT2}, 16, 28
s_cselect_b32 s{sT3}, {WOF}, s{sT3}
s_mov_b32 s{sRB4 + 3}, 0x20000
s_sub_u32 s{sT0}, s{sRT}, s{sT0}
s_lshr_b32 s{sT0}, s{sT0}, 1
s_mul_i32 s{sRBs}, s{sT0}, s{sT1}
s_mul_i32 s{sT1}, s{sJ}, 112
s_add_u32 s{sRBs}, s{sRBs}, s{sT1}
s_and_b32 s{sT1}, s{sRT}, 1
s_lshl_b32 s{sT4}, s{sT1}, 6
s_add_u32 s{sRBs}, s{sRBs}, s{sT4}
s_mul_i32 s{sRBd}, s{sJ}, s{sT2}
s_add_u32 s{sRBd}, s{sRBd}, s{sT0}
s_lshl_b32 s{sRBd}, s{sRBd}, 1
s_add_u32 s{sRBd}, s{sRBd}, s{sT1}
s_lshl_b32 s{sRBd}, s{sRBd}, 11
s_add_u32 s{sRBd}, s{sRBd}, s{sT3}
s_sub_u32 s{sT0}, s{sRT}, 56
s_cmp_lt_u32 s{sT0}, 40
s_cselect_b32 s{sRBs}, {OOR}, s{sRBs}
s_cselect_b32 s{sRBd}, {OOR}, s{sRBd}
v_cndmask_b32 {vr(vB)}, {vr(t)}, {vr(vB)}, vcc
v_mul_u32_u24 {vr(vB)}, 896, {vr(vB)}
v_lshl_add_u32 {vr(vB)}, {vr(t + 1)}, 4, {vr(vB)}""")

    def r_issue(self):
        o = [[f's_lshl_b32 s{sL}, s{sW}, 12', f's_add_u32 m0, s{sL}, {self.RST}'],
             [(f'buffer_load_dwordx4 {vr(self.vRI)}, {srd(sWI)}, s{sRA} offen lds', ['rl'])],
             [f's_add_u32 s{sG}, s{sRA}, {4 * 3584 - 1024}'],
             [(f'buffer_load_dwordx4 {vr(self.vRI)}, {srd(sWI)}, s{sG} offen offset:1024 lds', ['rl'])],
             [f's_add_u32 m0, s{sL}, {self.RST + 2048}'],
             [(f'buffer_load_dwordx4 {vr(self.vRB)}, {srd(sRB4)}, s{sRBs} offen lds', ['rl'])],
             [f's_add_u32 s{sG}, s{sRBs}, s{sRBj}', f's_sub_u32 s{sG}, s{sG}, 1024'],
             [(f'buffer_load_dwordx4 {vr(self.vRB)}, {srd(sRB4)}, s{sG} offen offset:1024 lds', ['rl'])]]
        return o

    def r_finish(self):
        p = self.p
        p.need('rl')
        for n in range(2):
            d = self.vRD + 8 * n
            for e in range(2):
                for jj in range(2):
                    base = self.vRT1 if (n == 0 and e == 0) else self.vRT0
                    p(f'ds_read_b64_tr_b16 {vr(d + 4 * e + 2 * jj, 2)}, {vr(base)}{off(n * 2048 + jj * 1024 + 8 * e)}')
        for n in range(2):
            d = self.vRD + 8 * n
            sd = (sRAd, sRBd)[n]
            p(f'buffer_store_dwordx4 {vr(d, 4)}, {vr(vL16)}, {srd(sWS)}, s{sd} offen sc1', tokw=['rst'])
            p(f'buffer_store_dwordx4 {vr(d + 4, 4)}, {vr(self.vRD2 if n == 0 else vL16)}, {srd(sWS)}, s{sd} offen'
              f' offset:1024 sc1', tokw=['rst'])

    def sentinel_init(self):
        p = self.p
        a, d = vT, vT + 2
        p(f'''s_lshl_b32 s{sT0}, s{sRT}, 3
s_add_u32 s{sT0}, s{sT0}, s{sJ}
s_lshl_b32 s{sT0}, s{sT0}, 7
s_add_u32 s{sT0}, s{sT0}, {ST}
v_mov_b32 {vr(d)}, -1
v_mov_b32 {vr(d + 1)}, -1
v_mov_b32 {vr(d + 2)}, -1
v_mov_b32 {vr(d + 3)}, -1
s_mov_b64 exec, 0xff''')
        p(f'buffer_store_dwordx4 {vr(d, 4)}, {vr(vL16)}, {srd(sWS)}, s{sT0} offen sc1', tokw=['sent'])
        p('s_mov_b64 exec, -1')

    def ln_finish(self, sumreg, sqreg, va, t, vperm):
        return [
            f'v_cndmask_b32 {vr(t)}, {vr(sqreg)}, {vr(sqreg + 1)}, {sp(sM0)}',
            f'v_cndmask_b32 {vr(t + 1)}, {vr(sqreg + 2)}, {vr(sqreg + 3)}, {sp(sM0)}',
            f'v_cndmask_b32 {vr(t)}, {vr(t)}, {vr(t + 1)}, {sp(sM1)}',
            f'ds_bpermute_b32 {vr(t)}, {vr(vperm)}, {vr(t)}',
            f'v_mul_f32 {vr(va + 1)}, {hx(-1.0 / 448)}, {vr(sumreg)}',
            f'v_mul_f32 {vr(t + 1)}, {vr(va + 1)}, {vr(va + 1)}',
            f'v_sub_f32 {vr(t + 1)}, {hx(1e-5)}, {vr(t + 1)}',
            f'v_fmac_f32 {vr(t + 1)}, {hx(1.0 / 448)}, {vr(t)}',
            f'v_max_f32 {vr(t + 1)}, {hx(1e-5)}, {vr(t + 1)}',
            f'v_rsq_f32 {vr(va)}, {vr(t + 1)}',
        ]

    def ln_masks(self, vperm):
        p = self.p
        p(f"""v_and_b32 {vr(vT)}, 1, {vr(vC)}
v_cmp_ne_u32 {sp(sM0)}, 0, {vr(vT)}
v_and_b32 {vr(vT)}, 2, {vr(vC)}
v_cmp_ne_u32 {sp(sM1)}, 0, {vr(vT)}
v_lshrrev_b32 {vr(vT)}, 2, {vr(vC)}
v_lshl_add_u32 {vr(vT)}, {vr(vT)}, 4, {vr(vC)}
v_lshlrev_b32 {vr(vperm)}, 2, {vr(vT)}""")

    def phase1(self):
        p = self.p
        ACC, CS, SA, XF, WF, ONES = 16, 64, 76, 84, 124, 148
        acc = lambda sec, tt: ACC + (sec * 4 + tt) * 4
        xf = lambda b, tt: XF + (b * 5 + tt) * 4
        wf = lambda b, sec: WF + (b * 3 + sec) * 4
        vX0, vX1, vW0, vW1 = 152, 153, 154, 155
        rX0, rX1, rO0, rO1, rW = 156, 157, 158, 159, 160
        vPerm, vFl, t = 161, 162, 6
        CH = 32768
        STS = 156 * 1024
        p(f"""v_lshrrev_b32 {vr(t)}, 3, {vr(vL)}
v_and_b32 {vr(t + 1)}, 7, {vr(vL)}
v_xor_b32 {vr(t + 2)}, {vr(t + 1)}, {vr(vQ)}
v_mul_u32_u24 {vr(vX0)}, 896, {vr(t)}
v_xor_b32 {vr(t + 3)}, 4, {vr(t + 2)}
v_lshl_add_u32 {vr(vX1)}, {vr(t + 3)}, 4, {vr(vX0)}
v_lshl_add_u32 {vr(vX0)}, {vr(t + 2)}, 4, {vr(vX0)}
v_add_u32 {vr(vX1)}, {8 * 896 - 1024}, {vr(vX1)}
v_and_b32 {vr(t + 2)}, 1, {vr(vQ)}
v_lshlrev_b32 {vr(t + 2)}, 1, {vr(t + 2)}
v_xor_b32 {vr(t + 2)}, {vr(t + 2)}, {vr(t + 1)}
v_mul_u32_u24 {vr(vW0)}, 2688, {vr(t)}
v_xor_b32 {vr(t + 3)}, 4, {vr(t + 2)}
v_lshl_add_u32 {vr(vW1)}, {vr(t + 3)}, 4, {vr(vW0)}
v_lshl_add_u32 {vr(vW0)}, {vr(t + 2)}, 4, {vr(vW0)}
v_add_u32 {vr(vW1)}, {8 * 2688 - 1024}, {vr(vW1)}
s_lshl_b32 s{sT0}, s{sRB}, 2
s_add_u32 s{sT0}, s{sT0}, s{sW}
s_mul_i32 s{sA0}, s{sT0}, {16 * 896}
s_mul_i32 s{sA1}, s{sW}, {16 * 2688}
s_lshl_b32 s{sT0}, s{sCB}, 7
s_add_u32 s{sA1}, s{sA1}, s{sT0}
s_lshl_b32 s{sA2}, s{sW}, 11""")
        if self.c.rot1:
            p(f"""s_and_b32 s{sA3}, s{sRB}, 3
s_lshl_b32 s{sA3}, s{sA3}, 1
s_add_u32 s{sA3}, s{sA3}, s{sCB}
s_sub_u32 s{sT0}, s{sA3}, 7
s_cmp_ge_u32 s{sA3}, 7
s_cselect_b32 s{sA3}, s{sT0}, s{sA3}""")
        else:
            p(f's_mov_b32 s{sA3}, 0')

        def chunk(m):
            base = (m % 4) * CH
            o = []
            if m:
                o.append([f's_add_u32 s{sA3}, s{sA3}, 1', f's_cmp_eq_u32 s{sA3}, 7', f's_cselect_b32 s{sA3}, 0, s{sA3}'])
            o += [[f's_add_u32 m0, s{sA2}, {base}', f's_lshl_b32 s{sT4}, s{sA3}, 7', f's_add_u32 s{sT4}, s{sT4}, s{sA0}'],
                 [(f'buffer_load_dwordx4 {vr(vX0)}, {srd(sX)}, s{sT4} offen lds', [f'c{m}'])],
                 [(f'buffer_load_dwordx4 {vr(vX1)}, {srd(sX)}, s{sT4} offen offset:1024 lds', [f'c{m}'])]]
            for sec in range(3):
                o += [[f's_add_u32 m0, s{sA2}, {base + 8192 * (sec + 1)}'] +
                      ([f's_mul_i32 s{sT4}, s{sA3}, {64 * 2688}', f's_add_u32 s{sT4}, s{sT4}, s{sA1}'] if sec == 0 else
                       [f's_add_u32 s{sT4}, s{sT4}, 896']),
                      [(f'buffer_load_dwordx4 {vr(vW0)}, {srd(sWQ)}, s{sT4} offen lds', [f'c{m}'])],
                      [(f'buffer_load_dwordx4 {vr(vW1)}, {srd(sWQ)}, s{sT4} offen offset:1024 lds', [f'c{m}'])]]
            return o
        self.emit_groups(chunk(0))
        self.emit_groups(chunk(1))
        p(f"""v_lshrrev_b32 {vr(t)}, 1, {vr(vC)}
v_xor_b32 {vr(t)}, {vr(t)}, {vr(vQ)}
v_lshlrev_b32 {vr(t)}, 4, {vr(t)}
v_lshl_add_u32 {vr(rX0)}, {vr(vC)}, 7, {vr(t)}
v_xor_b32 {vr(rX1)}, 64, {vr(rX0)}
v_add_u32 {vr(rO0)}, s{sA2}, {vr(rX0)}
v_add_u32 {vr(rO1)}, s{sA2}, {vr(rX1)}
v_lshrrev_b32 {vr(t)}, 2, {vr(vC)}
v_lshl_add_u32 {vr(rW)}, {vr(vQ)}, 3, {vr(t)}
v_lshlrev_b32 {vr(rW)}, 7, {vr(rW)}
v_lshrrev_b32 {vr(t)}, 3, {vr(vC)}
v_and_b32 {vr(t + 1)}, 1, {vr(vQ)}
v_lshl_add_u32 {vr(t)}, {vr(t + 1)}, 1, {vr(t)}
v_xor_b32 {vr(t)}, s{sW}, {vr(t)}
v_lshl_add_u32 {vr(rW)}, {vr(t)}, 5, {vr(rW)}
v_and_b32 {vr(t)}, 3, {vr(vC)}
v_lshl_add_u32 {vr(rW)}, {vr(t)}, 3, {vr(rW)}""")
        for r in range(4):
            p(f'v_mov_b32 {vr(ONES + r)}, 0x3f803f80')
        self.ln_masks(vPerm)
        vP, vH, vS, vQa, vKa, vQb, vKb, vVa, vVc, vAr = 164, 165, 166, 167, 168, 169, 170, 171, 172, 173
        vVd, vK0, vK1, vSt, vSv = 176, 174, 175, 180, 181
        p(f"""s_lshl_b32 s{sT0}, s{sCB}, 2
s_add_u32 s{sKV}, s{sT0}, s{sW}
s_lshl_b32 s{sT0}, s{sKV}, 1
v_lshrrev_b32 {vr(vP)}, 1, {vr(vQ)}
v_add_u32 {vr(vP)}, s{sT0}, {vr(vP)}
v_mul_u32_u24 {vr(vH)}, 37, {vr(vP)}
v_lshrrev_b32 {vr(vH)}, 8, {vr(vH)}
v_mul_u32_u24 {vr(vS)}, 7, {vr(vH)}
v_sub_u32 {vr(vP)}, {vr(vP)}, {vr(vS)}
v_cmp_eq_u32 {sp(sM2)}, 3, {vr(vP)}
v_lshrrev_b32 {vr(vS)}, 2, {vr(vP)}
v_lshl_add_u32 {vr(vH)}, {vr(vH)}, 1, {vr(vS)}
v_and_b32 {vr(vS)}, 3, {vr(vP)}
v_lshlrev_b32 {vr(vS)}, 9, {vr(vS)}
v_lshl_add_u32 {vr(vQa)}, {vr(vH)}, 17, {vr(vS)}
v_lshl_add_u32 {vr(vKa)}, {vr(vH)}, 18, {vr(vS)}
v_and_b32 {vr(vS)}, 31, {vr(vL)}
v_lshl_add_u32 {vr(vQa)}, {vr(vS)}, 4, {vr(vQa)}
v_and_b32 {vr(vS)}, 8, {vr(vC)}
v_add_u32 {vr(vS)}, {vr(vS)}, {vr(vC)}
v_and_b32 {vr(vP)}, 1, {vr(vQ)}
v_lshl_add_u32 {vr(vS)}, {vr(vP)}, 3, {vr(vS)}
v_lshl_add_u32 {vr(vKa)}, {vr(vS)}, 4, {vr(vKa)}
v_mov_b32 {vr(vS)}, {OOR}
v_add_u32 {vr(vQb)}, 0x20000, {vr(vQa)}
v_add_u32 {vr(vKb)}, 0x40000, {vr(vKa)}
v_cndmask_b32 {vr(vQb)}, {vr(vS)}, {vr(vQb)}, {sp(sM2)}
v_cndmask_b32 {vr(vKb)}, {vr(vS)}, {vr(vKb)}, {sp(sM2)}
s_lshl_b32 s{sT0}, s{sKV}, 4
v_add_u32 {vr(vP)}, s{sT0}, {vr(vC)}
v_mul_u32_u24 {vr(vH)}, 2341, {vr(vP)}
v_lshrrev_b32 {vr(vH)}, 16, {vr(vH)}
v_mul_u32_u24 {vr(vVa)}, 28, {vr(vH)}
v_sub_u32 {vr(vP)}, {vr(vP)}, {vr(vVa)}
v_lshlrev_b32 {vr(vVa)}, 18, {vr(vH)}
v_lshl_add_u32 {vr(vVa)}, {vr(vQ)}, 9, {vr(vVa)}
v_lshl_add_u32 {vr(vVa)}, {vr(vP)}, 4, {vr(vVa)}
v_cmp_le_u32 vcc, 24, {vr(vP)}
v_add_u32 {vr(vVc)}, 64, {vr(vVa)}
v_cndmask_b32 {vr(vVc)}, {vr(vS)}, {vr(vVc)}, vcc
v_cmp_eq_u32 vcc, 24, {vr(vP)}
v_mov_b32 {vr(vK0)}, 0x3f803f80
v_mov_b32 {vr(vK1)}, 0x3f80
v_cndmask_b32 {vr(vVd)}, 0, {vr(vK0)}, vcc
v_mov_b32 {vr(vVd + 1)}, {vr(vVd)}
v_mov_b32 {vr(vVd + 2)}, {vr(vVd)}
v_mov_b32 {vr(vVd + 3)}, {vr(vVd)}
s_lshl_b32 s{sT0}, s{sKV}, 2
s_lshr_b32 s{sT1}, s{sRB}, 3
s_add_u32 s{sT0}, s{sT0}, s{sT1}
s_lshl_b32 s{sT0}, s{sT0}, 8
v_lshlrev_b32 {vr(vAr)}, 7, {vr(vL)}
v_add_u32 {vr(vAr)}, s{sT0}, {vr(vAr)}
s_lshl_b32 s{sT0}, s{sW}, 7
s_add_u32 s{sT0}, s{sT0}, {STS}
v_lshlrev_b32 {vr(vSt)}, 3, {vr(vC)}
v_add_u32 {vr(vH)}, s{sT0}, {vr(vSt)}
v_add_u32 {vr(vSt)}, {STS}, {vr(vSt)}
v_lshlrev_b32 {vr(vSv)}, 5, {vr(vQ)}
v_add_u32 {vr(vSv)}, {STS}, {vr(vSv)}""")
        vSw = vH
        self.r_setup()

        def rds(ks):
            m, e, b = ks // 2, ks % 2, ks % 2
            base = (m % 2) * CH
            o = []
            for sec in (1, 2, 0):
                for jj in range(2):
                    o.append(f'ds_read_b64_tr_b16 {vr(wf(b, sec) + 2 * jj, 2)}, {vr(rW)}'
                             f'{off(base + 8192 * (sec + 1) + e * 4096 + jj * 512)}')
                if sec == 1:
                    for tt in range(4):
                        o.append(f'ds_read_b128 {vr(xf(b, tt), 4)}, {vr((rX0, rX1)[e])}{off(base + tt * 2048)}')
            o.append(f'ds_read_b128 {vr(xf(b, 4), 4)}, {vr((rO0, rO1)[e])}{off(base)}')
            return o

        def move(delta):
            return [f'v_add_u32 {vr(r)}, {delta & 0xffffffff}, {vr(r)}' for r in (rX0, rX1, rO0, rO1, rW)]
        p.need('c0')
        p('s_barrier')
        self.stamp(1)
        p.add(rds(0))
        ones = vr(ONES, 4)
        side = chunk(2)
        for ks in range(14):
            b = ks % 2
            nx = ks + 1
            if nx < 14 and nx % 2 == 0:
                m = nx // 2
                self.emit_groups(side)
                side = []
                p.need(f'c{m}')
                p('s_barrier')
                if m % 2 == 0:
                    p.add(move(2 * CH if m % 4 == 2 else -2 * CH))
                if m + 2 < 7:
                    side = chunk(m + 2)
                elif m == 5:
                    side = self.r_issue()
            if self.c.fine == 1 and ks % 2 == 1:
                self.stamp(24 + ks // 2)
            R = rds(nx) if nx < 14 else []
            z = ks == 0
            ms = []
            for sec in (1, 2, 0):
                w_ = vr(wf(b, sec), 4)
                for tt in range(4):
                    x_ = vr(xf(b, tt), 4)
                    a_, b_ = (w_, x_) if sec < 2 else (x_, w_)
                    ms.append(mf16(acc(sec, tt), a_, b_, None if z else acc(sec, tt)))
                a_, b_ = (w_, ones) if sec < 2 else (ones, w_)
                ms.append(mf16(CS + 4 * sec, a_, b_, None if z else CS + 4 * sec))
            xo = vr(xf(b, 4), 4)
            st = [mf16(SA, ones, xo, None if z else SA), mf16(SA + 4, xo, xo, None if z else SA + 4)]
            ms = (st + ms) if ks == 13 else (ms + st)
            fin = self.ln_finish(SA, SA + 4, t + 4, t, vPerm) if ks == 13 else []
            for n, m_ in enumerate(ms):
                p(m_)
                if R:
                    p(R.pop(0))
                elif side:
                    p.add(list(side.pop(0)))
                    if side and ks % 2 == 0 and len(ms) - n <= len(side):
                        p.add(list(side.pop(0)))
                elif fin and n >= 5:
                    p(fin.pop(0))
            p.add(fin)
            if ks == 8:
                p(f'v_mov_b32 {vr(vFl)}, 0')
                p(f'buffer_load_dword {vr(vFl)}, {vr(vFl)}, {srd(sDBG)}, 0 offen sc1')
        self.stamp(2)
        p('s_mov_b64 exec, 0xffff')
        p(f'ds_write_b64 {vr(vSw)}, {vr(t + 4, 2)}', tokw=['lnw'])
        p('s_mov_b64 exec, -1')
        qs = math.log2(math.e) / math.sqrt(28.0)
        p(f"""s_lshl_b32 s{sT0}, s{sRB}, 12
s_add_u32 s{sT0}, s{sT0}, {QF}
s_lshl_b32 s{sT1}, s{sRB}, 13
s_add_u32 s{sT1}, s{sT1}, {KV}
s_add_u32 s{sT2}, s{sT1}, 4096""")
        p.need('lnw')
        p('s_barrier')
        TK, TV, D = XF, XF + 8, 184
        for tt in range(4):
            p(f'ds_read_b64 {vr(TK + 2 * tt, 2)}, {vr(vSt)}{off(128 * tt)}')
        for tt in range(4):
            for h in range(2):
                p(f'ds_read_b128 {vr(TV + 8 * tt + 4 * h, 4)}, {vr(vSv)}{off(128 * tt + 16 * h)}')

        def qk_store(sec, tp, d):
            for e in range(2):
                tt = 2 * tp + e
                st = vr(TK + 2 * tt, 2)
                for h in range(2):
                    a = vr(acc(sec, tt) + 2 * h, 2)
                    p(f'v_pk_fma_f32 {a}, {vr(CS + 4 * sec + 2 * h, 2)}, {st}, {a} op_sel:[0,1,0] op_sel_hi:[1,1,1]')
                    p(f'v_pk_mul_f32 {a}, {a}, {st} op_sel_hi:[1,0]')
                a = acc(sec, tt)
                p(f'v_cvt_pk_bf16_f32 {vr(d + 2 * e)}, {vr(a)}, {vr(a + 1)}')
                p(f'v_cvt_pk_bf16_f32 {vr(d + 2 * e + 1)}, {vr(a + 2)}, {vr(a + 3)}')
            c0, c1 = ('0', '0') if sec == 0 else (vr(vK0), vr(vK1))
            p(f'v_mov_b32 {vr(d + 6)}, {c0}\nv_mov_b32 {vr(d + 7)}, {c1}')
            p(f'v_permlane16_swap_b32 {vr(d)}, {vr(d + 2)}')
            p(f'v_permlane16_swap_b32 {vr(d + 1)}, {vr(d + 3)}')
            p(f"""v_mov_b32 {vr(d + 4)}, {vr(d + 2)}
v_mov_b32 {vr(d + 5)}, {vr(d + 3)}
v_cndmask_b32 {vr(d + 2)}, {vr(d + 2)}, {vr(d + 6)}, {sp(sM2)}
v_cndmask_b32 {vr(d + 3)}, {vr(d + 3)}, {vr(d + 7)}, {sp(sM2)}""")
            va, vb, so, o = (vQa, vQb, sT0, 2048 * tp) if sec == 0 else (vKa, vKb, (sT1, sT2)[tp], 0)
            p(f'buffer_store_dwordx4 {vr(d, 4)}, {vr(va)}, {srd(sWS)}, s{so} offen{off(o)} sc1', tokw=['st1'])
            p(f'buffer_store_dwordx4 {vr(d + 4, 4)}, {vr(vb)}, {srd(sWS)}, s{so} offen{off(o)} sc1', tokw=['st1'])

        qk_store(1, 0, D)
        qk_store(1, 1, D + 8)
        for tp in range(2):
            d = D + 16 + 4 * tp
            for e in range(2):
                tt = 2 * tp + e
                for r in range(4):
                    a = acc(2, tt) + r
                    st = TV + 8 * tt + 2 * r
                    p(f'v_fmac_f32 {vr(a)}, {vr(st + 1)}, {vr(CS + 8)}')
                    p(f'v_mul_f32 {vr(a)}, {vr(a)}, {vr(st)}')
                a = acc(2, tt)
                p(f'v_cvt_pk_bf16_f32 {vr(d + 2 * e)}, {vr(a)}, {vr(a + 1)}')
                p(f'v_cvt_pk_bf16_f32 {vr(d + 2 * e + 1)}, {vr(a + 2)}, {vr(a + 3)}')
            so = (sT1, sT2)[tp]
            p(f'buffer_store_dwordx4 {vr(d, 4)}, {vr(vVa)}, {srd(sWS)}, s{so} offen offset:2048 sc1', tokw=['st1'])
            p(f'buffer_store_dwordx4 {vr(vVd, 4)}, {vr(vVc)}, {srd(sWS)}, s{so} offen offset:2048 sc1', tokw=['st1'])
        for tt in range(4):
            p(f'v_mul_f32 {vr(TK + 2 * tt)}, {hx(qs)}, {vr(TK + 2 * tt)}')
        qk_store(0, 0, D + 24)
        qk_store(0, 1, D + 32)
        self.sentinel_init()
        p(f'v_mov_b32 {vr(vP)}, 0')
        self.check(vFl, vP, 1, sDBG)
        p.need('st1', 'sent')
        self.arrive(vAr, 3)
        self.stamp(3)
        self.r_finish()
        p('s_barrier')
        p('s_branch .Lattn')

    def spare(self):
        p = self.p
        p('.Lspare:')
        sSPI, sOM = sT0, sA0
        t = 6
        p(f'''s_sub_u32 s{sT1}, s{sIDX}, 28
s_lshl_b32 s{sT1}, s{sT1}, 2
s_add_u32 s{sT1}, s{sT1}, s{sW}
s_lshl_b32 s{sT1}, s{sT1}, 13
v_lshlrev_b32 {vr(t)}, 7, {vr(vL)}
v_add_u32 {vr(t)}, s{sT1}, {vr(t)}
s_mov_b32 s{sT1}, .Lend-.Lpc0
v_min_u32 {vr(t)}, s{sT1}, {vr(t)}
global_load_dword {vr(250)}, {vr(t)}, {sp(sPC)}''')
        p(f'''s_lshl_b32 s{sOM}, s{sXC}, 2
s_add_u32 s{sOM}, s{sOM}, s{sIDX}
s_sub_u32 s{sOM}, s{sOM}, 28
s_cmp_lg_u32 s{sOM}, 0
s_cbranch_scc1 .Lnozero''')
        p(f'''v_lshlrev_b32 {vr(t)}, 7, {vr(vL)}
s_lshl_b32 s{sT1}, s{sW}, 15
v_mov_b32 {vr(t + 1)}, 0''')
        for n in range(4):
            p(f's_add_u32 s{sT2}, s{sT1}, {CNT + n * 8192}')
            p(f'buffer_store_dword {vr(t + 1)}, {vr(t)}, {srd(sWS)}, s{sT2} offen sc1', tokw=['z'])
        p.need('z')
        p('s_barrier')
        p(f's_mov_b64 exec, 1\nbuffer_store_dword {vr(vONE)}, {vr(t + 1)}, {srd(sDBG)}, 0 offen sc1\ns_mov_b64 exec, -1')
        p('.Lnozero:')
        p(f's_lshl_b32 s{sOM}, s{sOM}, 2\ns_add_u32 s{sOM}, s{sOM}, s{sW}')
        self.r_setup()
        self.emit_groups(self.r_issue())
        vI, vR0, vR1, vD2 = self.vRI, 10, 11, 12
        vc_ = 14
        sj, sh, sa4, skp = sA1, sT0, sT1, sT2
        sS1 = 89
        p(f'''s_lshr_b32 s{sj}, s{sOM}, 4
s_bfe_u32 s{sh}, s{sOM}, 0x10003
s_bfe_u32 s{sa4}, s{sOM}, 0x20001
s_and_b32 s{skp}, s{sOM}, 1
s_mul_i32 s{sA2}, s{sW}, 14336
s_mul_i32 s{sS1}, s{skp}, {7 * 32 * 3584}
s_mul_i32 s{sT3}, s{sj}, 224
s_add_u32 s{sS1}, s{sS1}, s{sT3}
s_lshl_b32 s{sT3}, s{sa4}, 6
s_add_u32 s{sS1}, s{sS1}, s{sT3}
s_xor_b32 s{sT3}, s{sh}, 1
s_mul_i32 s{sT3}, s{sT3}, 1792
s_add_u32 s{sS1}, s{sS1}, s{sT3}
s_lshl_b32 s90, s{sj}, 1
s_add_u32 s90, s90, s{sh}
s_mul_i32 s90, s90, {105 * 1024}
s_lshl_b32 s{sT3}, s{sa4}, 11
s_add_u32 s90, s90, s{sT3}
s_add_u32 s90, s90, {WIF + 98 * 1024}''')
        for n in range(7):
            for jj in range(2):
                p(f's_add_u32 m0, s{sA2}, {n * 2048 + jj * 1024}')
                p(f's_add_u32 s{sT3}, s{sS1}, {n * 32 * 3584 + jj * 4 * 3584}')
                p(f'buffer_load_dwordx4 {vr(vI)}, {srd(sWI)}, s{sT3} offen lds', tokw=[f'r{n}'])
        p(f'''v_and_b32 {vr(vc_)}, 3, {vr(vC)}
v_add_u32 {vr(vR0)}, s{sA2}, {vr(vL16)}
v_and_b32 {vr(t)}, 60, {vr(vL)}
v_lshrrev_b32 {vr(vR1)}, 1, {vr(vc_)}
v_add_u32 {vr(t)}, {vr(t)}, {vr(vR1)}
v_lshlrev_b32 {vr(t)}, 4, {vr(t)}
v_and_b32 {vr(vR1)}, 1, {vr(vc_)}
v_lshl_add_u32 {vr(t)}, {vr(vR1)}, 3, {vr(t)}
v_add_u32 {vr(t)}, s{sA2}, {vr(t)}
s_cmp_eq_u32 s{sa4}, 3
s_cselect_b64 {sp(sM0)}, -1, 0
v_mov_b32 {vr(vD2)}, {OOR}
v_cndmask_b32 {vr(vR1)}, {vr(vR0)}, {vr(t)}, {sp(sM0)}
v_cndmask_b32 {vr(vD2)}, {vr(vL16)}, {vr(vD2)}, {sp(sM0)}''')
        self.r_finish()
        for n in range(7):
            d = 32 + 8 * n
            p.need(f'r{n}')
            for e in range(2):
                for jj in range(2):
                    base = vR1 if e == 0 else vR0
                    p(f'ds_read_b64_tr_b16 {vr(d + 4 * e + 2 * jj, 2)}, {vr(base)}{off(n * 2048 + jj * 1024 + 8 * e)}')
        ON, CSA, E = 124, 128, 136
        for r in range(4):
            p(f'v_mov_b32 {vr(ON + r)}, 0x3f803f80')
        for n in range(2, 9):
            for e in range(2):
                p(mf16(CSA + 4 * e, vr(ON, 4), vr(16 + 8 * n + 4 * e, 4), None if n == 2 else CSA + 4 * e))
        p(f'''v_cmp_gt_u32 vcc, 2, {vr(vQ)}
v_and_b32 {vr(t)}, 1, {vr(vQ)}
v_cmp_eq_u32 {sp(sM1)}, s{skp}, {vr(t)}
v_mov_b32 {vr(t)}, {OOR}
v_cndmask_b32 {vr(vR0)}, {vr(t)}, {vr(vL16)}, {sp(sM1)}
v_cndmask_b32 {vr(vR1)}, {vr(t)}, {vr(vD2)}, {sp(sM1)}''')
        for e in range(2):
            a, d = CSA + 4 * e, E + 4 * e
            p(f'''v_cvt_pk_bf16_f32 {vr(d)}, {vr(a)}, {vr(a)}
v_and_b32 {vr(a + 1)}, 0xffff0000, {vr(d)}
v_sub_f32 {vr(a)}, {vr(a)}, {vr(a + 1)}
v_cvt_pk_bf16_f32 {vr(d + 1)}, {vr(a)}, {vr(a)}
v_cndmask_b32 {vr(d)}, 0, {vr(d)}, vcc
v_cndmask_b32 {vr(d + 1)}, 0, {vr(d + 1)}, vcc
v_mov_b32 {vr(d + 2)}, 0
v_mov_b32 {vr(d + 3)}, 0''')
            p(f'buffer_store_dwordx4 {vr(d, 4)}, {vr((vR0, vR1)[e])}, {srd(sWS)}, s90 offen{off(1024 * e)} sc1',
              tokw=['cst'])
        self.sentinel_init()
        p(f'v_mov_b32 {vr(12)}, 0')
        self.poll(12, 1, sDBG, 13)
        p(f'''s_lshl_b32 s{sT0}, s{sj}, 9
s_add_u32 s{sT0}, s{sT0}, {CNT + C_RDY * 128}
v_lshlrev_b32 {vr(12)}, 7, {vr(vL)}
v_add_u32 {vr(12)}, s{sT0}, {vr(12)}''')
        p.need('cst', 'sent')
        self.arrive(12, 15)
        self.stamp(3)
        p('s_barrier')

    def attention(self):
        p = self.p
        c = self.c
        Q, O, S, P, KB = 16, 48, 112, 144, 152
        SCR, FLG = 106 * 1024, 155 * 1024
        vPo, vSP, vRdy, vRv, vW0 = 7, 8, 9, 10, 11
        vM = 240
        t = 244
        vRa = 14
        qf = lambda a, u: Q + 8 * a + 4 * u
        kf = lambda b, u: KB + 16 * b + 4 * u
        vf = lambda b, u: KB + 16 * b + 8 + 4 * u
        p('.Lattn:')
        if c.stop <= 1:
            self.finish()
            return
        p(f'''s_mul_i32 s{sT0}, s{sHD}, 28
s_lshr_b32 s{sT1}, s{sT0}, 4
s_add_u32 s{sT0}, s{sT0}, 27
s_lshr_b32 s{sT2}, s{sT0}, 4
s_lshr_b32 s{sT3}, s{sQB}, 2
s_lshr_b32 s{sT4}, s{sHD}, 1
v_and_b32 {vr(vPo)}, 3, {vr(vL)}
v_add_u32 {vr(vPo)}, s{sT1}, {vr(vPo)}
v_min_u32 {vr(vPo)}, s{sT2}, {vr(vPo)}
v_mul_u32_u24 {vr(t)}, {16 * 2341}, {vr(vPo)}
v_lshrrev_b32 {vr(t)}, 17, {vr(t)}
v_sub_u32 {vr(t)}, s{sT4}, {vr(t)}
v_lshl_add_u32 {vr(vPo)}, {vr(vPo)}, 3, {vr(t)}
v_mov_b32 {vr(t)}, s{sW}
v_mov_b32 {vr(t + 2)}, s{sT3}
v_and_b32 {vr(t + 1)}, 4, {vr(vL)}
v_cmp_ne_u32 vcc, 0, {vr(t + 1)}
v_cndmask_b32 {vr(t)}, {vr(t)}, {vr(t + 2)}, vcc
v_lshl_add_u32 {vr(vPo)}, {vr(t)}, 1, {vr(vPo)}
v_lshlrev_b32 {vr(vPo)}, 7, {vr(vPo)}''')
        vD, vE = 226, 234
        p(f'''s_lshl_b32 s{sT0}, s{sJ}, 9
s_add_u32 s{sT0}, s{sT0}, {CNT + C_RDY * 128}
v_lshlrev_b32 {vr(vRv)}, 7, {vr(vL)}
v_add_u32 {vr(vRa)}, s{sT0}, {vr(vRv)}
s_lshl_b32 s{sT1}, s{sRQ}, 7
s_add_u32 s{sT0}, s{sT0}, s{sT1}
v_mov_b32 {vr(vRdy)}, s{sT0}
v_cmp_lt_u32 {sp(sM2)}, 31, {vr(vL)}
v_lshrrev_b32 {vr(t)}, 3, {vr(vL)}
v_and_b32 {vr(t + 1)}, 7, {vr(vL)}
v_xor_b32 {vr(t + 1)}, {vr(t + 1)}, {vr(vQ)}
v_lshlrev_b32 {vr(t)}, 12, {vr(t)}
v_lshl_add_u32 {vr(t)}, {vr(t + 1)}, 4, {vr(t)}
v_xor_b32 {vr(t + 1)}, 64, {vr(t)}
v_lshrrev_b32 {vr(t + 2)}, 1, {vr(vC)}
v_xor_b32 {vr(t + 2)}, {vr(t + 2)}, {vr(vQ)}
v_lshlrev_b32 {vr(t + 2)}, 4, {vr(t + 2)}
v_lshl_add_u32 {vr(t + 2)}, {vr(vC)}, 7, {vr(t + 2)}
v_xor_b32 {vr(t + 3)}, 64, {vr(t + 2)}
s_lshl_b32 s{sA1}, s{sW}, 14
s_mul_i32 s{sA2}, s{sW}, 12288
s_add_u32 s{sA2}, s{sA2}, {SCR}
v_add_u32 {vr(vE)}, s{sA1}, {vr(t + 2)}
v_add_u32 {vr(vE + 1)}, s{sA1}, {vr(t + 3)}
v_add_u32 {vr(vE + 2)}, s{sA2}, {vr(t + 2)}
v_add_u32 {vr(vE + 3)}, s{sA2}, {vr(t + 3)}
v_add_u32 {vr(vSP)}, s{sA2}, {vr(vL16)}
s_lshl_b32 s{sA0}, s{sI}, 18''')
        for a in range(4):
            p(f's_add_u32 s{sT0}, s{sW}, {1 + a}\ns_and_b32 s{sT0}, s{sT0}, 3')
            p(f'''s_lshl_b32 s{sT1}, s{sT0}, 16
s_lshl_b32 s{sT2}, s{sW}, 10
s_add_u32 s{sT1}, s{sT1}, s{sT2}
s_add_u32 s{sT2}, s{sT1}, {4096 - 2048 * (a % 2)}
v_add_u32 {vr(vD + 2 * a)}, s{sT2}, {vr(t)}
s_add_u32 s{sT2}, s{sT1}, {4096 + 8 * 4096 - 2048 * (a % 2) - 1024}
v_add_u32 {vr(vD + 2 * a + 1)}, s{sT2}, {vr(t + 1)}''')
            if a < 3:
                p(f'''s_add_u32 s{sT1}, s{sW}, {3 - a}
s_and_b32 s{sT1}, s{sT1}, 3
s_mul_i32 s{sT1}, s{sT1}, 12288
s_add_u32 s{sT1}, s{sT1}, {SCR + a * 4096}
v_add_u32 {vr(vW0 + a)}, s{sT1}, {vr(vL16)}''')
            p(f'''s_lshl_b32 s{sT1}, s{sHD}, 6
s_lshl_b32 s{sT2}, s{sQB}, 2
s_add_u32 s{sT1}, s{sT1}, s{sT2}
s_add_u32 s{sT1}, s{sT1}, s{sT0}
s_lshl_b32 s{sT1}, s{sT1}, 11
s_add_u32 s{88 + a}, s{sT1}, {QF}''')
        p(f'''s_lshl_b32 s{sT0}, s{sHD}, 18
s_add_u32 s{sT0}, s{sT0}, {KV}
s_lshl_b32 s{sT1}, s{sQB}, 14
s_add_u32 s{92}, s{sT0}, s{sT1}
s_lshl_b32 s{sT1}, s{sW}, 16
s_add_u32 s{93}, s{sT0}, s{sT1}''')
        sKR, sSR = sK2, sK2 + 1
        if c.rot5:
            p(f's_add_u32 s{sSR}, s{sI}, s{sJ}\ns_and_b32 s{sSR}, s{sSR}, 3\ns_lshl_b32 s{sSR}, s{sSR}, 8')
        else:
            p(f's_mov_b32 s{sSR}, 0')
        self.poll(vPo, 8)
        self.stamp(4)
        for u in range(2):
            p(f'buffer_load_dwordx4 {vr(kf(3, u), 4)}, {vr(vL16)}, {srd(sWS)}, s92 offen{off(1024 * u)} sc1')
        for a in range(4):
            for u in range(2):
                p(f'buffer_load_dwordx4 {vr(qf(a, u), 4)}, {vr(vL16)}, {srd(sWS)}, s{88 + a} offen{off(1024 * u)} sc1')

        def kvload(tl, which):
            b = tl % 4
            return f'buffer_load_dwordx4 {vr(KB + 16 * b + 4 * which, 4)}, {vr(vL16)}, {srd(sWS)}, s{sKV} offen' \
                   f'{off(1024 * which)} sc1'

        def kvnext():
            return [f's_add_u32 s{sKR}, s{sKR}, 4096', f's_and_b32 s{sKR}, s{sKR}, 0xffff', f's_add_u32 s{sKV}, s93, s{sKR}']

        def first_kv():
            p(f's_lshl_b32 s{sKR}, s{sQB}, 12' if c.rotkv else f's_mov_b32 s{sKR}, 0')
            for tl in range(3):
                p.add(kvnext())
                for wch in range(4):
                    p(kvload(tl, wch))
        first_kv()

        def tile_max(a, b, first):
            s = S + 16 * (a % 2)
            o = [mf32(s, kf(b, 0), qf(a, 0), None), mf32(s, kf(b, 1), qf(a, 1), s)]
            m = vM + a
            v = [f'v_max3_f32 {vr(m)}, {vr(s)}, {vr(s + 1)}, {vr(s + 2) if first else vr(m)}']
            rest = list(range(3 if first else 2, 16))
            while len(rest) >= 2:
                v.append(f'v_max3_f32 {vr(m)}, {vr(s + rest[0])}, {vr(s + rest[1])}, {vr(m)}')
                rest = rest[2:]
            if rest:
                v.append(f'v_max_f32 {vr(m)}, {vr(s + rest[0])}, {vr(m)}')
            return o, v

        def max_pass(b, first):
            ms = [tile_max(a, b, first) for a in range(4)]
            p.add(ms[0][0])
            for a in range(4):
                if a < 3:
                    p.add(ms[a + 1][0])
                p.add(ms[a][1])

        def half_max():
            for a in range(4):
                p(f'v_mov_b32 {vr(t + a)}, {vr(vM + a)}')
            for a in range(4):
                p(f'v_permlane32_swap_b32 {vr(t + a)}, {vr(vM + a)}')
            for a in range(4):
                p(f'v_max_f32 {vr(vM + a)}, {vr(t + a)}, {vr(vM + a)}')

        def patch_q(full):
            for a in range(4):
                m = vM + a
                p(f'v_sub_f32 {vr(m)}, 0, {vr(m)}')
                p(f'v_cvt_pk_bf16_f32 {vr(t)}, {vr(m)}, 0')
                if full:
                    p(f'''v_lshlrev_b32 {vr(t + 1)}, 16, {vr(t)}
v_sub_f32 {vr(m)}, {vr(m)}, {vr(t + 1)}
v_cvt_pk_bf16_f32 {vr(t + 1)}, {vr(m)}, 0
v_lshlrev_b32 {vr(t + 1)}, 16, {vr(t + 1)}
v_sub_f32 {vr(m)}, {vr(m)}, {vr(t + 1)}
v_or_b32 {vr(t)}, {vr(t)}, {vr(t + 1)}
v_cvt_pk_bf16_f32 {vr(t + 1)}, {vr(m)}, 0
v_cndmask_b32 {vr(qf(a, 1) + 3)}, {vr(qf(a, 1) + 3)}, {vr(t + 1)}, {sp(sM2)}''')
                p(f'v_cndmask_b32 {vr(qf(a, 1) + 2)}, {vr(qf(a, 1) + 2)}, {vr(t)}, {sp(sM2)}')
        max_pass(3, True)
        half_max()
        patch_q(False)
        p('.Lsweep:')
        self.stamp(5)
        side = [[] for _ in range(16)]
        for g in range(8):
            sl = g % 3
            sb, ob = (sA1, 8192 * sl) if sl < 2 else (sA2, 0)
            dm = []
            for n in range(8):
                it = []
                if n == 0:
                    if g >= 3:
                        it.append(('; need', [], [f'sr{g - 3}']))
                    it += [f's_add_u32 s{sT4}, s{sSR}, {128 * g}', f's_and_b32 s{sT4}, s{sT4}, 1023',
                           f's_add_u32 s{sT4}, s{sT4}, s{sA0}']
                if n % 4 == 0 or (g < 2 and n % 2 == 0):
                    it.append(f's_add_u32 m0, s{sb}, {ob + 1024 * (n - n % 4)}')
                    dm.append(it)
                dm.append([(f'buffer_load_dwordx4 {vr(vD + n)}, {srd(sSP)}, s{sT4} offen{off(1024 * (n % 4))} lds',
                            [f'sd{g}'])])
            if g < 2:
                for n, it in enumerate(dm):
                    side[3 * g + (0, 1, 1, 2)[n // 3]].append(it)
            else:
                side[g + 4] += dm
            rd = []
            for a in range(4):
                for e in range(2):
                    it = []
                    if a == 0 and e == 0:
                        it.append(('; need', [], [f'sd{g}']))
                    it.append((f'ds_read_b128 {ar((a * 16 + 2 * g + e) * 4, 4)}, {vr(vE + e + (2 if sl == 2 else 0))}'
                               f'{off(ob + a * 2048)}', [f'sr{g}']))
                    rd.append(it)
            rt_ = (5, 7, 8, 9, 10, 11, 12, 12)[g]
            side[rt_] = (side[rt_] + rd) if g == 7 else (rd + side[rt_])
        side[1].append('ARRIVE')
        side[3].append([f'buffer_load_dword {vr(vRv)}, {vr(vRdy)}, {srd(sWS)}, 0 offen sc1'])
        side[4].append('CHECK')
        side[4].append([f's_mul_i32 s{sT1}, s{sJ}, {210 * 1024}'])
        d = self.dma_list(sT1, WIF, 64 * 1024, 42, 'z2a')
        side[4] += d[:6]
        side[5] += d[6:11]
        side[6] += d[11:]
        d = [[('; need', [], ['sr6', 'sr7']), f's_lshl_b32 s{sT0}, s{sJ}, 16'],
             [f's_add_u32 s{sT1}, s{sW}, s{sJ}' if c.rot36 else f's_mov_b32 s{sT1}, s{sW}', f's_and_b32 s{sT1}, s{sT1}, 3'],
             [f's_lshl_b32 s{sT1}, s{sT1}, 14', f's_add_u32 s{sT0}, s{sT0}, s{sT1}'],
             [f's_add_u32 s{sT0}, s{sT0}, {WOF}', f's_lshl_b32 s{sT1}, s{sI}, 12']]
        for n in range(4):
            d.append([f's_add_u32 s{sT1}, s{sT1}, 4096', f's_and_b32 s{sT1}, s{sT1}, 0x3000'])
            d.append([f's_add_u32 m0, s{sT1}, s{sA1}', f's_add_u32 s{sG}, s{sT1}, s{sT0}'])
            for k in range(4):
                d.append([(f'buffer_load_dwordx4 {vr(vL16)}, {srd(sWS)}, s{sG} offen{off(k * 1024)} sc1 lds', ['wo'])])
        side[13] += d[:16]
        side[14] += d[16:]
        side[2].append([f's_mul_i32 s{sT0}, s{sRT}, {16 * 896}', f's_mul_i32 s{sT1}, s{sJ}, 112'])
        side[2].append([f's_add_u32 s{sT0}, s{sT0}, s{sT1}', f'v_mul_u32_u24 {vr(t)}, 896, {vr(vC)}',
                         f'v_lshl_add_u32 {vr(t)}, {vr(vQ)}, 4, {vr(t)}'])
        side[2].append([f'buffer_load_dwordx4 {vr(vXR, 4)}, {vr(t)}, {srd(sX)}, s{sT0} offen'])
        side[2].append([f'buffer_load_dwordx4 {vr(vXR + 4, 4)}, {vr(t)}, {srd(sX)}, s{sT0} offen offset:64'])
        side[0].append([f's_lshl_b32 s{sT0}, s{sRT}, 5', f'v_lshlrev_b32 {vr(t)}, 1, {vr(vC)}'])
        side[0].append([f'buffer_load_ushort {vr(vBS)}, {vr(t)}, {srd(sBS)}, s{sT0} offen'])

        def owrite(a):
            return [[(f'ds_write_b128 {vr(vSP)}, {vr(O + 16 * a + 4 * k, 4)}{off(4096 * a + 1024 * k)}', ['ow'])]
                    for k in range(4)]

        p.add(kvnext())
        p(mf32(S, kf(0, 0), qf(0, 0), None))
        p(mf32(S, kf(0, 1), qf(0, 1), S))
        for n in range(64):
            tl, a = n // 4, n % 4
            if c.fine == 2 and n % 8 == 0 and n:
                self.stamp(24 + n // 8 - 1)
            sc, sn = S + 16 * (n % 2), S + 16 * ((n + 1) % 2)
            ms = [None] * 4
            if n < 63:
                t1, a1 = (n + 1) // 4, (n + 1) % 4
                ms[0] = mf32(sn, kf(t1 % 4, 0), qf(a1, 0), None)
                ms[1] = mf32(sn, kf(t1 % 4, 1), qf(a1, 1), sn)
            if n > 0:
                t0, a0 = (n - 1) // 4, (n - 1) % 4
                ms[2] = mf32(O + 16 * a0, vf(t0 % 4, 1), P + 4, O + 16 * a0)
            ms[3] = mf32(O + 16 * a, vf(tl % 4, 0), P, None if tl == 0 else O + 16 * a)
            ex = [[] for _ in range(4)]
            if tl + 3 < 16:
                if a == 0:
                    ex[0] = [kvload(tl + 3, 0)]
                    ex[1] = [kvload(tl + 3, 1)]
                if a == 1:
                    ex[0] = [kvload(tl + 3, 2)]
                    ex[1] = [kvload(tl + 3, 3)]
            if tl == 15 and a >= 2:
                w = owrite(a - 2)
                for g in range(4):
                    ex[g] = w[g]
            for g in range(4):
                if ms[g]:
                    p(ms[g])
                if a == 3 and g > 0 and tl < 12:
                    p(kvnext()[g - 1])
                if not ex[g] and side[tl]:
                    left = sum(1 for a2 in range(a, 4) for g2 in range(4)
                               if (a2, g2) >= (a, g) and not (tl + 3 < 16 and a2 < 2 and g2 < 2))
                    for _ in range(-(-len(side[tl]) // left)):
                        it = side[tl].pop(0)
                        if it == 'CHECK':
                            self.check(vRv, vRdy, 144)
                        elif it == 'ARRIVE':
                            La = p.label('noarr')
                            p(f's_cmp_lg_u32 s{sFB}, 0\ns_cbranch_scc1 {La}')
                            p.need('rst')
                            self.arrive(vRa, 15)
                            p(f'{La}:')
                        else:
                            p.add(list(it))
                else:
                    p.add(list(ex[g]))
                for jx in range(4):
                    p(f'v_exp_f32 {vr(sc + 4 * g + jx)}, {vr(sc + 4 * g + jx)}')
                p(f'v_cvt_pk_bf16_f32 {vr(P + 2 * g)}, {vr(sc + 4 * g)}, {vr(sc + 4 * g + 1)}')
                p(f'v_cvt_pk_bf16_f32 {vr(P + 2 * g + 1)}, {vr(sc + 4 * g + 2)}, {vr(sc + 4 * g + 3)}')
            if a == 3:
                assert not side[tl], (tl, side[tl])
        p(mf32(O + 48, vf(3, 1), P + 4, O + 48))
        for g in owrite(2):
            p.add(list(g))
        self.stamp(6)
        p(f'''v_max3_f32 {vr(t)}, abs({vr(O + 12)}), abs({vr(O + 28)}), abs({vr(O + 44)})
v_add_f32 {vr(t + 1)}, {vr(O + 12)}, {vr(O + 28)}
v_add_f32 {vr(t + 1)}, {vr(t + 1)}, {vr(O + 44)}
v_add_f32 {vr(t + 1)}, {vr(t + 1)}, {vr(O + 60)}
v_max3_f32 {vr(t)}, {vr(t)}, abs({vr(O + 60)}), abs({vr(O + 60)})
v_cmp_nge_f32 vcc, {hx(2.0 ** 60)}, {vr(t)}
v_cmp_u_f32 {sp(sM0)}, {vr(t + 1)}, {vr(t + 1)}
s_or_b64 vcc, vcc, {sp(sM0)}
s_cmp_lg_u64 vcc, 0
s_cselect_b32 s{sT0}, 1, {1 if c.force_fb else 0}
s_lshl_b32 s{sT1}, s{sW}, 2
s_add_u32 s{sT1}, s{sT1}, {FLG}
v_mov_b32 {vr(t)}, s{sT0}
v_mov_b32 {vr(t + 1)}, s{sT1}''')
        p(f'ds_write_b32 {vr(t + 1)}, {vr(t)}', tokw=['ow'])
        p(f'v_mov_b32 {vr(t + 1)}, {FLG}')
        p.need('ow', 'wo', 'z2a')
        p('s_barrier')
        p(f'ds_read_b128 {vr(t + 4, 4)}, {vr(t + 1)}')
        R = S
        for a in range(3):
            for k in range(4):
                p(f'ds_read_b128 {vr(R + 16 * a + 4 * k, 4)}, {vr(vW0 + a)}{off(k * 1024)}')
        p(f'''v_or_b32 {vr(t + 4)}, {vr(t + 4)}, {vr(t + 5)}
v_or3_b32 {vr(t + 4)}, {vr(t + 4)}, {vr(t + 6)}, {vr(t + 7)}
v_readfirstlane_b32 s{sT0}, {vr(t + 4)}
s_andn2_b32 s{sT0}, s{sT0}, s{sFB}
s_cmp_lg_u32 s{sT0}, 0
s_cbranch_scc1 .Ltruemax''')
        Oo = O + 48
        for a in range(3):
            for k in range(8):
                p(f'v_pk_add_f32 {vr(Oo + 2 * k, 2)}, {vr(Oo + 2 * k, 2)}, {vr(R + 16 * a + 2 * k, 2)}')
        p(f'''v_mov_b32 {vr(t)}, {vr(Oo + 12)}
v_mov_b32 {vr(t + 2)}, {vr(Oo + 12)}
v_permlane32_swap_b32 {vr(t)}, {vr(t + 2)}
v_rcp_f32 {vr(t)}, {vr(t + 2)}
v_mov_b32 {vr(t + 1)}, {vr(t)}
v_cndmask_b32 {vr(t + 2)}, {vr(t)}, 0, {sp(sM2)}
v_mov_b32 {vr(t + 3)}, {vr(t + 2)}''')
        p(f'''s_lshl_b32 s{sT0}, s{sQB}, 3
s_lshl_b32 s{sT1}, s{sW}, 1
s_add_u32 s{sT0}, s{sT0}, s{sT1}
s_lshl_b32 s{sT0}, s{sT0}, 4
s_add_u32 s{sT0}, s{sT0}, s{sHD}
s_lshl_b32 s{sT0}, s{sT0}, 10
s_add_u32 s{sT0}, s{sT0}, {OF}
v_and_b32 {vr(vPo)}, 1, {vr(vQ)}
v_lshlrev_b32 {vr(vPo)}, 14, {vr(vPo)}
v_lshrrev_b32 {vr(vRv)}, 1, {vr(vQ)}
v_lshl_add_u32 {vr(vPo)}, {vr(vRv)}, 8, {vr(vPo)}
v_lshl_add_u32 {vr(vPo)}, {vr(vC)}, 4, {vr(vPo)}''')
        for k in range(8):
            sc = t if k < 6 else t + 2
            p(f'v_pk_mul_f32 {vr(Oo + 2 * k, 2)}, {vr(Oo + 2 * k, 2)}, {vr(sc, 2)}')
        for k in range(8):
            p(f'v_cvt_pk_bf16_f32 {vr(O + k)}, {vr(Oo + 2 * k)}, {vr(Oo + 2 * k + 1)}')
        for a in range(2):
            p(f'buffer_store_dwordx4 {vr(O + 4 * a, 4)}, {vr(vPo)}, {srd(sWS)}, s{sT0} offen{off(512 * a)} sc1',
              tokw=['st2'])
        p(f'''s_lshl_b32 s{sT0}, s{sQB}, 2
s_add_u32 s{sT0}, s{sT0}, s{sW}
s_lshl_b32 s{sT0}, s{sT0}, 8
s_add_u32 s{sT0}, s{sT0}, {CNT + C_S2 * 128}
v_lshlrev_b32 {vr(vSP)}, 7, {vr(vL)}
v_add_u32 {vr(vSP)}, s{sT0}, {vr(vSP)}''')
        p.need('st2')
        self.arrive(vSP, 3)
        self.stamp(7)

        def truemax():
            p('.Ltruemax:')
            p('s_waitcnt vmcnt(0) lgkmcnt(0)\ns_barrier')
            p(f's_mov_b32 s{sFB}, 1')
            for a in range(4):
                for r in (2, 3):
                    p(f'v_cndmask_b32 {vr(qf(a, 1) + r)}, {vr(qf(a, 1) + r)}, 0, {sp(sM2)}')
                p(f'v_mov_b32 {vr(vM + a)}, 0xff7fffff')
            p(f's_mov_b32 s{sKV}, s93\ns_mov_b32 s{sT0}, 16')
            p('.Ltm_loop:')
            p(kvload(3, 0))
            p(kvload(3, 1))
            max_pass(3, False)
            p(f's_add_u32 s{sKV}, s{sKV}, 4096\ns_sub_u32 s{sT0}, s{sT0}, 1\ns_cmp_lg_u32 s{sT0}, 0')
            p('s_cbranch_scc1 .Ltm_loop')
            half_max()
            for a in range(4):
                p(f'''s_add_u32 s{sT0}, s{sW}, {1 + a}
s_and_b32 s{sT0}, s{sT0}, 3
s_lshl_b32 s{sT0}, s{sT0}, 10
s_add_u32 s{sT0}, s{sT0}, {SCR}
v_lshlrev_b32 {vr(t + a)}, 2, {vr(vL)}
v_add_u32 {vr(t + a)}, s{sT0}, {vr(t + a)}
s_lshl_b32 s{sT0}, s{sW}, 8
v_add_u32 {vr(t + 4)}, s{sT0}, {vr(t + a)}''')
                p(f'ds_write_b32 {vr(t + 4)}, {vr(vM + a)}', tokw=['tm'])
            p.need('tm')
            p('s_barrier')
            for a in range(4):
                for k in range(4):
                    p(f'ds_read_b32 {vr(S + 4 * a + k)}, {vr(t + a)}{off(256 * k)}')
            for a in range(4):
                p(f'v_max3_f32 {vr(vM + a)}, {vr(S + 4 * a)}, {vr(S + 4 * a + 1)}, {vr(S + 4 * a + 2)}')
                p(f'v_max_f32 {vr(vM + a)}, {vr(vM + a)}, {vr(S + 4 * a + 3)}')
            patch_q(True)
            p('s_waitcnt lgkmcnt(0)\ns_barrier')
            first_kv()
            p('s_branch .Lsweep')
        self.truemax = truemax

    def gemm_lds(self, nks, nct, lds_addr, act, acc, ring, nring, w_is_a, fill=(), per=0.0, hooks=None, ahead=6,
                 pre=None, fstart=0, side=None):
        p = self.p
        seq = [(ks, ct) for ks in range(nks) for ct in range(nct)]
        fill = list(fill)
        hooks = hooks or {}
        rd = lambda n: lds_rd(ring + 4 * (n % nring), lds_addr(*seq[n]))
        issued = 0
        accu = 0.0

        def run_hook(n):
            if n < len(seq) and seq[n][1] == 0 and seq[n][0] in hooks:
                hooks.pop(seq[n][0])()
        while issued < min(ahead, len(seq)):
            run_hook(issued)
            p(rd(issued))
            issued += 1
        for n, (ks, ct) in enumerate(seq):
            if ct == 0 and pre and ks in pre:
                p.add(pre[ks])
            wf = vr(ring + 4 * (n % nring), 4)
            a, b = (wf, act(ks)) if w_is_a else (act(ks), wf)
            p(mf16(acc(ct), a, b, None if ks == 0 else acc(ct)))
            if issued < len(seq):
                run_hook(issued)
                p(rd(issued))
                issued += 1
            if side and n in side:
                p.add(side[n])
            if n >= fstart:
                accu += per
            while accu >= 1 and fill:
                p.add(fill.pop(0))
                accu -= 1
        p.add(fill)

    def gelu(self, regs, t, scale):
        o = []
        for n in range(0, len(regs), 2):
            r = regs[n]
            u = t + 2 * ((n // 2) % 4)
            o.append([f'v_pk_mul_f32 {vr(r, 2)}, {vr(r, 2)}, {scale(n // 2)}',
                      f'v_pk_mul_f32 {vr(u, 2)}, {vr(r, 2)}, {vr(r, 2)}',
                      f'v_pk_fma_f32 {vr(u, 2)}, {vr(u, 2)}, {vr(168, 2)}, {vr(170, 2)}',
                      f'v_pk_mul_f32 {vr(u, 2)}, {vr(u, 2)}, {vr(r, 2)}',
                      f'v_exp_f32 {vr(u)}, {vr(u)}',
                      f'v_exp_f32 {vr(u + 1)}, {vr(u + 1)}',
                      f'v_pk_add_f32 {vr(u, 2)}, {vr(u, 2)}, 1.0 op_sel_hi:[1,0]',
                      f'v_rcp_f32 {vr(u)}, {vr(u)}',
                      f'v_rcp_f32 {vr(u + 1)}, {vr(u + 1)}',
                      f'v_pk_mul_f32 {vr(r, 2)}, {vr(r, 2)}, {vr(u, 2)}'])
        out = []
        for n in range(0, len(o), 2):
            if n + 1 < len(o):
                for a, b in zip(o[n], o[n + 1]):
                    out += [a, b]
            else:
                out += o[n]
        return out

    def phase3(self):
        p = self.p
        OB, RING, ACC = 16, 80, 112
        vA, vB, t = 7, 8, 10
        p(f's_mul_i32 s{sT1}, s{sJ}, {210 * 1024}')
        for a in range(4):
            if a < 3:
                p(f'''s_add_u32 s{sT5}, s{sW}, {3 - a}
s_and_b32 s{sT5}, s{sT5}, 3
s_mul_i32 s{sT5}, s{sT5}, 12288
s_add_u32 s{sT5}, s{sT5}, {a * 4096}''')
            else:
                p(f's_mov_b32 s{sT5}, {48 * 1024}')
            p(f'''s_add_u32 s{sG}, s{sT1}, s{sT5}
s_add_u32 s{sG}, s{sG}, {WIF + 42 * 1024}
s_add_u32 m0, s{sT5}, {106 * 1024}''')
            for n in range(4 if a < 3 else 1):
                p(f'buffer_load_dwordx4 {vr(vL16)}, {srd(sWS)}, s{sG} offen{off(n * 1024)} sc1 lds', tokw=['z2b'])
        p(f'''s_lshr_b32 s{sT0}, s{sRT}, 1
s_lshl_b32 s{sT0}, s{sT0}, 1
s_add_u32 s{sT0}, s{sT0}, s{sCH}
s_lshl_b32 s{sT0}, s{sT0}, 7
s_add_u32 s{sT0}, s{sT0}, {CNT + C_S2 * 128}
v_mov_b32 {vr(vA)}, s{sT0}
s_lshl_b32 s{sT0}, s{sRT}, 14
s_add_u32 s{sT0}, s{sT0}, {OF}''')
        for g in range(4):
            p(f's_add_u32 s{sT2}, s{sJ}, {g}' if self.c.rot36 else f's_mov_b32 s{sT2}, {g}')
            p(f's_and_b32 s{sT2}, s{sT2}, 3\ns_lshl_b32 s{sT2}, s{sT2}, 12\ns_add_u32 s{sA0 + g}, s{sT2}, s{sT0}')
        self.poll(vA, 16)
        self.stamp(8)
        def old(ks):
            return f'buffer_load_dwordx4 {vr(OB + 4 * ks, 4)}, {vr(vL16)}, {srd(sWS)}, s{sA0 + ks // 4} offen' \
                   f'{off(1024 * (ks % 4))} sc1'
        for ks in range(8):
            p(old(ks))
        p(f'''s_mul_i32 s{sT0}, s{sRT}, 14336
s_mul_i32 s{sT2}, s{sJ}, {7 * 256}
s_add_u32 s{sT0}, s{sT0}, s{sT2}
s_add_u32 s{sT0}, s{sT0}, {HF}
v_cmp_eq_u32 vcc, 3, {vr(vQ)}
v_mov_b32 {vr(vB)}, {OOR}
v_cndmask_b32 {vr(vB)}, {vr(vL16)}, {vr(vB)}, vcc''')
        self.gemm_lds(16, 4, lambda ks, ct: (ks * 4 + ct) * 1024, lambda ks: vr(OB + 4 * ks, 4),
                      lambda ct: ACC + 4 * ct, RING, 8, True, side={4 * ks: [old(ks + 8)] for ks in range(8)})
        for k in range(8):
            x = vXR + k
            a = ACC + 2 * k
            p(f'''v_lshlrev_b32 {vr(t)}, 16, {vr(x)}
v_and_b32 {vr(t + 1)}, 0xffff0000, {vr(x)}
v_pk_add_f32 {vr(a, 2)}, {vr(a, 2)}, {vr(t, 2)}
v_cvt_pk_bf16_f32 {vr(x)}, {vr(a)}, {vr(a + 1)}''')
            if k == 3:
                p(f'buffer_store_dwordx4 {vr(vXR, 4)}, {vr(vL16)}, {srd(sWS)}, s{sT0} offen sc1', tokw=['st3'])
        p(f'buffer_store_dwordx4 {vr(vXR + 4, 4)}, {vr(vB)}, {srd(sWS)}, s{sT0} offen offset:1024 sc1', tokw=['st3'])
        p(f'''s_lshl_b32 s{sT0}, s{sRT}, 8
s_add_u32 s{sT0}, s{sT0}, {CNT + C_S3 * 128}
v_lshlrev_b32 {vr(vA)}, 7, {vr(vL)}
v_add_u32 {vr(vA)}, s{sT0}, {vr(vA)}''')
        p.need('st3')
        self.arrive(vA, 3)
        self.stamp(9)
        p('s_barrier')

    def phase4(self):
        p = self.p
        HB, RING, Z2, Z1 = 16, 80, 112, 140
        ONES, NA, G, SA, RS = 172, 176, 180, 192, 200
        vA, vPerm, vS, vZ, vZo, vP4 = 7, 8, 9, 12, 13, 14
        t = 10
        K = 1024

        def z2addr(ks, ct):
            return (64 * K + (ks * 7 + ct) * K) if ks < 13 else ((ks - 13) * 7 + ct) * K

        def z1addr(ks, ct):
            return (14 * K + (ks * 7 + ct) * K) if ks < 7 else 64 * K + ((ks - 7) * 7 + ct) * K
        p(f's_mul_i32 s{sT1}, s{sJ}, {210 * K}')
        self.emit_groups(self.dma_list(sT1, WIF + 91 * K, 0, 63, 'z1a'))
        p(f'''s_lshl_b32 s{sT0}, s{sRT}, 1
s_add_u32 s{sT0}, s{sT0}, s{sCH}
s_lshl_b32 s{sT0}, s{sT0}, 7
s_add_u32 s{sT0}, s{sT0}, {CNT + C_S3 * 128}
v_mov_b32 {vr(vA)}, s{sT0}
s_mul_i32 s{sT0}, s{sRT}, 14336
s_add_u32 s{sT0}, s{sT0}, {HF}''')
        for r in range(4):
            p(f'v_mov_b32 {vr(ONES + r)}, 0x3f803f80')
        k1 = -2.0 * math.sqrt(2.0 / math.pi) * math.log2(math.e)
        p(f'''v_mov_b32 v168, {hx(k1 * 0.044715)}
v_mov_b32 v169, {hx(k1 * 0.044715)}
v_mov_b32 v170, {hx(k1)}
v_mov_b32 v171, {hx(k1)}
v_mov_b32 {vr(HB + 58)}, 0
v_mov_b32 {vr(HB + 59)}, 0
v_lshlrev_b32 {vr(vP4)}, 4, {vr(vQ)}
v_cmp_gt_u32 {sp(sM2)}, 2, {vr(vQ)}''')
        self.ln_masks(vPerm)
        for g in range(4):
            p(f's_add_u32 s{sA0 + g}, s{sT0}, {4096 * g}')
        p.need('z2b', 'z1a')
        p('s_barrier')
        self.poll(vA, 8)
        self.stamp(10)

        def hld(ks):
            return f'buffer_load_dwordx4 {vr(HB + 4 * ks, 4)}, {vr(vL16)}, {srd(sWS)}, s{sA0 + ks // 4} offen' \
                   f'{off((ks % 4) * K)} sc1'
        for ks in range(8):
            p(hld(ks))
        pre = {}
        for ks in range(7):
            pre[ks] = []
            for k2 in (2 * ks, 2 * ks + 1):
                h = vr(HB + 4 * k2, 4)
                pre[ks] += [mf16(SA, vr(ONES, 4), h, None if k2 == 0 else SA),
                            mf16(SA + 4, h, h, None if k2 == 0 else SA + 4)]
        fill = self.ln_finish(SA, SA + 4, NA, t, vPerm)
        E = HB + 56
        fill += [f'v_cvt_pk_bf16_f32 {vr(E)}, {vr(NA + 1)}, {vr(NA + 1)}',
                 f'v_and_b32 {vr(t)}, 0xffff0000, {vr(E)}',
                 f'v_sub_f32 {vr(t)}, {vr(NA + 1)}, {vr(t)}',
                 f'v_cvt_pk_bf16_f32 {vr(E)}, {vr(NA + 1)}, {vr(t)}',
                 f'v_cndmask_b32 {vr(E)}, 0, {vr(E)}, {sp(sM2)}',
                 f'v_mov_b32 {vr(E + 1)}, {vr(E)}']
        fill += [f'ds_bpermute_b32 {vr(RS + r)}, {vr(vP4)}, {vr(NA)}{off(4 * r)}' for r in range(4)]

        def bar(tok):
            def f():
                p.need(tok)
                p('s_barrier')
            return f
        self.gemm_lds(15, 7, z2addr, lambda ks: vr(HB + 4 * ks, 4), lambda ct: Z2 + 4 * ct, RING, 8, False,
                      fill=fill, per=0.5, fstart=52, pre=pre, side={3 * n: [hld(8 + n)] for n in range(6)})
        p('s_barrier')
        self.stamp(12)
        p(f's_mul_i32 s{sT2}, s{sJ}, {112 * K}\ns_add_u32 s{sT2}, s{sT2}, {WUF}')
        d = self.dma_list(sT1, WIF + (105 + 49) * K, 64 * K, 56, 'z1b')
        g = self.gelu(list(range(Z2, Z2 + 28)), G, lambda n: vr(RS + 2 * (n % 2), 2))
        p.add(interleave(g, [list(x) for x in d], per=len(d) / float(len(g)) + 0.01))
        SS, SQ = G, G + 4
        for ct in range(7):
            for h in range(2):
                z = vr(Z2 + 4 * ct + 2 * h, 2)
                if ct == 0:
                    p(f'v_pk_mul_f32 {vr(SQ + 2 * h, 2)}, {z}, {z}')
                else:
                    p(f'v_pk_fma_f32 {vr(SQ + 2 * h, 2)}, {z}, {z}, {vr(SQ + 2 * h, 2)}')
                    a = vr(Z2 + 2 * h, 2) if ct == 1 else vr(SS + 2 * h, 2)
                    p(f'v_pk_add_f32 {vr(SS + 2 * h, 2)}, {z}, {a}')
        for sh in (8, 4, 2, 1):
            for r in range(8):
                p(f'v_add_f32_dpp {vr(G + r)}, {vr(G + r)}, {vr(G + r)} row_ror:{sh} row_mask:0xf bank_mask:0xf')
        PB = G + 8
        p(f'''v_cndmask_b32 {vr(PB)}, {vr(SS)}, {vr(SS + 2)}, {sp(sM0)}
v_cndmask_b32 {vr(PB + 1)}, {vr(SQ)}, {vr(SQ + 2)}, {sp(sM0)}
v_cndmask_b32 {vr(PB + 2)}, {vr(SS + 1)}, {vr(SS + 3)}, {sp(sM0)}
v_cndmask_b32 {vr(PB + 3)}, {vr(SQ + 1)}, {vr(SQ + 3)}, {sp(sM0)}
v_lshlrev_b32 {vr(vS)}, 5, {vr(vQ)}
v_lshl_add_u32 {vr(vA)}, {vr(vC)}, 4, {vr(vS)}
s_lshl_b32 s{sT0}, s{sRT}, 10
s_add_u32 s{sT0}, s{sT0}, {ST}
s_lshl_b32 s{sT3}, s{sJ}, 7
s_add_u32 s{sT3}, s{sT3}, s{sT0}''')
        for r in range(4):
            p(f'v_min_u32 {vr(PB + r)}, -2, {vr(PB + r)}')
        p(f's_mov_b32 exec_lo, 0x00030003\ns_mov_b32 exec_hi, 0x00030003')
        p(f'buffer_store_dwordx4 {vr(PB, 4)}, {vr(vA)}, {srd(sWS)}, s{sT3} offen sc1')
        p('s_mov_b64 exec, -1')
        self.stamp(13)
        p(f'''v_and_b32 {vr(vA)}, 7, {vr(vC)}
v_lshl_add_u32 {vr(vS)}, {vr(vA)}, 7, {vr(vS)}
v_lshrrev_b32 {vr(vA)}, 3, {vr(vC)}
v_lshl_add_u32 {vr(vS)}, {vr(vA)}, 4, {vr(vS)}''')
        d = [list(x) for x in self.dma_wu(0, 8, 120 * K, 'wua')]
        self.gemm_lds(15, 7, z1addr, lambda ks: vr(HB + 4 * ks, 4), lambda ct: Z1 + 4 * ct, RING, 8, True,
                      hooks={7: bar('z1b')}, fill=d, per=0.25)
        self.stamp(14)
        L, Dn = p.label('st'), p.label('std')
        p(f'{L}:')
        p(f'buffer_load_dwordx4 {vr(PB, 4)}, {vr(vS)}, {srd(sWS)}, s{sT0} offen sc1')
        p(f'''v_max3_u32 {vr(t)}, {vr(PB)}, {vr(PB + 1)}, {vr(PB + 2)}
v_max_u32 {vr(t)}, {vr(t)}, {vr(PB + 3)}
v_cmp_eq_u32 vcc, -1, {vr(t)}
s_cbranch_vccz {Dn}
s_sub_u32 s{sTO}, s{sTO}, 1
s_cmp_lg_u32 s{sTO}, 0
s_cbranch_scc1 {L}
s_branch .Lexit
{Dn}:''')
        self.stamp(15)
        for m in ('quad_perm:[1,0,3,2]', 'quad_perm:[2,3,0,1]', 'row_half_mirror'):
            for r in range(4):
                p(f'v_add_f32_dpp {vr(PB + r)}, {vr(PB + r)}, {vr(PB + r)} {m} row_mask:0xf bank_mask:0xf')
        for r in range(2):
            s, q = PB + 2 * r, PB + 2 * r + 1
            p(f'''v_mul_f32 {vr(s)}, {hx(1.0 / 896)}, {vr(s)}
v_mul_f32 {vr(t + r)}, {vr(s)}, {vr(s)}
v_sub_f32 {vr(t + r)}, {hx(1e-5)}, {vr(t + r)}
v_fmac_f32 {vr(t + r)}, {hx(1.0 / 896)}, {vr(q)}
v_max_f32 {vr(t + r)}, {hx(1e-5)}, {vr(t + r)}
v_rsq_f32 {vr(q)}, {vr(t + r)}''')
        for r in range(2):
            s, q = PB + 2 * r, PB + 2 * r + 1
            p(f'v_mul_f32 {vr(s)}, {vr(s)}, {vr(q)}')
            p(f'v_sub_f32 {vr(s)}, 0, {vr(s)}')
        RA, RB = G, G + 4
        for r in range(4):
            p(f'v_mov_b32 {vr(RA + r)}, {vr(PB + 2 * (r % 2) + 1)}')
            p(f'v_mov_b32 {vr(RB + r)}, {vr(PB + 2 * (r % 2))}')
        for r in range(4):
            bm = '0xc' if r < 2 else '0x3'
            p(f'v_mov_b32_dpp {vr(RA + r)}, {vr(PB + 2 * (r % 2) + 1)} row_ror:8 row_mask:0xf bank_mask:{bm}')
            p(f'v_mov_b32_dpp {vr(RB + r)}, {vr(PB + 2 * (r % 2))} row_ror:8 row_mask:0xf bank_mask:{bm}')
        p(f'''s_lshl_b32 s{sT0}, s{sJ}, 6
s_lshr_b32 s{sT3}, s{sRT}, 1
s_add_u32 s{sT0}, s{sT0}, s{sT3}
s_mul_i32 s{sT0}, s{sT0}, 7168
s_and_b32 s{sT3}, s{sW}, 1
s_lshl_b32 s{sT3}, s{sT3}, 9
s_add_u32 s{sT0}, s{sT0}, s{sT3}
s_add_u32 s{sT0}, s{sT0}, {ZF}
s_add_u32 s{sT3}, s{sT0}, 4096
v_and_b32 {vr(vA)}, 1, {vr(vQ)}
v_cmp_ne_u32 vcc, 0, {vr(vA)}
v_lshlrev_b32 {vr(vZ)}, 10, {vr(vA)}
v_lshrrev_b32 {vr(vA)}, 1, {vr(vQ)}
v_lshl_add_u32 {vr(vZ)}, {vr(vA)}, 8, {vr(vZ)}
v_lshl_add_u32 {vr(vZ)}, {vr(vC)}, 4, {vr(vZ)}
v_mov_b32 {vr(vZo)}, {OOR}
v_cndmask_b32 {vr(vZo)}, {vr(vZ)}, {vr(vZo)}, vcc''')
        D = RING
        for a in range(4):
            d = D + 4 * a
            for e in range(2):
                ct = 2 * a + e
                if ct < 7:
                    for h in range(2):
                        z = Z2 + 4 * ct + 2 * h
                        p(f'v_pk_fma_f32 {vr(z, 2)}, {vr(z, 2)}, {vr(RA + 2 * h, 2)}, {vr(RB + 2 * h, 2)}')
                    for h in range(2):
                        z = Z2 + 4 * ct + 2 * h
                        p(f'v_cvt_pk_bf16_f32 {vr(d + 2 * e + h)}, {vr(z)}, {vr(z + 1)}')
            p(f'v_permlane16_swap_b32 {vr(d)}, {vr(d + 2)}')
            p(f'v_permlane16_swap_b32 {vr(d + 1)}, {vr(d + 3)}')
            p(f'buffer_store_dwordx4 {vr(d, 4)}, {vr(vZ if a < 3 else vZo)}, {srd(sWS)}, s{sT0 if a < 2 else sT3} offen'
              f'{off((a % 2) * 2048)} sc1', tokw=['st5'])
        p(f'''s_lshl_b32 s{sT0}, s{sJ}, 2
s_add_u32 s{sT0}, s{sT0}, s{sRQ}
s_lshl_b32 s{sT0}, s{sT0}, 9
s_add_u32 s{sT0}, s{sT0}, {CNT + C_S5 * 128}
v_lshlrev_b32 {vr(vA)}, 7, {vr(vL)}
v_add_u32 {vr(vA)}, s{sT0}, {vr(vA)}''')
        p.need('st5')
        p('s_barrier')
        Ls = p.label('noarr')
        p(f's_cmp_lg_u32 s{sW}, 0\ns_cbranch_scc1 {Ls}')
        self.arrive(vA, 15)
        p(f'{Ls}:')
        self.stamp(16)
        d = self.dma_wu(8, 9, 84 * K, 'wub')
        g = self.gelu(list(range(Z1, Z1 + 28)), G, lambda n: f'{vr(NA, 2)} op_sel_hi:[1,0]')
        p.add(interleave(g, [list(x) for x in d], per=len(d) / float(len(g)) + 0.01))
        for k in range(14):
            p(f'v_cvt_pk_bf16_f32 {vr(vZ1 + k)}, {vr(Z1 + 2 * k)}, {vr(Z1 + 2 * k + 1)}')

    def phase5(self):
        p = self.p
        ZB, ACC = 16, 100
        vA, vW0, vY, vYo = 7, 8, 11, 12
        t = 14
        K = 1024
        acc = lambda a, ct: ACC + (a * 7 + ct) * 4
        zb = lambda ks, ct: ZB + ((ks % 3) * 7 + ct) * 4
        p(f'''s_lshl_b32 s{sT0}, s{sJ}, 2
s_add_u32 s{sT0}, s{sT0}, s{sW}
s_lshl_b32 s{sT0}, s{sT0}, 2
s_add_u32 s{sT0}, s{sT0}, s{sRQ}
s_lshl_b32 s{sT0}, s{sT0}, 7
s_add_u32 s{sT0}, s{sT0}, {CNT + C_S5 * 128}
v_mov_b32 {vr(vA)}, s{sT0}
s_lshl_b32 s{sT0}, s{sJ}, 2
s_add_u32 s{sT0}, s{sT0}, s{sW}
s_mul_i32 s{sT0}, s{sT0}, {16 * 7168}
s_add_u32 s{sA2}, s{sT0}, {ZF}
s_mul_i32 s{sA3}, s{sK2 + 1}, {7168 * 4 // 256}
s_add_u32 s{sA0}, s{sA2}, s{sA3}
s_add_u32 s{sA1}, s{sA0}, 4096
s_and_b32 s{sT0}, s{sI}, 7
s_lshl_b32 s{sT0}, s{sT0}, 7
s_add_u32 s{sT0}, s{sT0}, s{sA0}
s_add_u32 s{sK1}, s{sWS}, s{sT0}
s_addc_u32 s{sK1 + 1}, s{sWS + 1}, 0''')
        for a in range(3):
            p(f'''s_add_u32 s{sT0}, s{sW}, {1 + a}
s_and_b32 s{sT0}, s{sT0}, 3
s_mul_i32 s{sT0}, s{sT0}, {3 * 7168}
s_add_u32 s{sT0}, s{sT0}, {a * 7168}
v_add_u32 {vr(vW0 + a)}, s{sT0}, {vr(vL16)}''')
        self.stamp(17)
        self.poll(vA, 8)
        self.stamp(18)

        def zl(ks, ct):
            o = []
            if ct == 0 and ks:
                o += [f's_add_u32 s{sA3}, s{sA3}, 7168']
                if ks % 4 == 0:
                    o += [f's_cmp_eq_u32 s{sA3}, {16 * 7168}', f's_cselect_b32 s{sA3}, 0, s{sA3}']
                o += [f's_add_u32 s{sA0}, s{sA2}, s{sA3}']
            if ct == 4 and ks:
                o += [f's_add_u32 s{sA1}, s{sA0}, 4096']
            o.append(f'buffer_load_dwordx4 {vr(zb(ks, ct), 4)}, {vr(vL16)}, {srd(sWS)}, s{sA0 if ct < 4 else sA1} offen'
                     f'{off((ct % 4) * K)} sc1')
            return o
        for ks in range(3):
            for ct in range(7):
                p.add(zl(ks, ct))
        mm = lambda a, ks, ct: mf16(acc(a, ct), vr(zb(ks, ct), 4), ar((a * 16 + ks) * 4, 4),
                                    None if ks == 0 else acc(a, ct))
        PF = 6
        if self.c.spf:
            for ks in range(3, PF):
                for ct in range(7):
                    p(f's_load_dword s100, {sp(sK1)}, {ks * 7168 + ct * 1024} ; nodst')
        for ks in range(13):
            if self.c.fine == 5 and ks % 2 == 1:
                self.stamp(24 + ks // 2)
            for ct in range(7):
                for a in range(4):
                    p(mm(a, ks, ct))
                    if a == 1 and self.c.spf and ks + PF < 16:
                        p(f's_load_dword s100, {sp(sK1)}, {(ks + PF) * 7168 + ct * 1024} ; nodst')
                p.add(zl(ks + 3, ct))
        if self.c.spf:
            p('s_waitcnt lgkmcnt(0)')
        for a in range(4):
            w = []
            if a:
                w = [(f'ds_write_b128 {vr(vW0 + a - 1)}, {vr(acc(a - 1, ct), 4)}{off(ct * K)}', ['pw'])
                     for ct in range(7)]
            n = 0
            for ks in (13, 14, 15):
                for ct in range(7):
                    p(mm(a, ks, ct))
                    n += 1
                    if w and n >= 2 and (n % 3) == 2:
                        p.add(w.pop(0))
            p.add(w)
        self.stamp(19)
        p(f's_mul_i32 s{sT0}, s{sW}, {3 * 7168}\nv_add_u32 {vr(vW0)}, s{sT0}, {vr(vL16)}')
        p(f'''s_mul_i32 s{sT0}, s{sRT}, 28672
s_mul_i32 s{sT1}, s{sJ}, {14 * 256}
s_add_u32 s{sT0}, s{sT0}, s{sT1}
s_add_u32 s{sT0}, s{sT0}, {YF}
v_and_b32 {vr(vA)}, 1, {vr(vQ)}
v_cmp_ne_u32 vcc, 0, {vr(vA)}
v_lshrrev_b32 {vr(vA)}, 1, {vr(vQ)}
v_lshlrev_b32 {vr(vYo)}, 8, {vr(vA)}
v_lshl_add_u32 {vr(vYo)}, {vr(vC)}, 4, {vr(vYo)}
v_mov_b32 {vr(vA)}, {OOR}
v_cndmask_b32 {vr(vYo)}, {vr(vYo)}, {vr(vA)}, vcc
v_lshlrev_b32 {vr(vBS)}, 16, {vr(vBS)}
v_mov_b32 {vr(t)}, {vr(vBS)}
v_mov_b32 {vr(t + 1)}, {vr(vBS)}''')
        p.need('pw', 'wua', 'wub')
        p('s_barrier')
        for a in range(3):
            for ct in range(7):
                p(f'ds_read_b128 {vr(ZB + (a * 7 + ct) * 4, 4)}, {vr(vW0)}{off((a * 7 + ct) * K)}', tokw=['pr'])
        G = acc(3, 0)
        for k in range(14):
            p(f'v_pk_add_f32 {vr(G + 2 * k, 2)}, {vr(G + 2 * k, 2)}, {vr(t, 2)}')
        for a in range(3):
            for k in range(14):
                p(f'v_pk_add_f32 {vr(G + 2 * k, 2)}, {vr(G + 2 * k, 2)}, {vr(ZB + a * 28 + 2 * k, 2)}')
        D = ACC
        for k in range(14):
            u = ZB + 2 * (k % 4)
            p(f'''v_lshlrev_b32 {vr(u)}, 16, {vr(vZ1 + k)}
v_and_b32 {vr(u + 1)}, 0xffff0000, {vr(vZ1 + k)}
v_pk_mul_f32 {vr(G + 2 * k, 2)}, {vr(G + 2 * k, 2)}, {vr(u, 2)}
v_cvt_pk_bf16_f32 {vr(D + k)}, {vr(G + 2 * k)}, {vr(G + 2 * k + 1)}''')
            if k % 4 == 3:
                a = k // 4
                p(f'buffer_store_dwordx4 {vr(D + 4 * a, 4)}, {vr(vL16)}, {srd(sWS)}, s{sT0} offen{off(1024 * a)} sc1',
                  tokw=['st6'])
        p(f'''v_mov_b32 {vr(D + 14)}, {vr(D + 12)}
v_mov_b32 {vr(D + 15)}, {vr(D + 13)}
v_permlane16_swap_b32 {vr(D + 12)}, {vr(D + 14)}
v_permlane16_swap_b32 {vr(D + 13)}, {vr(D + 15)}''')
        p(f'buffer_store_dwordx4 {vr(D + 12, 4)}, {vr(vYo)}, {srd(sWS)}, s{sT0} offen offset:3072 sc1', tokw=['st6'])
        p(f'''s_lshl_b32 s{sT0}, s{sRT}, 8
s_add_u32 s{sT0}, s{sT0}, {CNT + C_S6 * 128}
v_lshlrev_b32 {vr(vA)}, 7, {vr(vL)}
v_add_u32 {vr(vA)}, s{sT0}, {vr(vA)}''')
        p.need('st6')
        self.arrive(vA, 3)
        self.stamp(20)
        p.need('pr')
        p('s_barrier')

    def phase6(self):
        p = self.p
        YB, RING, ACC = 16, 128, 160
        vA, vO, vOo, t = 7, 8, 9, 10
        K = 1024

        def wuaddr(ks, ct):
            if ks < 8:
                return 120 * K + (ks * 4 + ct) * K
            if ks < 17:
                return 84 * K + ((ks - 8) * 4 + ct) * K
            return ((ks - 17) * 4 + ct) * K
        p(f's_mul_i32 s{sT2}, s{sJ}, {112 * K}\ns_add_u32 s{sT2}, s{sT2}, {WUF}')
        self.emit_groups(self.dma_wu(17, 11, 0, 'wuc'))
        p(f'''s_lshl_b32 s{sT0}, s{sRT}, 1
s_add_u32 s{sT0}, s{sT0}, s{sCH}
s_lshl_b32 s{sT0}, s{sT0}, 7
s_add_u32 s{sT0}, s{sT0}, {CNT + C_S6 * 128}
v_mov_b32 {vr(vA)}, s{sT0}
s_mul_i32 s{sT0}, s{sRT}, 28672
s_add_u32 s{sT0}, s{sT0}, {YF}
s_mul_i32 s{sT1}, s{sRT}, {16 * 896}
s_mul_i32 s{sT3}, s{sJ}, 112
s_add_u32 s{sT1}, s{sT1}, s{sT3}
v_mul_u32_u24 {vr(vO)}, 896, {vr(vC)}
v_lshl_add_u32 {vr(vO)}, {vr(vQ)}, 4, {vr(vO)}
v_cmp_eq_u32 vcc, 3, {vr(vQ)}
v_mov_b32 {vr(vOo)}, {OOR}
v_cndmask_b32 {vr(vOo)}, {vr(vO)}, {vr(vOo)}, vcc''')
        for g in range(4):
            p(f's_add_u32 s{sT2}, s{sJ}, {g}' if self.c.rot36 else f's_mov_b32 s{sT2}, {g}')
            p(f's_and_b32 s{sT2}, s{sT2}, 3\ns_mul_i32 s{sT2}, s{sT2}, 7168\ns_add_u32 s{88 + 2 * g}, s{sT2}, s{sT0}')
            p(f's_add_u32 s{89 + 2 * g}, s{88 + 2 * g}, 4096')
        p.need('wuc')
        p('s_barrier')
        self.poll(vA, 8)
        self.stamp(21)

        def yld(ks):
            g, r = ks // 7, ks % 7
            return f'buffer_load_dwordx4 {vr(YB + 4 * ks, 4)}, {vr(vL16)}, {srd(sWS)}, s{88 + 2 * g + r // 4} offen' \
                   f'{off((r % 4) * K)} sc1'
        for ks in range(10):
            p(yld(ks))
        self.gemm_lds(28, 4, wuaddr, lambda ks: vr(YB + 4 * ks, 4), lambda ct: ACC + 4 * ct, RING, 8, True,
                      side={4 * ks: [yld(ks + 10)] for ks in range(18)})
        self.stamp(22)
        for k in range(8):
            x = vXR + k
            a = ACC + 2 * k
            p(f'''v_lshlrev_b32 {vr(t)}, 16, {vr(x)}
v_and_b32 {vr(t + 1)}, 0xffff0000, {vr(x)}
v_pk_add_f32 {vr(a, 2)}, {vr(a, 2)}, {vr(t, 2)}
v_cvt_pk_bf16_f32 {vr(x)}, {vr(a)}, {vr(a + 1)}''')
            if k == 3:
                p(f'buffer_store_dwordx4 {vr(vXR, 4)}, {vr(vO)}, {srd(sOUT)}, s{sT1} offen')
        p(f'buffer_store_dwordx4 {vr(vXR + 4, 4)}, {vr(vOo)}, {srd(sOUT)}, s{sT1} offen offset:64')

    def build(self):
        p = self.p
        c = self.c
        self.truemax = None
        self.prologue()
        self.phase1()
        self.spare()
        self.attention()
        for n, ph in ((3, self.phase3), (4, self.phase4), (5, self.phase5), (6, self.phase6)):
            if c.stop >= n and c.stop > 1:
                ph()
        p('.Lexit:')
        if c.probe >= 0:
            p('s_waitcnt vmcnt(0)')
            self.stamp(23)
            p(f'''.Lspin:
s_memrealtime {sp(sTM + 2)}
s_waitcnt lgkmcnt(0)
s_sub_u32 s{sT0}, s{sTM + 2}, s{sTM}
s_cmp_lt_u32 s{sT0}, 8000
s_cbranch_scc1 .Lspin''')
        if c.diag:
            p('s_waitcnt vmcnt(0)')
            self.stamp(23)
            p(f'''s_lshl_b32 s{sT0}, s2, 2
s_add_u32 s{sT0}, s{sT0}, s{sW}
s_lshl_b32 s{sT0}, s{sT0}, 8
s_add_u32 s{sT0}, s{sT0}, {STAMP}
v_lshlrev_b32 {vr(vT)}, 2, {vr(vL)}
buffer_store_dword {vr(vST)}, {vr(vT)}, {srd(sWS)}, s{sT0} offen''')
        p('s_endpgm')
        if self.truemax:
            self.truemax()
        p('.Lend:')
        p('s_endpgm')
        p.insert_waits()
        nn = p.insert_nops()
        hdr = open('sequential_preLN__softmax_full_mha__mixer_gmlp__prompt.s.ref').read()
        hdr = hdr[:hdr.index('; Override launch')]
        txt = hdr + '; @launch grid=(256,1,1) block=(256,1,1) lds=163840\n'
        txt += f'''.amdgcn_target "amdgcn-amd-amdhsa--gfx950"
.text
.globl {NAME}
.p2align 8
.type {NAME},@function
{NAME}:
'''
        txt += p.text()
        txt += f'''.section .rodata,"a"
.p2align 6
.amdhsa_kernel {NAME}
  .amdhsa_next_free_vgpr 512
  .amdhsa_next_free_sgpr 102
  .amdhsa_accum_offset 256
  .amdhsa_group_segment_fixed_size 0
  .amdhsa_kernarg_size 88
  .amdhsa_user_sgpr_count 2
  .amdhsa_user_sgpr_kernarg_segment_ptr 1
  .amdhsa_system_sgpr_workgroup_id_x 1
  .amdhsa_float_denorm_mode_32 3
  .amdhsa_ieee_mode 0
.end_amdhsa_kernel
'''
        return txt, nn


def generate(**kw):
    c = Cfg()
    for k, v in kw.items():
        assert hasattr(c, k), k
        setattr(c, k, v)
    return Gen(c).build()


if __name__ == '__main__':
    out = sys.argv[1]
    kw = {}
    for a in sys.argv[2:]:
        k, v = a.split('=')
        kw[k] = eval(v)
    txt, nn = generate(**kw)
    open(out, 'w').write(txt)
    print('written', out, len(txt), 'bytes; nop states inserted:', nn)
```

```python
import sys, math, struct
sys.path.insert(0, 'work')
from asmlib import *

NAME = 'sequential_preLN__softmax_full_mha__mixer_gmlp__prompt_kernel'


class Cfg:
    diag = False
    stop = 99
    force_fb = False
    touch = False
    spf = False
    probe = -1
    outsc = ''
    fine = 0
    rot1 = True
    rotkv = True
    rot5 = False
    rot36 = False


def f2u(x):
    return struct.unpack('<I', struct.pack('<f', x))[0]


def hx(x):
    return hex(f2u(x))


CNT = 0x000000
ST = 0x020000
QF = 0x100000
KV = 0x300000
OF = 0x700000
HF = 0x900000
ZF = 0xB00000
YF = 0xF00000
WOF = 0x1300000
WIF = 0x1400000
WUF = 0x1600000
STAMP = 0x1700000
WS_SIZE = 0x1800000
OOR = 0x7F000000
C_S1, C_S2, C_S3, C_S6, C_S5, C_RDY, C_END = 0, 224, 352, 608, 864, 992, 1024

sX, sWQ, sWS, sSP, sBS, sOUT, sDBG, sWO, sWI, sWU = 8, 12, 16, 20, 24, 28, 32, 36, 40, 44
sW, sI, sJ, sQB, sHD, sXC, sIDX, sRB, sCB, sRQ, sCH = 48, 49, 50, 51, 52, 53, 54, 55, 56, 57, 58
sTO, sFB, sRT = 59, 60, 61
sT0, sT1, sT2, sT3, sT4, sT5 = 62, 63, 64, 65, 66, 67
sM0, sM1, sM2 = 68, 70, 72
sA0, sA1, sA2, sA3 = 74, 75, 76, 77
sKV, sG, sL = 78, 79, 80
sK1, sK2 = 82, 84
sPC = 86
sRB4 = 4
sRA, sRAd, sRBs, sRBd, sRBj = 94, 95, 3, 81, 101
sTM = 96

vL, vL16, vC, vQ, vA1, vA2 = 0, 1, 2, 3, 4, 5
vT = 6
vXR = 216
vBS = 224
vZ1 = 226
vONE = 225
vST = 255


def srd(n):
    return f's[{n}:{n + 3}]'


def vr(b, n=1):
    return f'v{b}' if n == 1 else f'v[{b}:{b + n - 1}]'


def ar(b, n=1):
    return f'a{b}' if n == 1 else f'a[{b}:{b + n - 1}]'


def sp(n):
    return f's[{n}:{n + 1}]'


def mf16(d, a, b, c):
    cs = '0' if c is None else vr(c, 4)
    return f'v_mfma_f32_16x16x32_bf16 {vr(d, 4)}, {a}, {b}, {cs}'


def mf32(d, a, b, c):
    cs = '0' if c is None else vr(c, 16)
    return f'v_mfma_f32_32x32x16_bf16 {vr(d, 16)}, {vr(a, 4)}, {vr(b, 4)}, {cs}'


def off(o):
    return f' offset:{o}' if o else ''


def lds_rd(dst, byte):
    base = (vL16, vA1, vA2)[byte >> 16]
    return f'ds_read_b128 {vr(dst, 4)}, {vr(base)}{off(byte & 0xffff)}'


class Gen:
    def __init__(self, cfg):
        self.c = cfg
        self.p = Prog()
        self.nstamp = 0

    def stamp(self, n):
        if self.c.probe == n:
            self.p(f's_memrealtime {sp(sTM)}\ns_waitcnt lgkmcnt(0)')
        if self.c.diag:
            self.p(f's_memrealtime {sp(sTM)}\ns_memtime {sp(sTM + 2)}\ns_waitcnt lgkmcnt(0)\n'
                   f'v_writelane_b32 {vr(vST)}, s{sTM}, {n}\nv_writelane_b32 {vr(vST)}, s{sTM + 2}, {32 + n}')

    def finish(self):
        self.p('s_branch .Lexit')

    def poll(self, vaddr, expect, srdn=sWS, vtmp=vT):
        p = self.p
        L = p.label('poll')
        D = p.label('got')
        p(f'{L}:')
        p(f'buffer_load_dword {vr(vtmp)}, {vr(vaddr)}, {srd(srdn)}, 0 offen sc1')
        p(f'v_cmp_gt_u32 vcc, {expect}, {vr(vtmp)}')
        p(f's_cbranch_vccz {D}')
        p(f's_sub_u32 s{sTO}, s{sTO}, 1\ns_cmp_lg_u32 s{sTO}, 0\ns_cbranch_scc1 {L}')
        p('s_branch .Lexit')
        p(f'{D}:')

    def check(self, vval, vaddr, expect, srdn=sWS):
        p = self.p
        D = p.label('ok')
        p(f'v_cmp_gt_u32 vcc, {expect}, {vr(vval)}')
        p(f's_cbranch_vccz {D}')
        self.poll(vaddr, expect, srdn, vval)
        p(f'{D}:')

    def arrive(self, vaddr, mask):
        p = self.p
        p(f's_mov_b64 exec, {mask}')
        p(f'buffer_atomic_add {vr(vONE)}, {vr(vaddr)}, {srd(sWS)}, 0 offen sc1')
        p('s_mov_b64 exec, -1')

    def dma_list(self, gsreg, gofs, ldsofs, nfrag, tok):
        k = (nfrag + 3) // 4
        out = []
        pre = [f's_mul_i32 s{sT5}, s{sW}, {k * 1024}',
               f's_min_u32 s{sT5}, s{sT5}, {(nfrag - k) * 1024}',
               f's_add_u32 s{sG}, s{gsreg}, s{sT5}',
               f's_add_u32 s{sL}, s{sT5}, {ldsofs}',
               f's_add_u32 s{sG}, s{sG}, {gofs}']
        out.append(pre)
        for n in range(k):
            g = []
            if n % 4 == 0:
                if n:
                    g += [f's_add_u32 s{sG}, s{sG}, 4096', f's_add_u32 s{sL}, s{sL}, 4096']
                g.append(f's_mov_b32 m0, s{sL}')
                out.append(g)
            out.append([(f'buffer_load_dwordx4 {vr(vL16)}, {srd(sWS)}, s{sG} offen{off((n % 4) * 1024)} sc1 lds',
                         [tok])])
        return out

    def dma_wu(self, n0, cnt, ldsofs, tok):
        k = (cnt + 3) // 4
        out = [[f's_mul_i32 s{sT5}, s{sW}, {k}', f's_min_u32 s{sT5}, s{sT5}, {cnt - k}'],
               [f's_lshl_b32 s{sL}, s{sT5}, 12', f's_add_u32 s{sL}, s{sL}, {ldsofs}'],
               [f's_and_b32 s{sG}, s{sJ}, 3' if self.c.rot36 else f's_mov_b32 s{sG}, 0', f's_mul_i32 s{sG}, s{sG}, 7'],
               [f's_add_u32 s{sT5}, s{sT5}, s{sG}', f's_add_u32 s{sT5}, s{sT5}, {n0}']]
        for n in range(k):
            g = []
            if n:
                g += [f's_add_u32 s{sT5}, s{sT5}, 1', f's_add_u32 s{sL}, s{sL}, 4096']
            g += [f's_sub_u32 s{sG}, s{sT5}, 28', f's_cmp_ge_u32 s{sT5}, 28', f's_cselect_b32 s{sG}, s{sG}, s{sT5}']
            out.append(g)
            out.append([f's_lshl_b32 s{sG}, s{sG}, 12', f's_add_u32 s{sG}, s{sG}, s{sT2}', f's_mov_b32 m0, s{sL}'])
            for e in range(4):
                out.append([(f'buffer_load_dwordx4 {vr(vL16)}, {srd(sWS)}, s{sG} offen{off(e * 1024)} sc1 lds', [tok])])
        return out

    def emit_groups(self, groups):
        for g in groups:
            self.p.add(list(g))

    def prologue(self):
        p = self.p
        if self.c.probe == 100:
            p(f's_memrealtime {sp(sTM)}')
        p(f's_getpc_b64 {sp(sPC)}')
        p('.Lpc0:')
        p('s_cmp_ge_u32 s2, 256\ns_cbranch_scc1 .Lend')
        for reg, slot in ((sX, 0), (sWQ, 1), (sWS, 10), (sWO, 2), (sWI, 4), (sSP, 5), (sBS, 6), (sWU, 7), (sOUT, 8),
                          (sDBG, 9)):
            p(f's_load_dwordx2 {sp(reg)}, s[0:1], {slot * 8}')
        p(f'v_lshrrev_b32 {vr(vT)}, 6, v0')
        p(f'v_and_b32 {vr(vL)}, 63, v0')
        p(f'v_readfirstlane_b32 s{sW}, {vr(vT)}')
        for reg, size in ((sX, 1835008), (sWQ, 1204224), (sWS, WS_SIZE), (sWO, 401408), (sWI, 1605632),
                          (sSP, 8388608 + 4096), (sBS, 4096), (sWU, 802816), (sOUT, 1835008), (sDBG, 256)):
            p(f's_mov_b32 s{reg + 2}, {size}\ns_mov_b32 s{reg + 3}, 0x20000')
        p(f'''v_lshlrev_b32 {vr(vL16)}, 4, {vr(vL)}
v_and_b32 {vr(vC)}, 15, {vr(vL)}
v_lshrrev_b32 {vr(vQ)}, 4, {vr(vL)}
v_add_u32 {vr(vA1)}, 0x10000, {vr(vL16)}
v_add_u32 {vr(vA2)}, 0x20000, {vr(vL16)}
v_mov_b32 {vr(vONE)}, 1
s_and_b32 s{sXC}, s2, 7
s_lshr_b32 s{sIDX}, s2, 3
s_lshr_b32 s{sRQ}, s{sXC}, 1
s_and_b32 s{sCH}, s{sXC}, 1
s_mov_b32 s{sTO}, 30000
s_mov_b32 s{sFB}, 0''')
        p(f'''s_lshr_b32 s{sT0}, s{sIDX}, 2
s_lshl_b32 s{sI}, s{sRQ}, 3
s_add_u32 s{sI}, s{sI}, s{sT0}
s_and_b32 s{sT0}, s{sIDX}, 3
s_lshl_b32 s{sJ}, s{sCH}, 2
s_add_u32 s{sJ}, s{sJ}, s{sT0}
s_lshl_b32 s{sRT}, s{sI}, 2
s_add_u32 s{sRT}, s{sRT}, s{sW}''')
        p(f'''s_and_b32 s{sT0}, s{sIDX}, 1
s_lshl_b32 s{sHD}, s{sXC}, 1
s_add_u32 s{sHD}, s{sHD}, s{sT0}
s_lshr_b32 s{sQB}, s{sIDX}, 1''')
        p(f'''s_mul_i32 s{sT0}, s{sIDX}, 37
s_lshr_b32 s{sT0}, s{sT0}, 8
s_mul_i32 s{sT1}, s{sT0}, 7
s_sub_u32 s{sCB}, s{sIDX}, s{sT1}
s_lshl_b32 s{sRB}, s{sXC}, 2
s_add_u32 s{sRB}, s{sRB}, s{sT0}''')
        if self.c.diag:
            p(f'v_mov_b32 {vr(vST)}, 0')
        if 0 <= self.c.probe < 100:
            p(f's_memrealtime {sp(sTM)}')
        p('s_waitcnt lgkmcnt(0)')
        p(f's_sub_u32 s{sSP}, s{sSP}, 4096\ns_subb_u32 s{sSP + 1}, s{sSP + 1}, 0')
        self.stamp(0)
        if self.c.touch:
            p(f'''s_lshl_b32 s{sT0}, s{sIDX}, 2
s_add_u32 s{sT0}, s{sT0}, s{sW}
s_mul_i32 s{sT1}, s{sT0}, {74 * 128}
s_mul_i32 s{sT2}, s{sT0}, {14 * 128}
s_mul_i32 s{sT3}, s{sXC}, {256 * 896}
s_add_u32 s{sT2}, s{sT2}, s{sT3}
s_add_u32 s{sT3}, s{sT1}, 8192
v_lshlrev_b32 {vr(vT)}, 7, {vr(vL)}
s_mov_b64 exec, 0x3fff
buffer_load_dword v252, {vr(vT)}, {srd(sX)}, s{sT2} offen
s_mov_b64 exec, -1
buffer_load_dword v253, {vr(vT)}, {srd(sWQ)}, s{sT1} offen
s_mov_b64 exec, 0x3ff
buffer_load_dword v254, {vr(vT)}, {srd(sWQ)}, s{sT3} offen
s_mov_b64 exec, -1''')
        p(f's_cmp_ge_u32 s{sIDX}, 28\ns_cbranch_scc1 .Lspare')

    RST = 128 * 1024
    vRI, vRB, vRT0, vRT1, vRD2, vRD = 240, 241, 242, 243, 244, 196

    def r_setup(self):
        p = self.p
        t = 6
        vI, vB, R0, R1, D2 = self.vRI, self.vRB, self.vRT0, self.vRT1, self.vRD2
        p(f"""s_cmp_ge_u32 s{sRT}, 56
s_cselect_b32 s{sT0}, 1, 0
s_mul_i32 s{sT1}, s{sT0}, 56
s_sub_u32 s{sT1}, s{sRT}, s{sT1}
s_lshr_b32 s{sT1}, s{sT1}, 2
s_and_b32 s{sT2}, s{sRT}, 3
s_mul_i32 s{sRA}, s{sT1}, {32 * 3584}
s_mul_i32 s{sT3}, s{sJ}, 224
s_add_u32 s{sRA}, s{sRA}, s{sT3}
s_lshl_b32 s{sT3}, s{sT2}, 6
s_add_u32 s{sRA}, s{sRA}, s{sT3}
s_xor_b32 s{sT3}, s{sT0}, 1
s_mul_i32 s{sT3}, s{sT3}, 1792
s_add_u32 s{sRA}, s{sRA}, s{sT3}
s_lshl_b32 s{sRAd}, s{sJ}, 1
s_add_u32 s{sRAd}, s{sRAd}, s{sT0}
s_mul_i32 s{sRAd}, s{sRAd}, 105
s_mul_i32 s{sT3}, s{sT1}, 7
s_add_u32 s{sRAd}, s{sRAd}, s{sT3}
s_lshl_b32 s{sT3}, s{sT2}, 1
s_add_u32 s{sRAd}, s{sRAd}, s{sT3}
s_lshl_b32 s{sRAd}, s{sRAd}, 10
s_add_u32 s{sRAd}, s{sRAd}, {WIF}
s_cmp_ge_u32 s{sRT}, 112
s_cselect_b32 s{sRA}, {OOR}, s{sRA}
s_cselect_b32 s{sRAd}, {OOR}, s{sRAd}
s_cmp_eq_u32 s{sT2}, 3
s_cselect_b64 vcc, -1, 0
s_lshl_b32 s{sT4}, s{sW}, 12
s_add_u32 s{sT4}, s{sT4}, {self.RST}
v_and_b32 {vr(t + 1)}, 3, {vr(vC)}
v_add_u32 {vr(R0)}, s{sT4}, {vr(vL16)}
v_and_b32 {vr(t)}, 60, {vr(vL)}
v_lshrrev_b32 {vr(R1)}, 1, {vr(t + 1)}
v_add_u32 {vr(t)}, {vr(t)}, {vr(R1)}
v_lshlrev_b32 {vr(t)}, 4, {vr(t)}
v_and_b32 {vr(R1)}, 1, {vr(t + 1)}
v_lshl_add_u32 {vr(t)}, {vr(R1)}, 3, {vr(t)}
v_add_u32 {vr(t)}, s{sT4}, {vr(t)}
v_mov_b32 {vr(D2)}, {OOR}
v_cndmask_b32 {vr(R1)}, {vr(R0)}, {vr(t)}, vcc
v_cndmask_b32 {vr(D2)}, {vr(vL16)}, {vr(D2)}, vcc
v_lshrrev_b32 {vr(t + 2)}, 2, {vr(vC)}
v_lshl_add_u32 {vr(t)}, {vr(vQ)}, 3, {vr(t + 2)}
v_mul_u32_u24 {vr(vI)}, 3584, {vr(t)}
v_lshl_add_u32 {vr(vI)}, {vr(t + 1)}, 4, {vr(vI)}
v_lshrrev_b32 {vr(vB)}, 1, {vr(vQ)}
v_lshlrev_b32 {vr(vB)}, 4, {vr(vB)}
v_and_b32 {vr(t + 3)}, 1, {vr(vQ)}
v_lshl_add_u32 {vr(vB)}, {vr(t + 3)}, 2, {vr(vB)}
v_add_u32 {vr(vB)}, {vr(vB)}, {vr(t + 2)}""")
        p(f"""s_mov_b32 s{sRBj}, {4 * 896}
s_mov_b32 s{sT1}, {32 * 896}
s_mov_b32 s{sT3}, {WUF}
s_cmp_ge_u32 s{sRT}, 96
s_cselect_b64 vcc, -1, 0
s_cselect_b64 {sp(sRB4)}, {sp(sWO)}, {sp(sWU)}
s_cselect_b32 s{sRB4 + 2}, s{sWO + 2}, s{sWU + 2}
s_cselect_b32 s{sRBj}, {8 * 896}, s{sRBj}
s_cselect_b32 s{sT0}, 96, 0
s_cselect_b32 s{sT1}, {28 * 896}, s{sT1}
s_cselect_b32 s{sT2}, 16, 28
s_cselect_b32 s{sT3}, {WOF}, s{sT3}
s_mov_b32 s{sRB4 + 3}, 0x20000
s_sub_u32 s{sT0}, s{sRT}, s{sT0}
s_lshr_b32 s{sT0}, s{sT0}, 1
s_mul_i32 s{sRBs}, s{sT0}, s{sT1}
s_mul_i32 s{sT1}, s{sJ}, 112
s_add_u32 s{sRBs}, s{sRBs}, s{sT1}
s_and_b32 s{sT1}, s{sRT}, 1
s_lshl_b32 s{sT4}, s{sT1}, 6
s_add_u32 s{sRBs}, s{sRBs}, s{sT4}
s_mul_i32 s{sRBd}, s{sJ}, s{sT2}
s_add_u32 s{sRBd}, s{sRBd}, s{sT0}
s_lshl_b32 s{sRBd}, s{sRBd}, 1
s_add_u32 s{sRBd}, s{sRBd}, s{sT1}
s_lshl_b32 s{sRBd}, s{sRBd}, 11
s_add_u32 s{sRBd}, s{sRBd}, s{sT3}
s_sub_u32 s{sT0}, s{sRT}, 56
s_cmp_lt_u32 s{sT0}, 40
s_cselect_b32 s{sRBs}, {OOR}, s{sRBs}
s_cselect_b32 s{sRBd}, {OOR}, s{sRBd}
v_cndmask_b32 {vr(vB)}, {vr(t)}, {vr(vB)}, vcc
v_mul_u32_u24 {vr(vB)}, 896, {vr(vB)}
v_lshl_add_u32 {vr(vB)}, {vr(t + 1)}, 4, {vr(vB)}""")

    def r_issue(self):
        o = [[f's_lshl_b32 s{sL}, s{sW}, 12', f's_add_u32 m0, s{sL}, {self.RST}'],
             [(f'buffer_load_dwordx4 {vr(self.vRI)}, {srd(sWI)}, s{sRA} offen lds', ['rl'])],
             [f's_add_u32 s{sG}, s{sRA}, {4 * 3584 - 1024}'],
             [(f'buffer_load_dwordx4 {vr(self.vRI)}, {srd(sWI)}, s{sG} offen offset:1024 lds', ['rl'])],
             [f's_add_u32 m0, s{sL}, {self.RST + 2048}'],
             [(f'buffer_load_dwordx4 {vr(self.vRB)}, {srd(sRB4)}, s{sRBs} offen lds', ['rl'])],
             [f's_add_u32 s{sG}, s{sRBs}, s{sRBj}', f's_sub_u32 s{sG}, s{sG}, 1024'],
             [(f'buffer_load_dwordx4 {vr(self.vRB)}, {srd(sRB4)}, s{sG} offen offset:1024 lds', ['rl'])]]
        return o

    def r_finish(self):
        p = self.p
        p.need('rl')
        for n in range(2):
            d = self.vRD + 8 * n
            for e in range(2):
                for jj in range(2):
                    base = self.vRT1 if (n == 0 and e == 0) else self.vRT0
                    p(f'ds_read_b64_tr_b16 {vr(d + 4 * e + 2 * jj, 2)}, {vr(base)}{off(n * 2048 + jj * 1024 + 8 * e)}')
        for n in range(2):
            d = self.vRD + 8 * n
            sd = (sRAd, sRBd)[n]
            p(f'buffer_store_dwordx4 {vr(d, 4)}, {vr(vL16)}, {srd(sWS)}, s{sd} offen sc1', tokw=['rst'])
            p(f'buffer_store_dwordx4 {vr(d + 4, 4)}, {vr(self.vRD2 if n == 0 else vL16)}, {srd(sWS)}, s{sd} offen'
              f' offset:1024 sc1', tokw=['rst'])

    def sentinel_init(self):
        p = self.p
        a, d = vT, vT + 2
        p(f'''s_lshl_b32 s{sT0}, s{sRT}, 3
s_add_u32 s{sT0}, s{sT0}, s{sJ}
s_lshl_b32 s{sT0}, s{sT0}, 7
s_add_u32 s{sT0}, s{sT0}, {ST}
v_mov_b32 {vr(d)}, -1
v_mov_b32 {vr(d + 1)}, -1
v_mov_b32 {vr(d + 2)}, -1
v_mov_b32 {vr(d + 3)}, -1
s_mov_b64 exec, 0xff''')
        p(f'buffer_store_dwordx4 {vr(d, 4)}, {vr(vL16)}, {srd(sWS)}, s{sT0} offen sc1', tokw=['sent'])
        p('s_mov_b64 exec, -1')

    def ln_finish(self, sumreg, sqreg, va, t, vperm):
        return [
            f'v_cndmask_b32 {vr(t)}, {vr(sqreg)}, {vr(sqreg + 1)}, {sp(sM0)}',
            f'v_cndmask_b32 {vr(t + 1)}, {vr(sqreg + 2)}, {vr(sqreg + 3)}, {sp(sM0)}',
            f'v_cndmask_b32 {vr(t)}, {vr(t)}, {vr(t + 1)}, {sp(sM1)}',
            f'ds_bpermute_b32 {vr(t)}, {vr(vperm)}, {vr(t)}',
            f'v_mul_f32 {vr(va + 1)}, {hx(-1.0 / 448)}, {vr(sumreg)}',
            f'v_mul_f32 {vr(t + 1)}, {vr(va + 1)}, {vr(va + 1)}',
            f'v_sub_f32 {vr(t + 1)}, {hx(1e-5)}, {vr(t + 1)}',
            f'v_fmac_f32 {vr(t + 1)}, {hx(1.0 / 448)}, {vr(t)}',
            f'v_max_f32 {vr(t + 1)}, {hx(1e-5)}, {vr(t + 1)}',
            f'v_rsq_f32 {vr(va)}, {vr(t + 1)}',
        ]

    def ln_masks(self, vperm):
        p = self.p
        p(f"""v_and_b32 {vr(vT)}, 1, {vr(vC)}
v_cmp_ne_u32 {sp(sM0)}, 0, {vr(vT)}
v_and_b32 {vr(vT)}, 2, {vr(vC)}
v_cmp_ne_u32 {sp(sM1)}, 0, {vr(vT)}
v_lshrrev_b32 {vr(vT)}, 2, {vr(vC)}
v_lshl_add_u32 {vr(vT)}, {vr(vT)}, 4, {vr(vC)}
v_lshlrev_b32 {vr(vperm)}, 2, {vr(vT)}""")

    def phase1(self):
        p = self.p
        ACC, CS, SA, XF, WF, ONES = 16, 64, 76, 84, 124, 148
        acc = lambda sec, tt: ACC + (sec * 4 + tt) * 4
        xf = lambda b, tt: XF + (b * 5 + tt) * 4
        wf = lambda b, sec: WF + (b * 3 + sec) * 4
        vX0, vX1, vW0, vW1 = 152, 153, 154, 155
        rX0, rX1, rO0, rO1, rW = 156, 157, 158, 159, 160
        vPerm, vFl, t = 161, 162, 6
        CH = 32768
        STS = 156 * 1024
        p(f"""v_lshrrev_b32 {vr(t)}, 3, {vr(vL)}
v_and_b32 {vr(t + 1)}, 7, {vr(vL)}
v_xor_b32 {vr(t + 2)}, {vr(t + 1)}, {vr(vQ)}
v_mul_u32_u24 {vr(vX0)}, 896, {vr(t)}
v_xor_b32 {vr(t + 3)}, 4, {vr(t + 2)}
v_lshl_add_u32 {vr(vX1)}, {vr(t + 3)}, 4, {vr(vX0)}
v_lshl_add_u32 {vr(vX0)}, {vr(t + 2)}, 4, {vr(vX0)}
v_add_u32 {vr(vX1)}, {8 * 896 - 1024}, {vr(vX1)}
v_and_b32 {vr(t + 2)}, 1, {vr(vQ)}
v_lshlrev_b32 {vr(t + 2)}, 1, {vr(t + 2)}
v_xor_b32 {vr(t + 2)}, {vr(t + 2)}, {vr(t + 1)}
v_mul_u32_u24 {vr(vW0)}, 2688, {vr(t)}
v_xor_b32 {vr(t + 3)}, 4, {vr(t + 2)}
v_lshl_add_u32 {vr(vW1)}, {vr(t + 3)}, 4, {vr(vW0)}
v_lshl_add_u32 {vr(vW0)}, {vr(t + 2)}, 4, {vr(vW0)}
v_add_u32 {vr(vW1)}, {8 * 2688 - 1024}, {vr(vW1)}
s_lshl_b32 s{sT0}, s{sRB}, 2
s_add_u32 s{sT0}, s{sT0}, s{sW}
s_mul_i32 s{sA0}, s{sT0}, {16 * 896}
s_mul_i32 s{sA1}, s{sW}, {16 * 2688}
s_lshl_b32 s{sT0}, s{sCB}, 7
s_add_u32 s{sA1}, s{sA1}, s{sT0}
s_lshl_b32 s{sA2}, s{sW}, 11""")
        if self.c.rot1:
            p(f"""s_and_b32 s{sA3}, s{sRB}, 3
s_lshl_b32 s{sA3}, s{sA3}, 1
s_add_u32 s{sA3}, s{sA3}, s{sCB}
s_sub_u32 s{sT0}, s{sA3}, 7
s_cmp_ge_u32 s{sA3}, 7
s_cselect_b32 s{sA3}, s{sT0}, s{sA3}""")
        else:
            p(f's_mov_b32 s{sA3}, 0')

        def chunk(m):
            base = (m % 4) * CH
            o = []
            if m:
                o.append([f's_add_u32 s{sA3}, s{sA3}, 1', f's_cmp_eq_u32 s{sA3}, 7', f's_cselect_b32 s{sA3}, 0, s{sA3}'])
            o += [[f's_add_u32 m0, s{sA2}, {base}', f's_lshl_b32 s{sT4}, s{sA3}, 7', f's_add_u32 s{sT4}, s{sT4}, s{sA0}'],
                 [(f'buffer_load_dwordx4 {vr(vX0)}, {srd(sX)}, s{sT4} offen lds', [f'c{m}'])],
                 [(f'buffer_load_dwordx4 {vr(vX1)}, {srd(sX)}, s{sT4} offen offset:1024 lds', [f'c{m}'])]]
            for sec in range(3):
                o += [[f's_add_u32 m0, s{sA2}, {base + 8192 * (sec + 1)}'] +
                      ([f's_mul_i32 s{sT4}, s{sA3}, {64 * 2688}', f's_add_u32 s{sT4}, s{sT4}, s{sA1}'] if sec == 0 else
                       [f's_add_u32 s{sT4}, s{sT4}, 896']),
                      [(f'buffer_load_dwordx4 {vr(vW0)}, {srd(sWQ)}, s{sT4} offen lds', [f'c{m}'])],
                      [(f'buffer_load_dwordx4 {vr(vW1)}, {srd(sWQ)}, s{sT4} offen offset:1024 lds', [f'c{m}'])]]
            return o
        self.emit_groups(chunk(0))
        self.emit_groups(chunk(1))
        p(f"""v_lshrrev_b32 {vr(t)}, 1, {vr(vC)}
v_xor_b32 {vr(t)}, {vr(t)}, {vr(vQ)}
v_lshlrev_b32 {vr(t)}, 4, {vr(t)}
v_lshl_add_u32 {vr(rX0)}, {vr(vC)}, 7, {vr(t)}
v_xor_b32 {vr(rX1)}, 64, {vr(rX0)}
v_add_u32 {vr(rO0)}, s{sA2}, {vr(rX0)}
v_add_u32 {vr(rO1)}, s{sA2}, {vr(rX1)}
v_lshrrev_b32 {vr(t)}, 2, {vr(vC)}
v_lshl_add_u32 {vr(rW)}, {vr(vQ)}, 3, {vr(t)}
v_lshlrev_b32 {vr(rW)}, 7, {vr(rW)}
v_lshrrev_b32 {vr(t)}, 3, {vr(vC)}
v_and_b32 {vr(t + 1)}, 1, {vr(vQ)}
v_lshl_add_u32 {vr(t)}, {vr(t + 1)}, 1, {vr(t)}
v_xor_b32 {vr(t)}, s{sW}, {vr(t)}
v_lshl_add_u32 {vr(rW)}, {vr(t)}, 5, {vr(rW)}
v_and_b32 {vr(t)}, 3, {vr(vC)}
v_lshl_add_u32 {vr(rW)}, {vr(t)}, 3, {vr(rW)}""")
        for r in range(4):
            p(f'v_mov_b32 {vr(ONES + r)}, 0x3f803f80')
        self.ln_masks(vPerm)
        vP, vH, vS, vQa, vKa, vQb, vKb, vVa, vVc, vAr = 164, 165, 166, 167, 168, 169, 170, 171, 172, 173
        vVd, vK0, vK1, vSt, vSv = 176, 174, 175, 180, 181
        p(f"""s_lshl_b32 s{sT0}, s{sCB}, 2
s_add_u32 s{sKV}, s{sT0}, s{sW}
s_lshl_b32 s{sT0}, s{sKV}, 1
v_lshrrev_b32 {vr(vP)}, 1, {vr(vQ)}
v_add_u32 {vr(vP)}, s{sT0}, {vr(vP)}
v_mul_u32_u24 {vr(vH)}, 37, {vr(vP)}
v_lshrrev_b32 {vr(vH)}, 8, {vr(vH)}
v_mul_u32_u24 {vr(vS)}, 7, {vr(vH)}
v_sub_u32 {vr(vP)}, {vr(vP)}, {vr(vS)}
v_cmp_eq_u32 {sp(sM2)}, 3, {vr(vP)}
v_lshrrev_b32 {vr(vS)}, 2, {vr(vP)}
v_lshl_add_u32 {vr(vH)}, {vr(vH)}, 1, {vr(vS)}
v_and_b32 {vr(vS)}, 3, {vr(vP)}
v_lshlrev_b32 {vr(vS)}, 9, {vr(vS)}
v_lshl_add_u32 {vr(vQa)}, {vr(vH)}, 17, {vr(vS)}
v_lshl_add_u32 {vr(vKa)}, {vr(vH)}, 18, {vr(vS)}
v_and_b32 {vr(vS)}, 31, {vr(vL)}
v_lshl_add_u32 {vr(vQa)}, {vr(vS)}, 4, {vr(vQa)}
v_and_b32 {vr(vS)}, 8, {vr(vC)}
v_add_u32 {vr(vS)}, {vr(vS)}, {vr(vC)}
v_and_b32 {vr(vP)}, 1, {vr(vQ)}
v_lshl_add_u32 {vr(vS)}, {vr(vP)}, 3, {vr(vS)}
v_lshl_add_u32 {vr(vKa)}, {vr(vS)}, 4, {vr(vKa)}
v_mov_b32 {vr(vS)}, {OOR}
v_add_u32 {vr(vQb)}, 0x20000, {vr(vQa)}
v_add_u32 {vr(vKb)}, 0x40000, {vr(vKa)}
v_cndmask_b32 {vr(vQb)}, {vr(vS)}, {vr(vQb)}, {sp(sM2)}
v_cndmask_b32 {vr(vKb)}, {vr(vS)}, {vr(vKb)}, {sp(sM2)}
s_lshl_b32 s{sT0}, s{sKV}, 4
v_add_u32 {vr(vP)}, s{sT0}, {vr(vC)}
v_mul_u32_u24 {vr(vH)}, 2341, {vr(vP)}
v_lshrrev_b32 {vr(vH)}, 16, {vr(vH)}
v_mul_u32_u24 {vr(vVa)}, 28, {vr(vH)}
v_sub_u32 {vr(vP)}, {vr(vP)}, {vr(vVa)}
v_lshlrev_b32 {vr(vVa)}, 18, {vr(vH)}
v_lshl_add_u32 {vr(vVa)}, {vr(vQ)}, 9, {vr(vVa)}
v_lshl_add_u32 {vr(vVa)}, {vr(vP)}, 4, {vr(vVa)}
v_cmp_le_u32 vcc, 24, {vr(vP)}
v_add_u32 {vr(vVc)}, 64, {vr(vVa)}
v_cndmask_b32 {vr(vVc)}, {vr(vS)}, {vr(vVc)}, vcc
v_cmp_eq_u32 vcc, 24, {vr(vP)}
v_mov_b32 {vr(vK0)}, 0x3f803f80
v_mov_b32 {vr(vK1)}, 0x3f80
v_cndmask_b32 {vr(vVd)}, 0, {vr(vK0)}, vcc
v_mov_b32 {vr(vVd + 1)}, {vr(vVd)}
v_mov_b32 {vr(vVd + 2)}, {vr(vVd)}
v_mov_b32 {vr(vVd + 3)}, {vr(vVd)}
s_lshl_b32 s{sT0}, s{sKV}, 2
s_lshr_b32 s{sT1}, s{sRB}, 3
s_add_u32 s{sT0}, s{sT0}, s{sT1}
s_lshl_b32 s{sT0}, s{sT0}, 8
v_lshlrev_b32 {vr(vAr)}, 7, {vr(vL)}
v_add_u32 {vr(vAr)}, s{sT0}, {vr(vAr)}
s_lshl_b32 s{sT0}, s{sW}, 7
s_add_u32 s{sT0}, s{sT0}, {STS}
v_lshlrev_b32 {vr(vSt)}, 3, {vr(vC)}
v_add_u32 {vr(vH)}, s{sT0}, {vr(vSt)}
v_add_u32 {vr(vSt)}, {STS}, {vr(vSt)}
v_lshlrev_b32 {vr(vSv)}, 5, {vr(vQ)}
v_add_u32 {vr(vSv)}, {STS}, {vr(vSv)}""")
        vSw = vH
        self.r_setup()

        def rds(ks):
            m, e, b = ks // 2, ks % 2, ks % 2
            base = (m % 2) * CH
            o = []
            for sec in (1, 2, 0):
                for jj in range(2):
                    o.append(f'ds_read_b64_tr_b16 {vr(wf(b, sec) + 2 * jj, 2)}, {vr(rW)}'
                             f'{off(base + 8192 * (sec + 1) + e * 4096 + jj * 512)}')
                if sec == 1:
                    for tt in range(4):
                        o.append(f'ds_read_b128 {vr(xf(b, tt), 4)}, {vr((rX0, rX1)[e])}{off(base + tt * 2048)}')
            o.append(f'ds_read_b128 {vr(xf(b, 4), 4)}, {vr((rO0, rO1)[e])}{off(base)}')
            return o

        def move(delta):
            return [f'v_add_u32 {vr(r)}, {delta & 0xffffffff}, {vr(r)}' for r in (rX0, rX1, rO0, rO1, rW)]
        p.need('c0')
        p('s_barrier')
        self.stamp(1)
        p.add(rds(0))
        ones = vr(ONES, 4)
        side = chunk(2)
        for ks in range(14):
            b = ks % 2
            nx = ks + 1
            if nx < 14 and nx % 2 == 0:
                m = nx // 2
                self.emit_groups(side)
                side = []
                p.need(f'c{m}')
                p('s_barrier')
                if m % 2 == 0:
                    p.add(move(2 * CH if m % 4 == 2 else -2 * CH))
                if m + 2 < 7:
                    side = chunk(m + 2)
                elif m == 5:
                    side = self.r_issue()
            if self.c.fine == 1 and ks % 2 == 1:
                self.stamp(24 + ks // 2)
            R = rds(nx) if nx < 14 else []
            z = ks == 0
            ms = []
            for sec in (1, 2, 0):
                w_ = vr(wf(b, sec), 4)
                for tt in range(4):
                    x_ = vr(xf(b, tt), 4)
                    a_, b_ = (w_, x_) if sec < 2 else (x_, w_)
                    ms.append(mf16(acc(sec, tt), a_, b_, None if z else acc(sec, tt)))
                a_, b_ = (w_, ones) if sec < 2 else (ones, w_)
                ms.append(mf16(CS + 4 * sec, a_, b_, None if z else CS + 4 * sec))
            xo = vr(xf(b, 4), 4)
            st = [mf16(SA, ones, xo, None if z else SA), mf16(SA + 4, xo, xo, None if z else SA + 4)]
            ms = (st + ms) if ks == 13 else (ms + st)
            fin = self.ln_finish(SA, SA + 4, t + 4, t, vPerm) if ks == 13 else []
            for n, m_ in enumerate(ms):
                p(m_)
                if R:
                    p(R.pop(0))
                elif side:
                    p.add(list(side.pop(0)))
                    if side and ks % 2 == 0 and len(ms) - n <= len(side):
                        p.add(list(side.pop(0)))
                elif fin and n >= 5:
                    p(fin.pop(0))
            p.add(fin)
            if ks == 8:
                p(f'v_mov_b32 {vr(vFl)}, 0')
                p(f'buffer_load_dword {vr(vFl)}, {vr(vFl)}, {srd(sDBG)}, 0 offen sc1')
        self.stamp(2)
        p('s_mov_b64 exec, 0xffff')
        p(f'ds_write_b64 {vr(vSw)}, {vr(t + 4, 2)}', tokw=['lnw'])
        p('s_mov_b64 exec, -1')
        qs = math.log2(math.e) / math.sqrt(28.0)
        p(f"""s_lshl_b32 s{sT0}, s{sRB}, 12
s_add_u32 s{sT0}, s{sT0}, {QF}
s_lshl_b32 s{sT1}, s{sRB}, 13
s_add_u32 s{sT1}, s{sT1}, {KV}
s_add_u32 s{sT2}, s{sT1}, 4096""")
        p.need('lnw')
        p('s_barrier')
        TK, TV, D = XF, XF + 8, 184
        for tt in range(4):
            p(f'ds_read_b64 {vr(TK + 2 * tt, 2)}, {vr(vSt)}{off(128 * tt)}')
        for tt in range(4):
            for h in range(2):
                p(f'ds_read_b128 {vr(TV + 8 * tt + 4 * h, 4)}, {vr(vSv)}{off(128 * tt + 16 * h)}')

        def qk_store(sec, tp, d):
            for e in range(2):
                tt = 2 * tp + e
                st = vr(TK + 2 * tt, 2)
                for h in range(2):
                    a = vr(acc(sec, tt) + 2 * h, 2)
                    p(f'v_pk_fma_f32 {a}, {vr(CS + 4 * sec + 2 * h, 2)}, {st}, {a} op_sel:[0,1,0] op_sel_hi:[1,1,1]')
                    p(f'v_pk_mul_f32 {a}, {a}, {st} op_sel_hi:[1,0]')
                a = acc(sec, tt)
                p(f'v_cvt_pk_bf16_f32 {vr(d + 2 * e)}, {vr(a)}, {vr(a + 1)}')
                p(f'v_cvt_pk_bf16_f32 {vr(d + 2 * e + 1)}, {vr(a + 2)}, {vr(a + 3)}')
            c0, c1 = ('0', '0') if sec == 0 else (vr(vK0), vr(vK1))
            p(f'v_mov_b32 {vr(d + 6)}, {c0}\nv_mov_b32 {vr(d + 7)}, {c1}')
            p(f'v_permlane16_swap_b32 {vr(d)}, {vr(d + 2)}')
            p(f'v_permlane16_swap_b32 {vr(d + 1)}, {vr(d + 3)}')
            p(f"""v_mov_b32 {vr(d + 4)}, {vr(d + 2)}
v_mov_b32 {vr(d + 5)}, {vr(d + 3)}
v_cndmask_b32 {vr(d + 2)}, {vr(d + 2)}, {vr(d + 6)}, {sp(sM2)}
v_cndmask_b32 {vr(d + 3)}, {vr(d + 3)}, {vr(d + 7)}, {sp(sM2)}""")
            va, vb, so, o = (vQa, vQb, sT0, 2048 * tp) if sec == 0 else (vKa, vKb, (sT1, sT2)[tp], 0)
            p(f'buffer_store_dwordx4 {vr(d, 4)}, {vr(va)}, {srd(sWS)}, s{so} offen{off(o)} sc1', tokw=['st1'])
            p(f'buffer_store_dwordx4 {vr(d + 4, 4)}, {vr(vb)}, {srd(sWS)}, s{so} offen{off(o)} sc1', tokw=['st1'])

        qk_store(1, 0, D)
        qk_store(1, 1, D + 8)
        for tp in range(2):
            d = D + 16 + 4 * tp
            for e in range(2):
                tt = 2 * tp + e
                for r in range(4):
                    a = acc(2, tt) + r
                    st = TV + 8 * tt + 2 * r
                    p(f'v_fmac_f32 {vr(a)}, {vr(st + 1)}, {vr(CS + 8)}')
                    p(f'v_mul_f32 {vr(a)}, {vr(a)}, {vr(st)}')
                a = acc(2, tt)
                p(f'v_cvt_pk_bf16_f32 {vr(d + 2 * e)}, {vr(a)}, {vr(a + 1)}')
                p(f'v_cvt_pk_bf16_f32 {vr(d + 2 * e + 1)}, {vr(a + 2)}, {vr(a + 3)}')
            so = (sT1, sT2)[tp]
            p(f'buffer_store_dwordx4 {vr(d, 4)}, {vr(vVa)}, {srd(sWS)}, s{so} offen offset:2048 sc1', tokw=['st1'])
            p(f'buffer_store_dwordx4 {vr(vVd, 4)}, {vr(vVc)}, {srd(sWS)}, s{so} offen offset:2048 sc1', tokw=['st1'])
        for tt in range(4):
            p(f'v_mul_f32 {vr(TK + 2 * tt)}, {hx(qs)}, {vr(TK + 2 * tt)}')
        qk_store(0, 0, D + 24)
        qk_store(0, 1, D + 32)
        self.sentinel_init()
        p(f'v_mov_b32 {vr(vP)}, 0')
        self.check(vFl, vP, 1, sDBG)
        p.need('st1', 'sent')
        self.arrive(vAr, 3)
        self.stamp(3)
        self.r_finish()
        p('s_barrier')
        p('s_branch .Lattn')

    def spare(self):
        p = self.p
        p('.Lspare:')
        sSPI, sOM = sT0, sA0
        t = 6
        p(f'''s_sub_u32 s{sT1}, s{sIDX}, 28
s_lshl_b32 s{sT1}, s{sT1}, 2
s_add_u32 s{sT1}, s{sT1}, s{sW}
s_lshl_b32 s{sT1}, s{sT1}, 13
v_lshlrev_b32 {vr(t)}, 7, {vr(vL)}
v_add_u32 {vr(t)}, s{sT1}, {vr(t)}
s_mov_b32 s{sT1}, .Lend-.Lpc0
v_min_u32 {vr(t)}, s{sT1}, {vr(t)}
global_load_dword {vr(250)}, {vr(t)}, {sp(sPC)}''')
        p(f'''s_lshl_b32 s{sOM}, s{sXC}, 2
s_add_u32 s{sOM}, s{sOM}, s{sIDX}
s_sub_u32 s{sOM}, s{sOM}, 28
s_cmp_lg_u32 s{sOM}, 0
s_cbranch_scc1 .Lnozero''')
        p(f'''v_lshlrev_b32 {vr(t)}, 7, {vr(vL)}
s_lshl_b32 s{sT1}, s{sW}, 15
v_mov_b32 {vr(t + 1)}, 0''')
        for n in range(4):
            p(f's_add_u32 s{sT2}, s{sT1}, {CNT + n * 8192}')
            p(f'buffer_store_dword {vr(t + 1)}, {vr(t)}, {srd(sWS)}, s{sT2} offen sc1', tokw=['z'])
        p.need('z')
        p('s_barrier')
        p(f's_mov_b64 exec, 1\nbuffer_store_dword {vr(vONE)}, {vr(t + 1)}, {srd(sDBG)}, 0 offen sc1\ns_mov_b64 exec, -1')
        p('.Lnozero:')
        p(f's_lshl_b32 s{sOM}, s{sOM}, 2\ns_add_u32 s{sOM}, s{sOM}, s{sW}')
        self.r_setup()
        self.emit_groups(self.r_issue())
        vI, vR0, vR1, vD2 = self.vRI, 10, 11, 12
        vc_ = 14
        sj, sh, sa4, skp = sA1, sT0, sT1, sT2
        sS1 = 89
        p(f'''s_lshr_b32 s{sj}, s{sOM}, 4
s_bfe_u32 s{sh}, s{sOM}, 0x10003
s_bfe_u32 s{sa4}, s{sOM}, 0x20001
s_and_b32 s{skp}, s{sOM}, 1
s_mul_i32 s{sA2}, s{sW}, 14336
s_mul_i32 s{sS1}, s{skp}, {7 * 32 * 3584}
s_mul_i32 s{sT3}, s{sj}, 224
s_add_u32 s{sS1}, s{sS1}, s{sT3}
s_lshl_b32 s{sT3}, s{sa4}, 6
s_add_u32 s{sS1}, s{sS1}, s{sT3}
s_xor_b32 s{sT3}, s{sh}, 1
s_mul_i32 s{sT3}, s{sT3}, 1792
s_add_u32 s{sS1}, s{sS1}, s{sT3}
s_lshl_b32 s90, s{sj}, 1
s_add_u32 s90, s90, s{sh}
s_mul_i32 s90, s90, {105 * 1024}
s_lshl_b32 s{sT3}, s{sa4}, 11
s_add_u32 s90, s90, s{sT3}
s_add_u32 s90, s90, {WIF + 98 * 1024}''')
        for n in range(7):
            for jj in range(2):
                p(f's_add_u32 m0, s{sA2}, {n * 2048 + jj * 1024}')
                p(f's_add_u32 s{sT3}, s{sS1}, {n * 32 * 3584 + jj * 4 * 3584}')
                p(f'buffer_load_dwordx4 {vr(vI)}, {srd(sWI)}, s{sT3} offen lds', tokw=[f'r{n}'])
        p(f'''v_and_b32 {vr(vc_)}, 3, {vr(vC)}
v_add_u32 {vr(vR0)}, s{sA2}, {vr(vL16)}
v_and_b32 {vr(t)}, 60, {vr(vL)}
v_lshrrev_b32 {vr(vR1)}, 1, {vr(vc_)}
v_add_u32 {vr(t)}, {vr(t)}, {vr(vR1)}
v_lshlrev_b32 {vr(t)}, 4, {vr(t)}
v_and_b32 {vr(vR1)}, 1, {vr(vc_)}
v_lshl_add_u32 {vr(t)}, {vr(vR1)}, 3, {vr(t)}
v_add_u32 {vr(t)}, s{sA2}, {vr(t)}
s_cmp_eq_u32 s{sa4}, 3
s_cselect_b64 {sp(sM0)}, -1, 0
v_mov_b32 {vr(vD2)}, {OOR}
v_cndmask_b32 {vr(vR1)}, {vr(vR0)}, {vr(t)}, {sp(sM0)}
v_cndmask_b32 {vr(vD2)}, {vr(vL16)}, {vr(vD2)}, {sp(sM0)}''')
        self.r_finish()
        for n in range(7):
            d = 32 + 8 * n
            p.need(f'r{n}')
            for e in range(2):
                for jj in range(2):
                    base = vR1 if e == 0 else vR0
                    p(f'ds_read_b64_tr_b16 {vr(d + 4 * e + 2 * jj, 2)}, {vr(base)}{off(n * 2048 + jj * 1024 + 8 * e)}')
        ON, CSA, E = 124, 128, 136
        for r in range(4):
            p(f'v_mov_b32 {vr(ON + r)}, 0x3f803f80')
        for n in range(2, 9):
            for e in range(2):
                p(mf16(CSA + 4 * e, vr(ON, 4), vr(16 + 8 * n + 4 * e, 4), None if n == 2 else CSA + 4 * e))
        p(f'''v_cmp_gt_u32 vcc, 2, {vr(vQ)}
v_and_b32 {vr(t)}, 1, {vr(vQ)}
v_cmp_eq_u32 {sp(sM1)}, s{skp}, {vr(t)}
v_mov_b32 {vr(t)}, {OOR}
v_cndmask_b32 {vr(vR0)}, {vr(t)}, {vr(vL16)}, {sp(sM1)}
v_cndmask_b32 {vr(vR1)}, {vr(t)}, {vr(vD2)}, {sp(sM1)}''')
        for e in range(2):
            a, d = CSA + 4 * e, E + 4 * e
            p(f'''v_cvt_pk_bf16_f32 {vr(d)}, {vr(a)}, {vr(a)}
v_and_b32 {vr(a + 1)}, 0xffff0000, {vr(d)}
v_sub_f32 {vr(a)}, {vr(a)}, {vr(a + 1)}
v_cvt_pk_bf16_f32 {vr(d + 1)}, {vr(a)}, {vr(a)}
v_cndmask_b32 {vr(d)}, 0, {vr(d)}, vcc
v_cndmask_b32 {vr(d + 1)}, 0, {vr(d + 1)}, vcc
v_mov_b32 {vr(d + 2)}, 0
v_mov_b32 {vr(d + 3)}, 0''')
            p(f'buffer_store_dwordx4 {vr(d, 4)}, {vr((vR0, vR1)[e])}, {srd(sWS)}, s90 offen{off(1024 * e)} sc1',
              tokw=['cst'])
        self.sentinel_init()
        p(f'v_mov_b32 {vr(12)}, 0')
        self.poll(12, 1, sDBG, 13)
        p(f'''s_lshl_b32 s{sT0}, s{sj}, 9
s_add_u32 s{sT0}, s{sT0}, {CNT + C_RDY * 128}
v_lshlrev_b32 {vr(12)}, 7, {vr(vL)}
v_add_u32 {vr(12)}, s{sT0}, {vr(12)}''')
        p.need('cst', 'sent')
        self.arrive(12, 15)
        self.stamp(3)
        p('s_barrier')

    def attention(self):
        p = self.p
        c = self.c
        Q, O, S, P, KB = 16, 48, 112, 144, 152
        SCR, FLG = 106 * 1024, 155 * 1024
        vPo, vSP, vRdy, vRv, vW0 = 7, 8, 9, 10, 11
        vM = 240
        t = 244
        vRa = 14
        qf = lambda a, u: Q + 8 * a + 4 * u
        kf = lambda b, u: KB + 16 * b + 4 * u
        vf = lambda b, u: KB + 16 * b + 8 + 4 * u
        p('.Lattn:')
        if c.stop <= 1:
            self.finish()
            return
        p(f'''s_mul_i32 s{sT0}, s{sHD}, 28
s_lshr_b32 s{sT1}, s{sT0}, 4
s_add_u32 s{sT0}, s{sT0}, 27
s_lshr_b32 s{sT2}, s{sT0}, 4
s_lshr_b32 s{sT3}, s{sQB}, 2
s_lshr_b32 s{sT4}, s{sHD}, 1
v_and_b32 {vr(vPo)}, 3, {vr(vL)}
v_add_u32 {vr(vPo)}, s{sT1}, {vr(vPo)}
v_min_u32 {vr(vPo)}, s{sT2}, {vr(vPo)}
v_mul_u32_u24 {vr(t)}, {16 * 2341}, {vr(vPo)}
v_lshrrev_b32 {vr(t)}, 17, {vr(t)}
v_sub_u32 {vr(t)}, s{sT4}, {vr(t)}
v_lshl_add_u32 {vr(vPo)}, {vr(vPo)}, 3, {vr(t)}
v_mov_b32 {vr(t)}, s{sW}
v_mov_b32 {vr(t + 2)}, s{sT3}
v_and_b32 {vr(t + 1)}, 4, {vr(vL)}
v_cmp_ne_u32 vcc, 0, {vr(t + 1)}
v_cndmask_b32 {vr(t)}, {vr(t)}, {vr(t + 2)}, vcc
v_lshl_add_u32 {vr(vPo)}, {vr(t)}, 1, {vr(vPo)}
v_lshlrev_b32 {vr(vPo)}, 7, {vr(vPo)}''')
        vD, vE = 226, 234
        p(f'''s_lshl_b32 s{sT0}, s{sJ}, 9
s_add_u32 s{sT0}, s{sT0}, {CNT + C_RDY * 128}
v_lshlrev_b32 {vr(vRv)}, 7, {vr(vL)}
v_add_u32 {vr(vRa)}, s{sT0}, {vr(vRv)}
s_lshl_b32 s{sT1}, s{sRQ}, 7
s_add_u32 s{sT0}, s{sT0}, s{sT1}
v_mov_b32 {vr(vRdy)}, s{sT0}
v_cmp_lt_u32 {sp(sM2)}, 31, {vr(vL)}
v_lshrrev_b32 {vr(t)}, 3, {vr(vL)}
v_and_b32 {vr(t + 1)}, 7, {vr(vL)}
v_xor_b32 {vr(t + 1)}, {vr(t + 1)}, {vr(vQ)}
v_lshlrev_b32 {vr(t)}, 12, {vr(t)}
v_lshl_add_u32 {vr(t)}, {vr(t + 1)}, 4, {vr(t)}
v_xor_b32 {vr(t + 1)}, 64, {vr(t)}
v_lshrrev_b32 {vr(t + 2)}, 1, {vr(vC)}
v_xor_b32 {vr(t + 2)}, {vr(t + 2)}, {vr(vQ)}
v_lshlrev_b32 {vr(t + 2)}, 4, {vr(t + 2)}
v_lshl_add_u32 {vr(t + 2)}, {vr(vC)}, 7, {vr(t + 2)}
v_xor_b32 {vr(t + 3)}, 64, {vr(t + 2)}
s_lshl_b32 s{sA1}, s{sW}, 14
s_mul_i32 s{sA2}, s{sW}, 12288
s_add_u32 s{sA2}, s{sA2}, {SCR}
v_add_u32 {vr(vE)}, s{sA1}, {vr(t + 2)}
v_add_u32 {vr(vE + 1)}, s{sA1}, {vr(t + 3)}
v_add_u32 {vr(vE + 2)}, s{sA2}, {vr(t + 2)}
v_add_u32 {vr(vE + 3)}, s{sA2}, {vr(t + 3)}
v_add_u32 {vr(vSP)}, s{sA2}, {vr(vL16)}
s_lshl_b32 s{sA0}, s{sI}, 18''')
        for a in range(4):
            p(f's_add_u32 s{sT0}, s{sW}, {1 + a}\ns_and_b32 s{sT0}, s{sT0}, 3')
            p(f'''s_lshl_b32 s{sT1}, s{sT0}, 16
s_lshl_b32 s{sT2}, s{sW}, 10
s_add_u32 s{sT1}, s{sT1}, s{sT2}
s_add_u32 s{sT2}, s{sT1}, {4096 - 2048 * (a % 2)}
v_add_u32 {vr(vD + 2 * a)}, s{sT2}, {vr(t)}
s_add_u32 s{sT2}, s{sT1}, {4096 + 8 * 4096 - 2048 * (a % 2) - 1024}
v_add_u32 {vr(vD + 2 * a + 1)}, s{sT2}, {vr(t + 1)}''')
            if a < 3:
                p(f'''s_add_u32 s{sT1}, s{sW}, {3 - a}
s_and_b32 s{sT1}, s{sT1}, 3
s_mul_i32 s{sT1}, s{sT1}, 12288
s_add_u32 s{sT1}, s{sT1}, {SCR + a * 4096}
v_add_u32 {vr(vW0 + a)}, s{sT1}, {vr(vL16)}''')
            p(f'''s_lshl_b32 s{sT1}, s{sHD}, 6
s_lshl_b32 s{sT2}, s{sQB}, 2
s_add_u32 s{sT1}, s{sT1}, s{sT2}
s_add_u32 s{sT1}, s{sT1}, s{sT0}
s_lshl_b32 s{sT1}, s{sT1}, 11
s_add_u32 s{88 + a}, s{sT1}, {QF}''')
        p(f'''s_lshl_b32 s{sT0}, s{sHD}, 18
s_add_u32 s{sT0}, s{sT0}, {KV}
s_lshl_b32 s{sT1}, s{sQB}, 14
s_add_u32 s{92}, s{sT0}, s{sT1}
s_lshl_b32 s{sT1}, s{sW}, 16
s_add_u32 s{93}, s{sT0}, s{sT1}''')
        sKR, sSR = sK2, sK2 + 1
        if c.rot5:
            p(f's_add_u32 s{sSR}, s{sI}, s{sJ}\ns_and_b32 s{sSR}, s{sSR}, 3\ns_lshl_b32 s{sSR}, s{sSR}, 8')
        else:
            p(f's_mov_b32 s{sSR}, 0')
        self.poll(vPo, 8)
        self.stamp(4)
        for u in range(2):
            p(f'buffer_load_dwordx4 {vr(kf(3, u), 4)}, {vr(vL16)}, {srd(sWS)}, s92 offen{off(1024 * u)} sc1')
        for a in range(4):
            for u in range(2):
                p(f'buffer_load_dwordx4 {vr(qf(a, u), 4)}, {vr(vL16)}, {srd(sWS)}, s{88 + a} offen{off(1024 * u)} sc1')

        def kvload(tl, which):
            b = tl % 4
            return f'buffer_load_dwordx4 {vr(KB + 16 * b + 4 * which, 4)}, {vr(vL16)}, {srd(sWS)}, s{sKV} offen' \
                   f'{off(1024 * which)} sc1'

        def kvnext():
            return [f's_add_u32 s{sKR}, s{sKR}, 4096', f's_and_b32 s{sKR}, s{sKR}, 0xffff', f's_add_u32 s{sKV}, s93, s{sKR}']

        def first_kv():
            p(f's_lshl_b32 s{sKR}, s{sQB}, 12' if c.rotkv else f's_mov_b32 s{sKR}, 0')
            for tl in range(3):
                p.add(kvnext())
                for wch in range(4):
                    p(kvload(tl, wch))
        first_kv()

        def tile_max(a, b, first):
            s = S + 16 * (a % 2)
            o = [mf32(s, kf(b, 0), qf(a, 0), None), mf32(s, kf(b, 1), qf(a, 1), s)]
            m = vM + a
            v = [f'v_max3_f32 {vr(m)}, {vr(s)}, {vr(s + 1)}, {vr(s + 2) if first else vr(m)}']
            rest = list(range(3 if first else 2, 16))
            while len(rest) >= 2:
                v.append(f'v_max3_f32 {vr(m)}, {vr(s + rest[0])}, {vr(s + rest[1])}, {vr(m)}')
                rest = rest[2:]
            if rest:
                v.append(f'v_max_f32 {vr(m)}, {vr(s + rest[0])}, {vr(m)}')
            return o, v

        def max_pass(b, first):
            ms = [tile_max(a, b, first) for a in range(4)]
            p.add(ms[0][0])
            for a in range(4):
                if a < 3:
                    p.add(ms[a + 1][0])
                p.add(ms[a][1])

        def half_max():
            for a in range(4):
                p(f'v_mov_b32 {vr(t + a)}, {vr(vM + a)}')
            for a in range(4):
                p(f'v_permlane32_swap_b32 {vr(t + a)}, {vr(vM + a)}')
            for a in range(4):
                p(f'v_max_f32 {vr(vM + a)}, {vr(t + a)}, {vr(vM + a)}')

        def patch_q(full):
            for a in range(4):
                m = vM + a
                p(f'v_sub_f32 {vr(m)}, 0, {vr(m)}')
                p(f'v_cvt_pk_bf16_f32 {vr(t)}, {vr(m)}, 0')
                if full:
                    p(f'''v_lshlrev_b32 {vr(t + 1)}, 16, {vr(t)}
v_sub_f32 {vr(m)}, {vr(m)}, {vr(t + 1)}
v_cvt_pk_bf16_f32 {vr(t + 1)}, {vr(m)}, 0
v_lshlrev_b32 {vr(t + 1)}, 16, {vr(t + 1)}
v_sub_f32 {vr(m)}, {vr(m)}, {vr(t + 1)}
v_or_b32 {vr(t)}, {vr(t)}, {vr(t + 1)}
v_cvt_pk_bf16_f32 {vr(t + 1)}, {vr(m)}, 0
v_cndmask_b32 {vr(qf(a, 1) + 3)}, {vr(qf(a, 1) + 3)}, {vr(t + 1)}, {sp(sM2)}''')
                p(f'v_cndmask_b32 {vr(qf(a, 1) + 2)}, {vr(qf(a, 1) + 2)}, {vr(t)}, {sp(sM2)}')
        max_pass(3, True)
        half_max()
        patch_q(False)
        p('.Lsweep:')
        self.stamp(5)
        side = [[] for _ in range(16)]
        for g in range(8):
            sl = g % 3
            sb, ob = (sA1, 8192 * sl) if sl < 2 else (sA2, 0)
            dm = []
            for n in range(8):
                it = []
                if n == 0:
                    if g >= 3:
                        it.append(('; need', [], [f'sr{g - 3}']))
                    it += [f's_add_u32 s{sT4}, s{sSR}, {128 * g}', f's_and_b32 s{sT4}, s{sT4}, 1023',
                           f's_add_u32 s{sT4}, s{sT4}, s{sA0}']
                if n % 4 == 0 or (g < 2 and n % 2 == 0):
                    it.append(f's_add_u32 m0, s{sb}, {ob + 1024 * (n - n % 4)}')
                    dm.append(it)
                dm.append([(f'buffer_load_dwordx4 {vr(vD + n)}, {srd(sSP)}, s{sT4} offen{off(1024 * (n % 4))} lds',
                            [f'sd{g}'])])
            if g < 2:
                for n, it in enumerate(dm):
                    side[3 * g + (0, 1, 1, 2)[n // 3]].append(it)
            else:
                side[g + 4] += dm
            rd = []
            for a in range(4):
                for e in range(2):
                    it = []
                    if a == 0 and e == 0:
                        it.append(('; need', [], [f'sd{g}']))
                    it.append((f'ds_read_b128 {ar((a * 16 + 2 * g + e) * 4, 4)}, {vr(vE + e + (2 if sl == 2 else 0))}'
                               f'{off(ob + a * 2048)}', [f'sr{g}']))
                    rd.append(it)
            rt_ = (5, 7, 8, 9, 10, 11, 12, 12)[g]
            side[rt_] = (side[rt_] + rd) if g == 7 else (rd + side[rt_])
        side[1].append('ARRIVE')
        side[3].append([f'buffer_load_dword {vr(vRv)}, {vr(vRdy)}, {srd(sWS)}, 0 offen sc1'])
        side[4].append('CHECK')
        side[4].append([f's_mul_i32 s{sT1}, s{sJ}, {210 * 1024}'])
        d = self.dma_list(sT1, WIF, 64 * 1024, 42, 'z2a')
        side[4] += d[:6]
        side[5] += d[6:11]
        side[6] += d[11:]
        d = [[('; need', [], ['sr6', 'sr7']), f's_lshl_b32 s{sT0}, s{sJ}, 16'],
             [f's_add_u32 s{sT1}, s{sW}, s{sJ}' if c.rot36 else f's_mov_b32 s{sT1}, s{sW}', f's_and_b32 s{sT1}, s{sT1}, 3'],
             [f's_lshl_b32 s{sT1}, s{sT1}, 14', f's_add_u32 s{sT0}, s{sT0}, s{sT1}'],
             [f's_add_u32 s{sT0}, s{sT0}, {WOF}', f's_lshl_b32 s{sT1}, s{sI}, 12']]
        for n in range(4):
            d.append([f's_add_u32 s{sT1}, s{sT1}, 4096', f's_and_b32 s{sT1}, s{sT1}, 0x3000'])
            d.append([f's_add_u32 m0, s{sT1}, s{sA1}', f's_add_u32 s{sG}, s{sT1}, s{sT0}'])
            for k in range(4):
                d.append([(f'buffer_load_dwordx4 {vr(vL16)}, {srd(sWS)}, s{sG} offen{off(k * 1024)} sc1 lds', ['wo'])])
        side[13] += d[:16]
        side[14] += d[16:]
        side[2].append([f's_mul_i32 s{sT0}, s{sRT}, {16 * 896}', f's_mul_i32 s{sT1}, s{sJ}, 112'])
        side[2].append([f's_add_u32 s{sT0}, s{sT0}, s{sT1}', f'v_mul_u32_u24 {vr(t)}, 896, {vr(vC)}',
                         f'v_lshl_add_u32 {vr(t)}, {vr(vQ)}, 4, {vr(t)}'])
        side[2].append([f'buffer_load_dwordx4 {vr(vXR, 4)}, {vr(t)}, {srd(sX)}, s{sT0} offen'])
        side[2].append([f'buffer_load_dwordx4 {vr(vXR + 4, 4)}, {vr(t)}, {srd(sX)}, s{sT0} offen offset:64'])
        side[0].append([f's_lshl_b32 s{sT0}, s{sRT}, 5', f'v_lshlrev_b32 {vr(t)}, 1, {vr(vC)}'])
        side[0].append([f'buffer_load_ushort {vr(vBS)}, {vr(t)}, {srd(sBS)}, s{sT0} offen'])

        def owrite(a):
            return [[(f'ds_write_b128 {vr(vSP)}, {vr(O + 16 * a + 4 * k, 4)}{off(4096 * a + 1024 * k)}', ['ow'])]
                    for k in range(4)]

        p.add(kvnext())
        p(mf32(S, kf(0, 0), qf(0, 0), None))
        p(mf32(S, kf(0, 1), qf(0, 1), S))
        for n in range(64):
            tl, a = n // 4, n % 4
            if c.fine == 2 and n % 8 == 0 and n:
                self.stamp(24 + n // 8 - 1)
            sc, sn = S + 16 * (n % 2), S + 16 * ((n + 1) % 2)
            ms = [None] * 4
            if n < 63:
                t1, a1 = (n + 1) // 4, (n + 1) % 4
                ms[0] = mf32(sn, kf(t1 % 4, 0), qf(a1, 0), None)
                ms[1] = mf32(sn, kf(t1 % 4, 1), qf(a1, 1), sn)
            if n > 0:
                t0, a0 = (n - 1) // 4, (n - 1) % 4
                ms[2] = mf32(O + 16 * a0, vf(t0 % 4, 1), P + 4, O + 16 * a0)
            ms[3] = mf32(O + 16 * a, vf(tl % 4, 0), P, None if tl == 0 else O + 16 * a)
            ex = [[] for _ in range(4)]
            if tl + 3 < 16:
                if a == 0:
                    ex[0] = [kvload(tl + 3, 0)]
                    ex[1] = [kvload(tl + 3, 1)]
                if a == 1:
                    ex[0] = [kvload(tl + 3, 2)]
                    ex[1] = [kvload(tl + 3, 3)]
            if tl == 15 and a >= 2:
                w = owrite(a - 2)
                for g in range(4):
                    ex[g] = w[g]
            for g in range(4):
                if ms[g]:
                    p(ms[g])
                if a == 3 and g > 0 and tl < 12:
                    p(kvnext()[g - 1])
                if not ex[g] and side[tl]:
                    left = sum(1 for a2 in range(a, 4) for g2 in range(4)
                               if (a2, g2) >= (a, g) and not (tl + 3 < 16 and a2 < 2 and g2 < 2))
                    for _ in range(-(-len(side[tl]) // left)):
                        it = side[tl].pop(0)
                        if it == 'CHECK':
                            self.check(vRv, vRdy, 144)
                        elif it == 'ARRIVE':
                            La = p.label('noarr')
                            p(f's_cmp_lg_u32 s{sFB}, 0\ns_cbranch_scc1 {La}')
                            p.need('rst')
                            self.arrive(vRa, 15)
                            p(f'{La}:')
                        else:
                            p.add(list(it))
                else:
                    p.add(list(ex[g]))
                for jx in range(4):
                    p(f'v_exp_f32 {vr(sc + 4 * g + jx)}, {vr(sc + 4 * g + jx)}')
                p(f'v_cvt_pk_bf16_f32 {vr(P + 2 * g)}, {vr(sc + 4 * g)}, {vr(sc + 4 * g + 1)}')
                p(f'v_cvt_pk_bf16_f32 {vr(P + 2 * g + 1)}, {vr(sc + 4 * g + 2)}, {vr(sc + 4 * g + 3)}')
            if a == 3:
                assert not side[tl], (tl, side[tl])
        p(mf32(O + 48, vf(3, 1), P + 4, O + 48))
        for g in owrite(2):
            p.add(list(g))
        self.stamp(6)
        p(f'''v_max3_f32 {vr(t)}, abs({vr(O + 12)}), abs({vr(O + 28)}), abs({vr(O + 44)})
v_add_f32 {vr(t + 1)}, {vr(O + 12)}, {vr(O + 28)}
v_add_f32 {vr(t + 1)}, {vr(t + 1)}, {vr(O + 44)}
v_add_f32 {vr(t + 1)}, {vr(t + 1)}, {vr(O + 60)}
v_max3_f32 {vr(t)}, {vr(t)}, abs({vr(O + 60)}), abs({vr(O + 60)})
v_cmp_nge_f32 vcc, {hx(2.0 ** 60)}, {vr(t)}
v_cmp_u_f32 {sp(sM0)}, {vr(t + 1)}, {vr(t + 1)}
s_or_b64 vcc, vcc, {sp(sM0)}
s_cmp_lg_u64 vcc, 0
s_cselect_b32 s{sT0}, 1, {1 if c.force_fb else 0}
s_lshl_b32 s{sT1}, s{sW}, 2
s_add_u32 s{sT1}, s{sT1}, {FLG}
v_mov_b32 {vr(t)}, s{sT0}
v_mov_b32 {vr(t + 1)}, s{sT1}''')
        p(f'ds_write_b32 {vr(t + 1)}, {vr(t)}', tokw=['ow'])
        p(f'v_mov_b32 {vr(t + 1)}, {FLG}')
        p.need('ow', 'wo', 'z2a')
        p('s_barrier')
        p(f'ds_read_b128 {vr(t + 4, 4)}, {vr(t + 1)}')
        R = S
        for a in range(3):
            for k in range(4):
                p(f'ds_read_b128 {vr(R + 16 * a + 4 * k, 4)}, {vr(vW0 + a)}{off(k * 1024)}')
        p(f'''v_or_b32 {vr(t + 4)}, {vr(t + 4)}, {vr(t + 5)}
v_or3_b32 {vr(t + 4)}, {vr(t + 4)}, {vr(t + 6)}, {vr(t + 7)}
v_readfirstlane_b32 s{sT0}, {vr(t + 4)}
s_andn2_b32 s{sT0}, s{sT0}, s{sFB}
s_cmp_lg_u32 s{sT0}, 0
s_cbranch_scc1 .Ltruemax''')
        Oo = O + 48
        for a in range(3):
            for k in range(8):
                p(f'v_pk_add_f32 {vr(Oo + 2 * k, 2)}, {vr(Oo + 2 * k, 2)}, {vr(R + 16 * a + 2 * k, 2)}')
        p(f'''v_mov_b32 {vr(t)}, {vr(Oo + 12)}
v_mov_b32 {vr(t + 2)}, {vr(Oo + 12)}
v_permlane32_swap_b32 {vr(t)}, {vr(t + 2)}
v_rcp_f32 {vr(t)}, {vr(t + 2)}
v_mov_b32 {vr(t + 1)}, {vr(t)}
v_cndmask_b32 {vr(t + 2)}, {vr(t)}, 0, {sp(sM2)}
v_mov_b32 {vr(t + 3)}, {vr(t + 2)}''')
        p(f'''s_lshl_b32 s{sT0}, s{sQB}, 3
s_lshl_b32 s{sT1}, s{sW}, 1
s_add_u32 s{sT0}, s{sT0}, s{sT1}
s_lshl_b32 s{sT0}, s{sT0}, 4
s_add_u32 s{sT0}, s{sT0}, s{sHD}
s_lshl_b32 s{sT0}, s{sT0}, 10
s_add_u32 s{sT0}, s{sT0}, {OF}
v_and_b32 {vr(vPo)}, 1, {vr(vQ)}
v_lshlrev_b32 {vr(vPo)}, 14, {vr(vPo)}
v_lshrrev_b32 {vr(vRv)}, 1, {vr(vQ)}
v_lshl_add_u32 {vr(vPo)}, {vr(vRv)}, 8, {vr(vPo)}
v_lshl_add_u32 {vr(vPo)}, {vr(vC)}, 4, {vr(vPo)}''')
        for k in range(8):
            sc = t if k < 6 else t + 2
            p(f'v_pk_mul_f32 {vr(Oo + 2 * k, 2)}, {vr(Oo + 2 * k, 2)}, {vr(sc, 2)}')
        for k in range(8):
            p(f'v_cvt_pk_bf16_f32 {vr(O + k)}, {vr(Oo + 2 * k)}, {vr(Oo + 2 * k + 1)}')
        for a in range(2):
            p(f'buffer_store_dwordx4 {vr(O + 4 * a, 4)}, {vr(vPo)}, {srd(sWS)}, s{sT0} offen{off(512 * a)} sc1',
              tokw=['st2'])
        p(f'''s_lshl_b32 s{sT0}, s{sQB}, 2
s_add_u32 s{sT0}, s{sT0}, s{sW}
s_lshl_b32 s{sT0}, s{sT0}, 8
s_add_u32 s{sT0}, s{sT0}, {CNT + C_S2 * 128}
v_lshlrev_b32 {vr(vSP)}, 7, {vr(vL)}
v_add_u32 {vr(vSP)}, s{sT0}, {vr(vSP)}''')
        p.need('st2')
        self.arrive(vSP, 3)
        self.stamp(7)

        def truemax():
            p('.Ltruemax:')
            p('s_waitcnt vmcnt(0) lgkmcnt(0)\ns_barrier')
            p(f's_mov_b32 s{sFB}, 1')
            for a in range(4):
                for r in (2, 3):
                    p(f'v_cndmask_b32 {vr(qf(a, 1) + r)}, {vr(qf(a, 1) + r)}, 0, {sp(sM2)}')
                p(f'v_mov_b32 {vr(vM + a)}, 0xff7fffff')
            p(f's_mov_b32 s{sKV}, s93\ns_mov_b32 s{sT0}, 16')
            p('.Ltm_loop:')
            p(kvload(3, 0))
            p(kvload(3, 1))
            max_pass(3, False)
            p(f's_add_u32 s{sKV}, s{sKV}, 4096\ns_sub_u32 s{sT0}, s{sT0}, 1\ns_cmp_lg_u32 s{sT0}, 0')
            p('s_cbranch_scc1 .Ltm_loop')
            half_max()
            for a in range(4):
                p(f'''s_add_u32 s{sT0}, s{sW}, {1 + a}
s_and_b32 s{sT0}, s{sT0}, 3
s_lshl_b32 s{sT0}, s{sT0}, 10
s_add_u32 s{sT0}, s{sT0}, {SCR}
v_lshlrev_b32 {vr(t + a)}, 2, {vr(vL)}
v_add_u32 {vr(t + a)}, s{sT0}, {vr(t + a)}
s_lshl_b32 s{sT0}, s{sW}, 8
v_add_u32 {vr(t + 4)}, s{sT0}, {vr(t + a)}''')
                p(f'ds_write_b32 {vr(t + 4)}, {vr(vM + a)}', tokw=['tm'])
            p.need('tm')
            p('s_barrier')
            for a in range(4):
                for k in range(4):
                    p(f'ds_read_b32 {vr(S + 4 * a + k)}, {vr(t + a)}{off(256 * k)}')
            for a in range(4):
                p(f'v_max3_f32 {vr(vM + a)}, {vr(S + 4 * a)}, {vr(S + 4 * a + 1)}, {vr(S + 4 * a + 2)}')
                p(f'v_max_f32 {vr(vM + a)}, {vr(vM + a)}, {vr(S + 4 * a + 3)}')
            patch_q(True)
            p('s_waitcnt lgkmcnt(0)\ns_barrier')
            first_kv()
            p('s_branch .Lsweep')
        self.truemax = truemax

    def gemm_lds(self, nks, nct, lds_addr, act, acc, ring, nring, w_is_a, fill=(), per=0.0, hooks=None, ahead=6,
                 pre=None, fstart=0, side=None):
        p = self.p
        seq = [(ks, ct) for ks in range(nks) for ct in range(nct)]
        fill = list(fill)
        hooks = hooks or {}
        rd = lambda n: lds_rd(ring + 4 * (n % nring), lds_addr(*seq[n]))
        issued = 0
        accu = 0.0

        def run_hook(n):
            if n < len(seq) and seq[n][1] == 0 and seq[n][0] in hooks:
                hooks.pop(seq[n][0])()
        while issued < min(ahead, len(seq)):
            run_hook(issued)
            p(rd(issued))
            issued += 1
        for n, (ks, ct) in enumerate(seq):
            if ct == 0 and pre and ks in pre:
                p.add(pre[ks])
            wf = vr(ring + 4 * (n % nring), 4)
            a, b = (wf, act(ks)) if w_is_a else (act(ks), wf)
            p(mf16(acc(ct), a, b, None if ks == 0 else acc(ct)))
            if issued < len(seq):
                run_hook(issued)
                p(rd(issued))
                issued += 1
            if side and n in side:
                p.add(side[n])
            if n >= fstart:
                accu += per
            while accu >= 1 and fill:
                p.add(fill.pop(0))
                accu -= 1
        p.add(fill)

    def gelu(self, regs, t, scale):
        o = []
        for n in range(0, len(regs), 2):
            r = regs[n]
            u = t + 2 * ((n // 2) % 4)
            o.append([f'v_pk_mul_f32 {vr(r, 2)}, {vr(r, 2)}, {scale(n // 2)}',
                      f'v_pk_mul_f32 {vr(u, 2)}, {vr(r, 2)}, {vr(r, 2)}',
                      f'v_pk_fma_f32 {vr(u, 2)}, {vr(u, 2)}, {vr(168, 2)}, {vr(170, 2)}',
                      f'v_pk_mul_f32 {vr(u, 2)}, {vr(u, 2)}, {vr(r, 2)}',
                      f'v_exp_f32 {vr(u)}, {vr(u)}',
                      f'v_exp_f32 {vr(u + 1)}, {vr(u + 1)}',
                      f'v_pk_add_f32 {vr(u, 2)}, {vr(u, 2)}, 1.0 op_sel_hi:[1,0]',
                      f'v_rcp_f32 {vr(u)}, {vr(u)}',
                      f'v_rcp_f32 {vr(u + 1)}, {vr(u + 1)}',
                      f'v_pk_mul_f32 {vr(r, 2)}, {vr(r, 2)}, {vr(u, 2)}'])
        out = []
        for n in range(0, len(o), 2):
            if n + 1 < len(o):
                for a, b in zip(o[n], o[n + 1]):
                    out += [a, b]
            else:
                out += o[n]
        return out

    def phase3(self):
        p = self.p
        OB, RING, ACC = 16, 80, 112
        vA, vB, t = 7, 8, 10
        p(f's_mul_i32 s{sT1}, s{sJ}, {210 * 1024}')
        for a in range(4):
            if a < 3:
                p(f'''s_add_u32 s{sT5}, s{sW}, {3 - a}
s_and_b32 s{sT5}, s{sT5}, 3
s_mul_i32 s{sT5}, s{sT5}, 12288
s_add_u32 s{sT5}, s{sT5}, {a * 4096}''')
            else:
                p(f's_mov_b32 s{sT5}, {48 * 1024}')
            p(f'''s_add_u32 s{sG}, s{sT1}, s{sT5}
s_add_u32 s{sG}, s{sG}, {WIF + 42 * 1024}
s_add_u32 m0, s{sT5}, {106 * 1024}''')
            for n in range(4 if a < 3 else 1):
                p(f'buffer_load_dwordx4 {vr(vL16)}, {srd(sWS)}, s{sG} offen{off(n * 1024)} sc1 lds', tokw=['z2b'])
        p(f'''s_lshr_b32 s{sT0}, s{sRT}, 1
s_lshl_b32 s{sT0}, s{sT0}, 1
s_add_u32 s{sT0}, s{sT0}, s{sCH}
s_lshl_b32 s{sT0}, s{sT0}, 7
s_add_u32 s{sT0}, s{sT0}, {CNT + C_S2 * 128}
v_mov_b32 {vr(vA)}, s{sT0}
s_lshl_b32 s{sT0}, s{sRT}, 14
s_add_u32 s{sT0}, s{sT0}, {OF}''')
        for g in range(4):
            p(f's_add_u32 s{sT2}, s{sJ}, {g}' if self.c.rot36 else f's_mov_b32 s{sT2}, {g}')
            p(f's_and_b32 s{sT2}, s{sT2}, 3\ns_lshl_b32 s{sT2}, s{sT2}, 12\ns_add_u32 s{sA0 + g}, s{sT2}, s{sT0}')
        self.poll(vA, 16)
        self.stamp(8)
        def old(ks):
            return f'buffer_load_dwordx4 {vr(OB + 4 * ks, 4)}, {vr(vL16)}, {srd(sWS)}, s{sA0 + ks // 4} offen' \
                   f'{off(1024 * (ks % 4))} sc1'
        for ks in range(8):
            p(old(ks))
        p(f'''s_mul_i32 s{sT0}, s{sRT}, 14336
s_mul_i32 s{sT2}, s{sJ}, {7 * 256}
s_add_u32 s{sT0}, s{sT0}, s{sT2}
s_add_u32 s{sT0}, s{sT0}, {HF}
v_cmp_eq_u32 vcc, 3, {vr(vQ)}
v_mov_b32 {vr(vB)}, {OOR}
v_cndmask_b32 {vr(vB)}, {vr(vL16)}, {vr(vB)}, vcc''')
        self.gemm_lds(16, 4, lambda ks, ct: (ks * 4 + ct) * 1024, lambda ks: vr(OB + 4 * ks, 4),
                      lambda ct: ACC + 4 * ct, RING, 8, True, side={4 * ks: [old(ks + 8)] for ks in range(8)})
        for k in range(8):
            x = vXR + k
            a = ACC + 2 * k
            p(f'''v_lshlrev_b32 {vr(t)}, 16, {vr(x)}
v_and_b32 {vr(t + 1)}, 0xffff0000, {vr(x)}
v_pk_add_f32 {vr(a, 2)}, {vr(a, 2)}, {vr(t, 2)}
v_cvt_pk_bf16_f32 {vr(x)}, {vr(a)}, {vr(a + 1)}''')
            if k == 3:
                p(f'buffer_store_dwordx4 {vr(vXR, 4)}, {vr(vL16)}, {srd(sWS)}, s{sT0} offen sc1', tokw=['st3'])
        p(f'buffer_store_dwordx4 {vr(vXR + 4, 4)}, {vr(vB)}, {srd(sWS)}, s{sT0} offen offset:1024 sc1', tokw=['st3'])
        p(f'''s_lshl_b32 s{sT0}, s{sRT}, 8
s_add_u32 s{sT0}, s{sT0}, {CNT + C_S3 * 128}
v_lshlrev_b32 {vr(vA)}, 7, {vr(vL)}
v_add_u32 {vr(vA)}, s{sT0}, {vr(vA)}''')
        p.need('st3')
        self.arrive(vA, 3)
        self.stamp(9)
        p('s_barrier')

    def phase4(self):
        p = self.p
        HB, RING, Z2, Z1 = 16, 80, 112, 140
        ONES, NA, G, SA, RS = 172, 176, 180, 192, 200
        vA, vPerm, vS, vZ, vZo, vP4 = 7, 8, 9, 12, 13, 14
        t = 10
        K = 1024

        def z2addr(ks, ct):
            return (64 * K + (ks * 7 + ct) * K) if ks < 13 else ((ks - 13) * 7 + ct) * K

        def z1addr(ks, ct):
            return (14 * K + (ks * 7 + ct) * K) if ks < 7 else 64 * K + ((ks - 7) * 7 + ct) * K
        p(f's_mul_i32 s{sT1}, s{sJ}, {210 * K}')
        self.emit_groups(self.dma_list(sT1, WIF + 91 * K, 0, 63, 'z1a'))
        p(f'''s_lshl_b32 s{sT0}, s{sRT}, 1
s_add_u32 s{sT0}, s{sT0}, s{sCH}
s_lshl_b32 s{sT0}, s{sT0}, 7
s_add_u32 s{sT0}, s{sT0}, {CNT + C_S3 * 128}
v_mov_b32 {vr(vA)}, s{sT0}
s_mul_i32 s{sT0}, s{sRT}, 14336
s_add_u32 s{sT0}, s{sT0}, {HF}''')
        for r in range(4):
            p(f'v_mov_b32 {vr(ONES + r)}, 0x3f803f80')
        k1 = -2.0 * math.sqrt(2.0 / math.pi) * math.log2(math.e)
        p(f'''v_mov_b32 v168, {hx(k1 * 0.044715)}
v_mov_b32 v169, {hx(k1 * 0.044715)}
v_mov_b32 v170, {hx(k1)}
v_mov_b32 v171, {hx(k1)}
v_mov_b32 {vr(HB + 58)}, 0
v_mov_b32 {vr(HB + 59)}, 0
v_lshlrev_b32 {vr(vP4)}, 4, {vr(vQ)}
v_cmp_gt_u32 {sp(sM2)}, 2, {vr(vQ)}''')
        self.ln_masks(vPerm)
        for g in range(4):
            p(f's_add_u32 s{sA0 + g}, s{sT0}, {4096 * g}')
        p.need('z2b', 'z1a')
        p('s_barrier')
        self.poll(vA, 8)
        self.stamp(10)

        def hld(ks):
            return f'buffer_load_dwordx4 {vr(HB + 4 * ks, 4)}, {vr(vL16)}, {srd(sWS)}, s{sA0 + ks // 4} offen' \
                   f'{off((ks % 4) * K)} sc1'
        for ks in range(8):
            p(hld(ks))
        pre = {}
        for ks in range(7):
            pre[ks] = []
            for k2 in (2 * ks, 2 * ks + 1):
                h = vr(HB + 4 * k2, 4)
                pre[ks] += [mf16(SA, vr(ONES, 4), h, None if k2 == 0 else SA),
                            mf16(SA + 4, h, h, None if k2 == 0 else SA + 4)]
        fill = self.ln_finish(SA, SA + 4, NA, t, vPerm)
        E = HB + 56
        fill += [f'v_cvt_pk_bf16_f32 {vr(E)}, {vr(NA + 1)}, {vr(NA + 1)}',
                 f'v_and_b32 {vr(t)}, 0xffff0000, {vr(E)}',
                 f'v_sub_f32 {vr(t)}, {vr(NA + 1)}, {vr(t)}',
                 f'v_cvt_pk_bf16_f32 {vr(E)}, {vr(NA + 1)}, {vr(t)}',
                 f'v_cndmask_b32 {vr(E)}, 0, {vr(E)}, {sp(sM2)}',
                 f'v_mov_b32 {vr(E + 1)}, {vr(E)}']
        fill += [f'ds_bpermute_b32 {vr(RS + r)}, {vr(vP4)}, {vr(NA)}{off(4 * r)}' for r in range(4)]

        def bar(tok):
            def f():
                p.need(tok)
                p('s_barrier')
            return f
        self.gemm_lds(15, 7, z2addr, lambda ks: vr(HB + 4 * ks, 4), lambda ct: Z2 + 4 * ct, RING, 8, False,
                      fill=fill, per=0.5, fstart=52, pre=pre, side={3 * n: [hld(8 + n)] for n in range(6)})
        p('s_barrier')
        self.stamp(12)
        p(f's_mul_i32 s{sT2}, s{sJ}, {112 * K}\ns_add_u32 s{sT2}, s{sT2}, {WUF}')
        d = self.dma_list(sT1, WIF + (105 + 49) * K, 64 * K, 56, 'z1b')
        g = self.gelu(list(range(Z2, Z2 + 28)), G, lambda n: vr(RS + 2 * (n % 2), 2))
        p.add(interleave(g, [list(x) for x in d], per=len(d) / float(len(g)) + 0.01))
        SS, SQ = G, G + 4
        for ct in range(7):
            for h in range(2):
                z = vr(Z2 + 4 * ct + 2 * h, 2)
                if ct == 0:
                    p(f'v_pk_mul_f32 {vr(SQ + 2 * h, 2)}, {z}, {z}')
                else:
                    p(f'v_pk_fma_f32 {vr(SQ + 2 * h, 2)}, {z}, {z}, {vr(SQ + 2 * h, 2)}')
                    a = vr(Z2 + 2 * h, 2) if ct == 1 else vr(SS + 2 * h, 2)
                    p(f'v_pk_add_f32 {vr(SS + 2 * h, 2)}, {z}, {a}')
        for sh in (8, 4, 2, 1):
            for r in range(8):
                p(f'v_add_f32_dpp {vr(G + r)}, {vr(G + r)}, {vr(G + r)} row_ror:{sh} row_mask:0xf bank_mask:0xf')
        PB = G + 8
        p(f'''v_cndmask_b32 {vr(PB)}, {vr(SS)}, {vr(SS + 2)}, {sp(sM0)}
v_cndmask_b32 {vr(PB + 1)}, {vr(SQ)}, {vr(SQ + 2)}, {sp(sM0)}
v_cndmask_b32 {vr(PB + 2)}, {vr(SS + 1)}, {vr(SS + 3)}, {sp(sM0)}
v_cndmask_b32 {vr(PB + 3)}, {vr(SQ + 1)}, {vr(SQ + 3)}, {sp(sM0)}
v_lshlrev_b32 {vr(vS)}, 5, {vr(vQ)}
v_lshl_add_u32 {vr(vA)}, {vr(vC)}, 4, {vr(vS)}
s_lshl_b32 s{sT0}, s{sRT}, 10
s_add_u32 s{sT0}, s{sT0}, {ST}
s_lshl_b32 s{sT3}, s{sJ}, 7
s_add_u32 s{sT3}, s{sT3}, s{sT0}''')
        for r in range(4):
            p(f'v_min_u32 {vr(PB + r)}, -2, {vr(PB + r)}')
        p(f's_mov_b32 exec_lo, 0x00030003\ns_mov_b32 exec_hi, 0x00030003')
        p(f'buffer_store_dwordx4 {vr(PB, 4)}, {vr(vA)}, {srd(sWS)}, s{sT3} offen sc1')
        p('s_mov_b64 exec, -1')
        self.stamp(13)
        p(f'''v_and_b32 {vr(vA)}, 7, {vr(vC)}
v_lshl_add_u32 {vr(vS)}, {vr(vA)}, 7, {vr(vS)}
v_lshrrev_b32 {vr(vA)}, 3, {vr(vC)}
v_lshl_add_u32 {vr(vS)}, {vr(vA)}, 4, {vr(vS)}''')
        d = [list(x) for x in self.dma_wu(0, 8, 120 * K, 'wua')]
        self.gemm_lds(15, 7, z1addr, lambda ks: vr(HB + 4 * ks, 4), lambda ct: Z1 + 4 * ct, RING, 8, True,
                      hooks={7: bar('z1b')}, fill=d, per=0.25)
        self.stamp(14)
        L, Dn = p.label('st'), p.label('std')
        p(f'{L}:')
        p(f'buffer_load_dwordx4 {vr(PB, 4)}, {vr(vS)}, {srd(sWS)}, s{sT0} offen sc1')
        p(f'''v_max3_u32 {vr(t)}, {vr(PB)}, {vr(PB + 1)}, {vr(PB + 2)}
v_max_u32 {vr(t)}, {vr(t)}, {vr(PB + 3)}
v_cmp_eq_u32 vcc, -1, {vr(t)}
s_cbranch_vccz {Dn}
s_sub_u32 s{sTO}, s{sTO}, 1
s_cmp_lg_u32 s{sTO}, 0
s_cbranch_scc1 {L}
s_branch .Lexit
{Dn}:''')
        self.stamp(15)
        for m in ('quad_perm:[1,0,3,2]', 'quad_perm:[2,3,0,1]', 'row_half_mirror'):
            for r in range(4):
                p(f'v_add_f32_dpp {vr(PB + r)}, {vr(PB + r)}, {vr(PB + r)} {m} row_mask:0xf bank_mask:0xf')
        for r in range(2):
            s, q = PB + 2 * r, PB + 2 * r + 1
            p(f'''v_mul_f32 {vr(s)}, {hx(1.0 / 896)}, {vr(s)}
v_mul_f32 {vr(t + r)}, {vr(s)}, {vr(s)}
v_sub_f32 {vr(t + r)}, {hx(1e-5)}, {vr(t + r)}
v_fmac_f32 {vr(t + r)}, {hx(1.0 / 896)}, {vr(q)}
v_max_f32 {vr(t + r)}, {hx(1e-5)}, {vr(t + r)}
v_rsq_f32 {vr(q)}, {vr(t + r)}''')
        for r in range(2):
            s, q = PB + 2 * r, PB + 2 * r + 1
            p(f'v_mul_f32 {vr(s)}, {vr(s)}, {vr(q)}')
            p(f'v_sub_f32 {vr(s)}, 0, {vr(s)}')
        RA, RB = G, G + 4
        for r in range(4):
            p(f'v_mov_b32 {vr(RA + r)}, {vr(PB + 2 * (r % 2) + 1)}')
            p(f'v_mov_b32 {vr(RB + r)}, {vr(PB + 2 * (r % 2))}')
        for r in range(4):
            bm = '0xc' if r < 2 else '0x3'
            p(f'v_mov_b32_dpp {vr(RA + r)}, {vr(PB + 2 * (r % 2) + 1)} row_ror:8 row_mask:0xf bank_mask:{bm}')
            p(f'v_mov_b32_dpp {vr(RB + r)}, {vr(PB + 2 * (r % 2))} row_ror:8 row_mask:0xf bank_mask:{bm}')
        p(f'''s_lshl_b32 s{sT0}, s{sJ}, 6
s_lshr_b32 s{sT3}, s{sRT}, 1
s_add_u32 s{sT0}, s{sT0}, s{sT3}
s_mul_i32 s{sT0}, s{sT0}, 7168
s_and_b32 s{sT3}, s{sW}, 1
s_lshl_b32 s{sT3}, s{sT3}, 9
s_add_u32 s{sT0}, s{sT0}, s{sT3}
s_add_u32 s{sT0}, s{sT0}, {ZF}
s_add_u32 s{sT3}, s{sT0}, 4096
v_and_b32 {vr(vA)}, 1, {vr(vQ)}
v_cmp_ne_u32 vcc, 0, {vr(vA)}
v_lshlrev_b32 {vr(vZ)}, 10, {vr(vA)}
v_lshrrev_b32 {vr(vA)}, 1, {vr(vQ)}
v_lshl_add_u32 {vr(vZ)}, {vr(vA)}, 8, {vr(vZ)}
v_lshl_add_u32 {vr(vZ)}, {vr(vC)}, 4, {vr(vZ)}
v_mov_b32 {vr(vZo)}, {OOR}
v_cndmask_b32 {vr(vZo)}, {vr(vZ)}, {vr(vZo)}, vcc''')
        D = RING
        for a in range(4):
            d = D + 4 * a
            for e in range(2):
                ct = 2 * a + e
                if ct < 7:
                    for h in range(2):
                        z = Z2 + 4 * ct + 2 * h
                        p(f'v_pk_fma_f32 {vr(z, 2)}, {vr(z, 2)}, {vr(RA + 2 * h, 2)}, {vr(RB + 2 * h, 2)}')
                    for h in range(2):
                        z = Z2 + 4 * ct + 2 * h
                        p(f'v_cvt_pk_bf16_f32 {vr(d + 2 * e + h)}, {vr(z)}, {vr(z + 1)}')
            p(f'v_permlane16_swap_b32 {vr(d)}, {vr(d + 2)}')
            p(f'v_permlane16_swap_b32 {vr(d + 1)}, {vr(d + 3)}')
            p(f'buffer_store_dwordx4 {vr(d, 4)}, {vr(vZ if a < 3 else vZo)}, {srd(sWS)}, s{sT0 if a < 2 else sT3} offen'
              f'{off((a % 2) * 2048)} sc1', tokw=['st5'])
        p(f'''s_lshl_b32 s{sT0}, s{sJ}, 2
s_add_u32 s{sT0}, s{sT0}, s{sRQ}
s_lshl_b32 s{sT0}, s{sT0}, 9
s_add_u32 s{sT0}, s{sT0}, {CNT + C_S5 * 128}
v_lshlrev_b32 {vr(vA)}, 7, {vr(vL)}
v_add_u32 {vr(vA)}, s{sT0}, {vr(vA)}''')
        p.need('st5')
        p('s_barrier')
        Ls = p.label('noarr')
        p(f's_cmp_lg_u32 s{sW}, 0\ns_cbranch_scc1 {Ls}')
        self.arrive(vA, 15)
        p(f'{Ls}:')
        self.stamp(16)
        d = self.dma_wu(8, 9, 84 * K, 'wub')
        g = self.gelu(list(range(Z1, Z1 + 28)), G, lambda n: f'{vr(NA, 2)} op_sel_hi:[1,0]')
        p.add(interleave(g, [list(x) for x in d], per=len(d) / float(len(g)) + 0.01))
        for k in range(14):
            p(f'v_cvt_pk_bf16_f32 {vr(vZ1 + k)}, {vr(Z1 + 2 * k)}, {vr(Z1 + 2 * k + 1)}')

    def phase5(self):
        p = self.p
        ZB, ACC = 16, 100
        vA, vW0, vY, vYo = 7, 8, 11, 12
        t = 14
        K = 1024
        acc = lambda a, ct: ACC + (a * 7 + ct) * 4
        zb = lambda ks, ct: ZB + ((ks % 3) * 7 + ct) * 4
        p(f'''s_lshl_b32 s{sT0}, s{sJ}, 2
s_add_u32 s{sT0}, s{sT0}, s{sW}
s_lshl_b32 s{sT0}, s{sT0}, 2
s_add_u32 s{sT0}, s{sT0}, s{sRQ}
s_lshl_b32 s{sT0}, s{sT0}, 7
s_add_u32 s{sT0}, s{sT0}, {CNT + C_S5 * 128}
v_mov_b32 {vr(vA)}, s{sT0}
s_lshl_b32 s{sT0}, s{sJ}, 2
s_add_u32 s{sT0}, s{sT0}, s{sW}
s_mul_i32 s{sT0}, s{sT0}, {16 * 7168}
s_add_u32 s{sA2}, s{sT0}, {ZF}
s_mul_i32 s{sA3}, s{sK2 + 1}, {7168 * 4 // 256}
s_add_u32 s{sA0}, s{sA2}, s{sA3}
s_add_u32 s{sA1}, s{sA0}, 4096
s_and_b32 s{sT0}, s{sI}, 7
s_lshl_b32 s{sT0}, s{sT0}, 7
s_add_u32 s{sT0}, s{sT0}, s{sA0}
s_add_u32 s{sK1}, s{sWS}, s{sT0}
s_addc_u32 s{sK1 + 1}, s{sWS + 1}, 0''')
        for a in range(3):
            p(f'''s_add_u32 s{sT0}, s{sW}, {1 + a}
s_and_b32 s{sT0}, s{sT0}, 3
s_mul_i32 s{sT0}, s{sT0}, {3 * 7168}
s_add_u32 s{sT0}, s{sT0}, {a * 7168}
v_add_u32 {vr(vW0 + a)}, s{sT0}, {vr(vL16)}''')
        self.stamp(17)
        self.poll(vA, 8)
        self.stamp(18)

        def zl(ks, ct):
            o = []
            if ct == 0 and ks:
                o += [f's_add_u32 s{sA3}, s{sA3}, 7168']
                if ks % 4 == 0:
                    o += [f's_cmp_eq_u32 s{sA3}, {16 * 7168}', f's_cselect_b32 s{sA3}, 0, s{sA3}']
                o += [f's_add_u32 s{sA0}, s{sA2}, s{sA3}']
            if ct == 4 and ks:
                o += [f's_add_u32 s{sA1}, s{sA0}, 4096']
            o.append(f'buffer_load_dwordx4 {vr(zb(ks, ct), 4)}, {vr(vL16)}, {srd(sWS)}, s{sA0 if ct < 4 else sA1} offen'
                     f'{off((ct % 4) * K)} sc1')
            return o
        for ks in range(3):
            for ct in range(7):
                p.add(zl(ks, ct))
        mm = lambda a, ks, ct: mf16(acc(a, ct), vr(zb(ks, ct), 4), ar((a * 16 + ks) * 4, 4),
                                    None if ks == 0 else acc(a, ct))
        PF = 6
        if self.c.spf:
            for ks in range(3, PF):
                for ct in range(7):
                    p(f's_load_dword s100, {sp(sK1)}, {ks * 7168 + ct * 1024} ; nodst')
        for ks in range(13):
            if self.c.fine == 5 and ks % 2 == 1:
                self.stamp(24 + ks // 2)
            for ct in range(7):
                for a in range(4):
                    p(mm(a, ks, ct))
                    if a == 1 and self.c.spf and ks + PF < 16:
                        p(f's_load_dword s100, {sp(sK1)}, {(ks + PF) * 7168 + ct * 1024} ; nodst')
                p.add(zl(ks + 3, ct))
        if self.c.spf:
            p('s_waitcnt lgkmcnt(0)')
        for a in range(4):
            w = []
            if a:
                w = [(f'ds_write_b128 {vr(vW0 + a - 1)}, {vr(acc(a - 1, ct), 4)}{off(ct * K)}', ['pw'])
                     for ct in range(7)]
            n = 0
            for ks in (13, 14, 15):
                for ct in range(7):
                    p(mm(a, ks, ct))
                    n += 1
                    if w and n >= 2 and (n % 3) == 2:
                        p.add(w.pop(0))
            p.add(w)
        self.stamp(19)
        p(f's_mul_i32 s{sT0}, s{sW}, {3 * 7168}\nv_add_u32 {vr(vW0)}, s{sT0}, {vr(vL16)}')
        p(f'''s_mul_i32 s{sT0}, s{sRT}, 28672
s_mul_i32 s{sT1}, s{sJ}, {14 * 256}
s_add_u32 s{sT0}, s{sT0}, s{sT1}
s_add_u32 s{sT0}, s{sT0}, {YF}
v_and_b32 {vr(vA)}, 1, {vr(vQ)}
v_cmp_ne_u32 vcc, 0, {vr(vA)}
v_lshrrev_b32 {vr(vA)}, 1, {vr(vQ)}
v_lshlrev_b32 {vr(vYo)}, 8, {vr(vA)}
v_lshl_add_u32 {vr(vYo)}, {vr(vC)}, 4, {vr(vYo)}
v_mov_b32 {vr(vA)}, {OOR}
v_cndmask_b32 {vr(vYo)}, {vr(vYo)}, {vr(vA)}, vcc
v_lshlrev_b32 {vr(vBS)}, 16, {vr(vBS)}
v_mov_b32 {vr(t)}, {vr(vBS)}
v_mov_b32 {vr(t + 1)}, {vr(vBS)}''')
        p.need('pw', 'wua', 'wub')
        p('s_barrier')
        for a in range(3):
            for ct in range(7):
                p(f'ds_read_b128 {vr(ZB + (a * 7 + ct) * 4, 4)}, {vr(vW0)}{off((a * 7 + ct) * K)}', tokw=['pr'])
        G = acc(3, 0)
        for k in range(14):
            p(f'v_pk_add_f32 {vr(G + 2 * k, 2)}, {vr(G + 2 * k, 2)}, {vr(t, 2)}')
        for a in range(3):
            for k in range(14):
                p(f'v_pk_add_f32 {vr(G + 2 * k, 2)}, {vr(G + 2 * k, 2)}, {vr(ZB + a * 28 + 2 * k, 2)}')
        D = ACC
        for k in range(14):
            u = ZB + 2 * (k % 4)
            p(f'''v_lshlrev_b32 {vr(u)}, 16, {vr(vZ1 + k)}
v_and_b32 {vr(u + 1)}, 0xffff0000, {vr(vZ1 + k)}
v_pk_mul_f32 {vr(G + 2 * k, 2)}, {vr(G + 2 * k, 2)}, {vr(u, 2)}
v_cvt_pk_bf16_f32 {vr(D + k)}, {vr(G + 2 * k)}, {vr(G + 2 * k + 1)}''')
            if k % 4 == 3:
                a = k // 4
                p(f'buffer_store_dwordx4 {vr(D + 4 * a, 4)}, {vr(vL16)}, {srd(sWS)}, s{sT0} offen{off(1024 * a)} sc1',
                  tokw=['st6'])
        p(f'''v_mov_b32 {vr(D + 14)}, {vr(D + 12)}
v_mov_b32 {vr(D + 15)}, {vr(D + 13)}
v_permlane16_swap_b32 {vr(D + 12)}, {vr(D + 14)}
v_permlane16_swap_b32 {vr(D + 13)}, {vr(D + 15)}''')
        p(f'buffer_store_dwordx4 {vr(D + 12, 4)}, {vr(vYo)}, {srd(sWS)}, s{sT0} offen offset:3072 sc1', tokw=['st6'])
        p(f'''s_lshl_b32 s{sT0}, s{sRT}, 8
s_add_u32 s{sT0}, s{sT0}, {CNT + C_S6 * 128}
v_lshlrev_b32 {vr(vA)}, 7, {vr(vL)}
v_add_u32 {vr(vA)}, s{sT0}, {vr(vA)}''')
        p.need('st6')
        self.arrive(vA, 3)
        self.stamp(20)
        p.need('pr')
        p('s_barrier')

    def phase6(self):
        p = self.p
        YB, RING, ACC = 16, 128, 160
        vA, vO, vOo, t = 7, 8, 9, 10
        K = 1024

        def wuaddr(ks, ct):
            if ks < 8:
                return 120 * K + (ks * 4 + ct) * K
            if ks < 17:
                return 84 * K + ((ks - 8) * 4 + ct) * K
            return ((ks - 17) * 4 + ct) * K
        p(f's_mul_i32 s{sT2}, s{sJ}, {112 * K}\ns_add_u32 s{sT2}, s{sT2}, {WUF}')
        self.emit_groups(self.dma_wu(17, 11, 0, 'wuc'))
        p(f'''s_lshl_b32 s{sT0}, s{sRT}, 1
s_add_u32 s{sT0}, s{sT0}, s{sCH}
s_lshl_b32 s{sT0}, s{sT0}, 7
s_add_u32 s{sT0}, s{sT0}, {CNT + C_S6 * 128}
v_mov_b32 {vr(vA)}, s{sT0}
s_mul_i32 s{sT0}, s{sRT}, 28672
s_add_u32 s{sT0}, s{sT0}, {YF}
s_mul_i32 s{sT1}, s{sRT}, {16 * 896}
s_mul_i32 s{sT3}, s{sJ}, 112
s_add_u32 s{sT1}, s{sT1}, s{sT3}
v_mul_u32_u24 {vr(vO)}, 896, {vr(vC)}
v_lshl_add_u32 {vr(vO)}, {vr(vQ)}, 4, {vr(vO)}
v_cmp_eq_u32 vcc, 3, {vr(vQ)}
v_mov_b32 {vr(vOo)}, {OOR}
v_cndmask_b32 {vr(vOo)}, {vr(vO)}, {vr(vOo)}, vcc''')
        for g in range(4):
            p(f's_add_u32 s{sT2}, s{sJ}, {g}' if self.c.rot36 else f's_mov_b32 s{sT2}, {g}')
            p(f's_and_b32 s{sT2}, s{sT2}, 3\ns_mul_i32 s{sT2}, s{sT2}, 7168\ns_add_u32 s{88 + 2 * g}, s{sT2}, s{sT0}')
            p(f's_add_u32 s{89 + 2 * g}, s{88 + 2 * g}, 4096')
        p.need('wuc')
        p('s_barrier')
        self.poll(vA, 8)
        self.stamp(21)

        def yld(ks):
            g, r = ks // 7, ks % 7
            return f'buffer_load_dwordx4 {vr(YB + 4 * ks, 4)}, {vr(vL16)}, {srd(sWS)}, s{88 + 2 * g + r // 4} offen' \
                   f'{off((r % 4) * K)} sc1'
        for ks in range(10):
            p(yld(ks))
        self.gemm_lds(28, 4, wuaddr, lambda ks: vr(YB + 4 * ks, 4), lambda ct: ACC + 4 * ct, RING, 8, True,
                      side={4 * ks: [yld(ks + 10)] for ks in range(18)})
        self.stamp(22)
        for k in range(8):
            x = vXR + k
            a = ACC + 2 * k
            p(f'''v_lshlrev_b32 {vr(t)}, 16, {vr(x)}
v_and_b32 {vr(t + 1)}, 0xffff0000, {vr(x)}
v_pk_add_f32 {vr(a, 2)}, {vr(a, 2)}, {vr(t, 2)}
v_cvt_pk_bf16_f32 {vr(x)}, {vr(a)}, {vr(a + 1)}''')
            if k == 3:
                p(f'buffer_store_dwordx4 {vr(vXR, 4)}, {vr(vO)}, {srd(sOUT)}, s{sT1} offen {self.c.outsc}')
        p(f'buffer_store_dwordx4 {vr(vXR + 4, 4)}, {vr(vOo)}, {srd(sOUT)}, s{sT1} offen offset:64 {self.c.outsc}')

    def build(self):
        p = self.p
        c = self.c
        self.truemax = None
        self.prologue()
        self.phase1()
        self.spare()
        self.attention()
        for n, ph in ((3, self.phase3), (4, self.phase4), (5, self.phase5), (6, self.phase6)):
            if c.stop >= n and c.stop > 1:
                ph()
        if c.stop >= 6:
            Lz = p.label('nz')
            p(f's_cmp_lg_u32 s2, 224\ns_cbranch_scc1 {Lz}\ns_cmp_lg_u32 s{sW}, 0\ns_cbranch_scc1 {Lz}')
            p(f'v_mov_b32 {vr(vT)}, 0\ns_mov_b64 exec, 1')
            p(f'buffer_store_dword {vr(vT)}, {vr(vT)}, {srd(sDBG)}, 0 offen sc1\ns_mov_b64 exec, -1')
            p(f'{Lz}:')
        p('.Lexit:')
        if c.probe >= 0:
            p('s_waitcnt vmcnt(0)')
            self.stamp(23)
            p(f'''.Lspin:
s_memrealtime {sp(sTM + 2)}
s_waitcnt lgkmcnt(0)
s_sub_u32 s{sT0}, s{sTM + 2}, s{sTM}
s_cmp_lt_u32 s{sT0}, 8000
s_cbranch_scc1 .Lspin''')
        if c.diag:
            p('s_waitcnt vmcnt(0)')
            self.stamp(23)
            p(f'''s_lshl_b32 s{sT0}, s2, 2
s_add_u32 s{sT0}, s{sT0}, s{sW}
s_lshl_b32 s{sT0}, s{sT0}, 8
s_add_u32 s{sT0}, s{sT0}, {STAMP}
v_lshlrev_b32 {vr(vT)}, 2, {vr(vL)}
buffer_store_dword {vr(vST)}, {vr(vT)}, {srd(sWS)}, s{sT0} offen''')
        p('s_endpgm')
        if self.truemax:
            self.truemax()
        p('.Lend:')
        p('s_endpgm')
        p.insert_waits()
        nn = p.insert_nops()
        hdr = open('sequential_preLN__softmax_full_mha__mixer_gmlp__prompt.s.ref').read()
        hdr = hdr[:hdr.index('; Override launch')]
        txt = hdr + '; @launch grid=(256,1,1) block=(256,1,1) lds=163840\n'
        txt += f'''.amdgcn_target "amdgcn-amd-amdhsa--gfx950"
.text
.globl {NAME}
.p2align 8
.type {NAME},@function
{NAME}:
'''
        txt += p.text()
        txt += f'''.section .rodata,"a"
.p2align 6
.amdhsa_kernel {NAME}
  .amdhsa_next_free_vgpr 512
  .amdhsa_next_free_sgpr 102
  .amdhsa_accum_offset 256
  .amdhsa_group_segment_fixed_size 0
  .amdhsa_kernarg_size 88
  .amdhsa_user_sgpr_count 2
  .amdhsa_user_sgpr_kernarg_segment_ptr 1
  .amdhsa_system_sgpr_workgroup_id_x 1
  .amdhsa_float_denorm_mode_32 3
  .amdhsa_ieee_mode 0
.end_amdhsa_kernel
'''
        return txt, nn


def generate(**kw):
    c = Cfg()
    for k, v in kw.items():
        assert hasattr(c, k), k
        setattr(c, k, v)
    return Gen(c).build()


if __name__ == '__main__':
    out = sys.argv[1]
    kw = {}
    for a in sys.argv[2:]:
        k, v = a.split('=')
        kw[k] = eval(v)
    txt, nn = generate(**kw)
    open(out, 'w').write(txt)
    print('written', out, len(txt), 'bytes; nop states inserted:', nn)
```

```python
import sys, math, struct
sys.path.insert(0, 'work')
from asmlib import *

NAME = 'sequential_preLN__softmax_full_mha__mixer_gmlp__prompt_kernel'


class Cfg:
    diag = False
    stop = 99
    force_fb = False
    touch = False
    spf = False
    probe = -1
    outsc = ''
    ntsp = ''
    nt1 = ''
    spstep = 1.7
    splag = 10
    sleep = 0
    sptouch = False
    map48 = False
    z2split = 0
    z1split = 12
    wusplit = 10
    kgat = 3
    knorm = 6
    karr = 12
    gsplit = 60
    rlate = False
    stouch = 0
    pre0 = False
    slow0 = 4.5
    hyb = False
    ka = 12
    pm = 124
    vstep = 1.35
    sched = 1
    p0 = 36
    wog = 4
    sdelay = False
    wtouch = True
    fine = 0
    rot1 = True
    rotkv = True
    rot5 = True
    rot36 = False


def f2u(x):
    return struct.unpack('<I', struct.pack('<f', x))[0]


def hx(x):
    return hex(f2u(x))


CNT = 0x000000
ST = 0x020000
QF = 0x100000
KV = 0x300000
OF = 0x700000
HF = 0x900000
ZF = 0xB00000
YF = 0xF00000
WOF = 0x1300000
WIF = 0x1400000
WUF = 0x1600000
STAMP = 0x1700000
WS_SIZE = 0x1800000
OOR = 0x7F000000

sX, sWQ, sWS, sSP, sBS, sOUT, sDBG, sWO, sWI, sWU = 8, 12, 16, 20, 24, 28, 32, 36, 40, 44
sW, sI, sJ, sQB, sHD, sXC, sIDX, sRB, sCB, sRQ, sCH = 48, 49, 50, 51, 52, 53, 54, 55, 56, 57, 58
sTO, sFB, sRT = 59, 60, 61
sT0, sT1, sT2, sT3, sT4, sT5 = 62, 63, 64, 65, 66, 67
sM0, sM1, sM2 = 68, 70, 72
sA0, sA1, sA2, sA3 = 74, 75, 76, 77
sKV, sG, sL = 78, 79, 80
sK1, sK2 = 82, 84
sPC = 86
sRB4 = 4
sRA, sRAd, sRBs, sRBd, sRBj = 94, 95, 3, 81, 101
sTM = 96

vL, vL16, vC, vQ, vA1, vA2 = 0, 1, 2, 3, 4, 5
vT = 6
vXR = 216
vBS = 224
vZ1 = 226
vONE = 225
vST = 255


def srd(n):
    return f's[{n}:{n + 3}]'


def vr(b, n=1):
    return f'v{b}' if n == 1 else f'v[{b}:{b + n - 1}]'


def ar(b, n=1):
    return f'a{b}' if n == 1 else f'a[{b}:{b + n - 1}]'


def sp(n):
    return f's[{n}:{n + 1}]'


def mf16(d, a, b, c):
    cs = '0' if c is None else vr(c, 4)
    return f'v_mfma_f32_16x16x32_bf16 {vr(d, 4)}, {a}, {b}, {cs}'


def mf32(d, a, b, c):
    cs = '0' if c is None else vr(c, 16)
    a = a if isinstance(a, str) else vr(a, 4)
    return f'v_mfma_f32_32x32x16_bf16 {vr(d, 16)}, {a}, {vr(b, 4)}, {cs}'


def off(o):
    return f' offset:{o}' if o else ''


def lds_rd(dst, byte):
    base = (vL16, vA1, vA2)[byte >> 16]
    return f'ds_read_b128 {vr(dst, 4)}, {vr(base)}{off(byte & 0xffff)}'


class Gen:
    def __init__(self, cfg):
        self.c = cfg
        self.p = Prog()
        self.nstamp = 0
        self.NR, self.NC = (1, 8) if cfg.map48 else (2, 4)
        self.LR, self.LC = self.NR.bit_length() - 1, self.NC.bit_length() - 1
        self.C_S2 = 224
        self.C_S3 = self.C_S2 + 64 * self.NR
        self.C_S6 = self.C_S3 + 128 * self.NR
        self.C_S5 = self.C_S6 + 128 * self.NR
        self.C_RDY = self.C_S5 + 32 * self.NC
        assert self.C_RDY + 8 * self.NC <= 1024

    def stamp(self, n):
        if self.c.probe == n:
            self.p(f's_memrealtime {sp(sTM)}\ns_waitcnt lgkmcnt(0)')
        if self.c.diag:
            self.p(f's_memrealtime {sp(sTM)}\ns_memtime {sp(sTM + 2)}\ns_waitcnt lgkmcnt(0)\n'
                   f'v_writelane_b32 {vr(vST)}, s{sTM}, {n}\nv_writelane_b32 {vr(vST)}, s{sTM + 2}, {32 + n}')

    def finish(self):
        self.p('s_branch .Lexit')

    def poll(self, vaddr, expect, srdn=sWS, vtmp=vT):
        p = self.p
        L = p.label('poll')
        D = p.label('got')
        p(f'{L}:')
        p(f'buffer_load_dword {vr(vtmp)}, {vr(vaddr)}, {srd(srdn)}, 0 offen sc1')
        p(f'v_cmp_gt_u32 vcc, {expect}, {vr(vtmp)}')
        p(f's_cbranch_vccz {D}')
        if self.c.sleep:
            p(f's_sleep {self.c.sleep}')
        p(f's_sub_u32 s{sTO}, s{sTO}, 1\ns_cmp_lg_u32 s{sTO}, 0\ns_cbranch_scc1 {L}')
        p('s_branch .Lexit')
        p(f'{D}:')

    def check(self, vval, vaddr, expect, srdn=sWS):
        p = self.p
        D = p.label('ok')
        p(f'v_cmp_gt_u32 vcc, {expect}, {vr(vval)}')
        p(f's_cbranch_vccz {D}')
        self.poll(vaddr, expect, srdn, vval)
        p(f'{D}:')

    def arrive(self, vaddr, mask):
        p = self.p
        p(f's_mov_b64 exec, {mask}')
        p(f'buffer_atomic_add {vr(vONE)}, {vr(vaddr)}, {srd(sWS)}, 0 offen sc1')
        p('s_mov_b64 exec, -1')

    def dma_list(self, gsreg, gofs, ldsofs, nfrag, tok):
        k = (nfrag + 3) // 4
        out = []
        pre = [f's_mul_i32 s{sT5}, s{sW}, {k * 1024}',
               f's_min_u32 s{sT5}, s{sT5}, {(nfrag - k) * 1024}',
               f's_add_u32 s{sG}, s{gsreg}, s{sT5}',
               f's_add_u32 s{sL}, s{sT5}, {ldsofs}',
               f's_add_u32 s{sG}, s{sG}, {gofs}']
        out.append(pre)
        for n in range(k):
            g = []
            if n % 4 == 0:
                if n:
                    g += [f's_add_u32 s{sG}, s{sG}, 4096', f's_add_u32 s{sL}, s{sL}, 4096']
                g.append(f's_mov_b32 m0, s{sL}')
                out.append(g)
            out.append([(f'buffer_load_dwordx4 {vr(vL16)}, {srd(sWS)}, s{sG} offen{off((n % 4) * 1024)} sc1 lds',
                         [tok])])
        return out

    def dma_wu(self, n0, cnt, ldsofs, tok):
        k = (cnt + 3) // 4
        out = [[f's_mul_i32 s{sT5}, s{sW}, {k}', f's_min_u32 s{sT5}, s{sT5}, {cnt - k}'],
               [f's_lshl_b32 s{sL}, s{sT5}, 12', f's_add_u32 s{sL}, s{sL}, {ldsofs}'],
               [f's_and_b32 s{sG}, s{sJ}, 3' if self.c.rot36 else f's_mov_b32 s{sG}, 0', f's_mul_i32 s{sG}, s{sG}, 7'],
               [f's_add_u32 s{sT5}, s{sT5}, s{sG}', f's_add_u32 s{sT5}, s{sT5}, {n0}']]
        for n in range(k):
            g = []
            if n:
                g += [f's_add_u32 s{sT5}, s{sT5}, 1', f's_add_u32 s{sL}, s{sL}, 4096']
            g += [f's_sub_u32 s{sG}, s{sT5}, 28', f's_cmp_ge_u32 s{sT5}, 28', f's_cselect_b32 s{sG}, s{sG}, s{sT5}']
            out.append(g)
            out.append([f's_lshl_b32 s{sG}, s{sG}, 12', f's_add_u32 s{sG}, s{sG}, s{sT2}', f's_mov_b32 m0, s{sL}'])
            for e in range(4):
                out.append([(f'buffer_load_dwordx4 {vr(vL16)}, {srd(sWS)}, s{sG} offen{off(e * 1024)} sc1 lds', [tok])])
        return out

    def emit_groups(self, groups):
        for g in groups:
            self.p.add(list(g))

    def prologue(self):
        p = self.p
        if self.c.probe == 100:
            p(f's_memrealtime {sp(sTM)}')
        p(f's_getpc_b64 {sp(sPC)}')
        p('.Lpc0:')
        p('s_cmp_ge_u32 s2, 256\ns_cbranch_scc1 .Lend')
        for reg, slot in ((sX, 0), (sWQ, 1), (sWS, 10), (sWO, 2), (sWI, 4), (sSP, 5), (sBS, 6), (sWU, 7), (sOUT, 8),
                          (sDBG, 9)):
            p(f's_load_dwordx2 {sp(reg)}, s[0:1], {slot * 8}')
        p(f'v_lshrrev_b32 {vr(vT)}, 6, v0')
        p(f'v_and_b32 {vr(vL)}, 63, v0')
        p(f'v_readfirstlane_b32 s{sW}, {vr(vT)}')
        for reg, size in ((sX, 1835008), (sWQ, 1204224), (sWS, WS_SIZE), (sWO, 401408), (sWI, 1605632),
                          (sSP, 8388608 + 4096), (sBS, 4096), (sWU, 802816), (sOUT, 1835008), (sDBG, 256)):
            p(f's_mov_b32 s{reg + 2}, {size}\ns_mov_b32 s{reg + 3}, 0x20000')
        p(f'''v_lshlrev_b32 {vr(vL16)}, 4, {vr(vL)}
v_and_b32 {vr(vC)}, 15, {vr(vL)}
v_lshrrev_b32 {vr(vQ)}, 4, {vr(vL)}
v_add_u32 {vr(vA1)}, 0x10000, {vr(vL16)}
v_add_u32 {vr(vA2)}, 0x20000, {vr(vL16)}
v_mov_b32 {vr(vONE)}, 1
s_and_b32 s{sXC}, s2, 7
s_lshr_b32 s{sIDX}, s2, 3
s_lshr_b32 s{sRQ}, s{sXC}, 1
s_and_b32 s{sCH}, s{sXC}, 1
s_mov_b32 s{sTO}, 30000
s_mov_b32 s{sFB}, 0''')
        if self.c.map48:
            p(f'''s_lshr_b32 s{sT0}, s{sIDX}, 3
s_lshl_b32 s{sI}, s{sXC}, 2
s_add_u32 s{sI}, s{sI}, s{sT0}
s_and_b32 s{sJ}, s{sIDX}, 7
s_mov_b32 s{sRQ}, s{sXC}
s_mov_b32 s{sCH}, 0''')
        else:
            p(f'''s_lshr_b32 s{sT0}, s{sIDX}, 2
s_lshl_b32 s{sI}, s{sRQ}, 3
s_add_u32 s{sI}, s{sI}, s{sT0}
s_and_b32 s{sT0}, s{sIDX}, 3
s_lshl_b32 s{sJ}, s{sCH}, 2
s_add_u32 s{sJ}, s{sJ}, s{sT0}''')
        p(f'''s_lshl_b32 s{sRT}, s{sI}, 2
s_add_u32 s{sRT}, s{sRT}, s{sW}''')
        p(f'''s_and_b32 s{sT0}, s{sIDX}, 1
s_lshl_b32 s{sHD}, s{sXC}, 1
s_add_u32 s{sHD}, s{sHD}, s{sT0}
s_lshr_b32 s{sQB}, s{sIDX}, 1''')
        p(f'''s_mul_i32 s{sT0}, s{sIDX}, 37
s_lshr_b32 s{sT0}, s{sT0}, 8
s_mul_i32 s{sT1}, s{sT0}, 7
s_sub_u32 s{sCB}, s{sIDX}, s{sT1}
s_lshl_b32 s{sRB}, s{sXC}, 2
s_add_u32 s{sRB}, s{sRB}, s{sT0}''')
        if self.c.diag:
            p(f'v_mov_b32 {vr(vST)}, 0')
        if 0 <= self.c.probe < 100:
            p(f's_memrealtime {sp(sTM)}')
        p('s_waitcnt lgkmcnt(0)')
        p(f's_sub_u32 s{sSP}, s{sSP}, 4096\ns_subb_u32 s{sSP + 1}, s{sSP + 1}, 0')
        self.stamp(0)
        if self.c.touch:
            p(f'''s_lshl_b32 s{sT0}, s{sIDX}, 2
s_add_u32 s{sT0}, s{sT0}, s{sW}
s_mul_i32 s{sT1}, s{sT0}, {74 * 128}
s_mul_i32 s{sT2}, s{sT0}, {14 * 128}
s_mul_i32 s{sT3}, s{sXC}, {256 * 896}
s_add_u32 s{sT2}, s{sT2}, s{sT3}
s_add_u32 s{sT3}, s{sT1}, 8192
v_lshlrev_b32 {vr(vT)}, 7, {vr(vL)}
s_mov_b64 exec, 0x3fff
buffer_load_dword v252, {vr(vT)}, {srd(sX)}, s{sT2} offen
s_mov_b64 exec, -1
buffer_load_dword v253, {vr(vT)}, {srd(sWQ)}, s{sT1} offen
s_mov_b64 exec, 0x3ff
buffer_load_dword v254, {vr(vT)}, {srd(sWQ)}, s{sT3} offen
s_mov_b64 exec, -1''')
        p(f's_cmp_ge_u32 s{sIDX}, 28\ns_cbranch_scc1 .Lspare')

    RST = 106 * 1024
    vRI, vRB, vRT0, vRT1, vRD2, vRD = 240, 241, 252, 253, 238, 152

    def r_setup(self):
        p = self.p
        t = 6
        vI, vB, R0, R1, D2 = self.vRI, self.vRB, self.vRT0, self.vRT1, self.vRD2
        p(f"""s_cmp_ge_u32 s{sRT}, 56
s_cselect_b32 s{sT0}, 1, 0
s_mul_i32 s{sT1}, s{sT0}, 56
s_sub_u32 s{sT1}, s{sRT}, s{sT1}
s_lshr_b32 s{sT1}, s{sT1}, 2
s_and_b32 s{sT2}, s{sRT}, 3
s_mul_i32 s{sRA}, s{sT1}, {32 * 3584}
s_mul_i32 s{sT3}, s{sJ}, 224
s_add_u32 s{sRA}, s{sRA}, s{sT3}
s_lshl_b32 s{sT3}, s{sT2}, 6
s_add_u32 s{sRA}, s{sRA}, s{sT3}
s_xor_b32 s{sT3}, s{sT0}, 1
s_mul_i32 s{sT3}, s{sT3}, 1792
s_add_u32 s{sRA}, s{sRA}, s{sT3}
s_lshl_b32 s{sRAd}, s{sJ}, 1
s_add_u32 s{sRAd}, s{sRAd}, s{sT0}
s_mul_i32 s{sRAd}, s{sRAd}, 105
s_mul_i32 s{sT3}, s{sT1}, 7
s_add_u32 s{sRAd}, s{sRAd}, s{sT3}
s_lshl_b32 s{sT3}, s{sT2}, 1
s_add_u32 s{sRAd}, s{sRAd}, s{sT3}
s_lshl_b32 s{sRAd}, s{sRAd}, 10
s_add_u32 s{sRAd}, s{sRAd}, {WIF}
s_cmp_ge_u32 s{sRT}, 112
s_cselect_b32 s{sRA}, {OOR}, s{sRA}
s_cselect_b32 s{sRAd}, {OOR}, s{sRAd}
s_cmp_eq_u32 s{sT2}, 3
s_cselect_b64 vcc, -1, 0
s_mul_i32 s{sT4}, s{sW}, 12288
s_add_u32 s{sT4}, s{sT4}, {self.RST}
v_and_b32 {vr(t + 1)}, 3, {vr(vC)}
v_add_u32 {vr(R0)}, s{sT4}, {vr(vL16)}
v_and_b32 {vr(t)}, 60, {vr(vL)}
v_lshrrev_b32 {vr(R1)}, 1, {vr(t + 1)}
v_add_u32 {vr(t)}, {vr(t)}, {vr(R1)}
v_lshlrev_b32 {vr(t)}, 4, {vr(t)}
v_and_b32 {vr(R1)}, 1, {vr(t + 1)}
v_lshl_add_u32 {vr(t)}, {vr(R1)}, 3, {vr(t)}
v_add_u32 {vr(t)}, s{sT4}, {vr(t)}
v_mov_b32 {vr(D2)}, {OOR}
v_cndmask_b32 {vr(R1)}, {vr(R0)}, {vr(t)}, vcc
v_cndmask_b32 {vr(D2)}, {vr(vL16)}, {vr(D2)}, vcc
v_lshrrev_b32 {vr(t + 2)}, 2, {vr(vC)}
v_lshl_add_u32 {vr(t)}, {vr(vQ)}, 3, {vr(t + 2)}
v_mul_u32_u24 {vr(vI)}, 3584, {vr(t)}
v_lshl_add_u32 {vr(vI)}, {vr(t + 1)}, 4, {vr(vI)}
v_lshrrev_b32 {vr(vB)}, 1, {vr(vQ)}
v_lshlrev_b32 {vr(vB)}, 4, {vr(vB)}
v_and_b32 {vr(t + 3)}, 1, {vr(vQ)}
v_lshl_add_u32 {vr(vB)}, {vr(t + 3)}, 2, {vr(vB)}
v_add_u32 {vr(vB)}, {vr(vB)}, {vr(t + 2)}""")
        p(f"""s_mov_b32 s{sRBj}, {4 * 896}
s_mov_b32 s{sT1}, {32 * 896}
s_mov_b32 s{sT3}, {WUF}
s_cmp_ge_u32 s{sRT}, 96
s_cselect_b64 vcc, -1, 0
s_cselect_b64 {sp(sRB4)}, {sp(sWO)}, {sp(sWU)}
s_cselect_b32 s{sRB4 + 2}, s{sWO + 2}, s{sWU + 2}
s_cselect_b32 s{sRBj}, {8 * 896}, s{sRBj}
s_cselect_b32 s{sT0}, 96, 0
s_cselect_b32 s{sT1}, {28 * 896}, s{sT1}
s_cselect_b32 s{sT2}, 16, 28
s_cselect_b32 s{sT3}, {WOF}, s{sT3}
s_mov_b32 s{sRB4 + 3}, 0x20000
s_sub_u32 s{sT0}, s{sRT}, s{sT0}
s_lshr_b32 s{sT0}, s{sT0}, 1
s_mul_i32 s{sRBs}, s{sT0}, s{sT1}
s_mul_i32 s{sT1}, s{sJ}, 112
s_add_u32 s{sRBs}, s{sRBs}, s{sT1}
s_and_b32 s{sT1}, s{sRT}, 1
s_lshl_b32 s{sT4}, s{sT1}, 6
s_add_u32 s{sRBs}, s{sRBs}, s{sT4}
s_mul_i32 s{sRBd}, s{sJ}, s{sT2}
s_add_u32 s{sRBd}, s{sRBd}, s{sT0}
s_lshl_b32 s{sRBd}, s{sRBd}, 1
s_add_u32 s{sRBd}, s{sRBd}, s{sT1}
s_lshl_b32 s{sRBd}, s{sRBd}, 11
s_add_u32 s{sRBd}, s{sRBd}, s{sT3}
s_sub_u32 s{sT0}, s{sRT}, 56
s_cmp_lt_u32 s{sT0}, 40
s_cselect_b32 s{sRBs}, {OOR}, s{sRBs}
s_cselect_b32 s{sRBd}, {OOR}, s{sRBd}
v_cndmask_b32 {vr(vB)}, {vr(t)}, {vr(vB)}, vcc
v_mul_u32_u24 {vr(vB)}, 896, {vr(vB)}
v_lshl_add_u32 {vr(vB)}, {vr(t + 1)}, 4, {vr(vB)}""")

    def r_issue(self):
        o = [[f's_mul_i32 s{sL}, s{sW}, 12288', f's_add_u32 m0, s{sL}, {self.RST}'],
             [(f'buffer_load_dwordx4 {vr(self.vRI)}, {srd(sWI)}, s{sRA} offen lds', ['rl'])],
             [f's_add_u32 s{sG}, s{sRA}, {4 * 3584 - 1024}'],
             [(f'buffer_load_dwordx4 {vr(self.vRI)}, {srd(sWI)}, s{sG} offen offset:1024 lds', ['rl'])],
             [f's_add_u32 m0, s{sL}, {self.RST + 2048}'],
             [(f'buffer_load_dwordx4 {vr(self.vRB)}, {srd(sRB4)}, s{sRBs} offen lds', ['rl'])],
             [f's_add_u32 s{sG}, s{sRBs}, s{sRBj}', f's_sub_u32 s{sG}, s{sG}, 1024'],
             [(f'buffer_load_dwordx4 {vr(self.vRB)}, {srd(sRB4)}, s{sG} offen offset:1024 lds', ['rl'])]]
        return o

    def r_finish(self):
        p = Prog()
        p.need('rl')
        for n in range(2):
            d = self.vRD + 8 * n
            for e in range(2):
                for jj in range(2):
                    base = self.vRT1 if (n == 0 and e == 0) else self.vRT0
                    p(f'ds_read_b64_tr_b16 {vr(d + 4 * e + 2 * jj, 2)}, {vr(base)}{off(n * 2048 + jj * 1024 + 8 * e)}')
        for n in range(2):
            d = self.vRD + 8 * n
            sd = (sRAd, sRBd)[n]
            p(f'buffer_store_dwordx4 {vr(d, 4)}, {vr(vL16)}, {srd(sWS)}, s{sd} offen sc1', tokw=['rst'])
            p(f'buffer_store_dwordx4 {vr(d + 4, 4)}, {vr(self.vRD2 if n == 0 else vL16)}, {srd(sWS)}, s{sd} offen'
              f' offset:1024 sc1', tokw=['rst'])
        return p.ins

    def sp_touch(self, main):
        if not self.c.sptouch:
            return []
        v = 245
        o = [[f's_lshl_b32 s{sT5}, s{sIDX}, 2', f's_add_u32 s{sT5}, s{sT5}, s{sW}']]
        if main:
            o += [[f's_mul_i32 s{sT5}, s{sT5}, 3']]
        else:
            o += [[f's_sub_u32 s{sT5}, s{sT5}, 112', f's_mul_i32 s{sT5}, s{sT5}, 11', f's_add_u32 s{sT5}, s{sT5}, 336']]
        o += [[f's_lshl_b32 s{sG}, s{sRQ}, 9', f's_add_u32 s{sT5}, s{sT5}, s{sG}'],
              [f's_lshl_b32 s{sT5}, s{sT5}, 12', f's_lshl_b32 s{sG}, s{sCH}, 11'],
              [f's_add_u32 s{sT5}, s{sT5}, s{sG}', f's_add_u32 s{sT5}, s{sT5}, 4096'],
              [f'v_lshlrev_b32 {vr(v)}, 12, {vr(vQ)}', f'v_lshl_add_u32 {vr(v)}, {vr(vC)}, 7, {vr(v)}']]
        n = 1 if main else 3
        for k in range(n):
            last = k == n - 1
            g = ['s_mov_b32 exec_hi, 0xffff'] if last else []
            g.append(f'buffer_load_dword {vr(v + 1 + k)}, {vr(v)}, {srd(sSP)}, s{sT5} offen')
            g.append('s_mov_b32 exec_hi, -1' if last else f's_add_u32 s{sT5}, s{sT5}, {4 * 4096}')
            o.append(g)
        return o

    def sentinel_init(self):
        p = self.p
        a, d = vT, vT + 2
        p(f'''s_lshl_b32 s{sT0}, s{sRT}, 3
s_add_u32 s{sT0}, s{sT0}, s{sJ}
s_lshl_b32 s{sT0}, s{sT0}, 7
s_add_u32 s{sT0}, s{sT0}, {ST}
v_mov_b32 {vr(d)}, -1
v_mov_b32 {vr(d + 1)}, -1
v_mov_b32 {vr(d + 2)}, -1
v_mov_b32 {vr(d + 3)}, -1
s_mov_b64 exec, 0xff''')
        p(f'buffer_store_dwordx4 {vr(d, 4)}, {vr(vL16)}, {srd(sWS)}, s{sT0} offen sc1', tokw=['sent'])
        p('s_mov_b64 exec, -1')

    def ln_finish(self, sumreg, sqreg, va, t, vperm):
        return [
            f'v_cndmask_b32 {vr(t)}, {vr(sqreg)}, {vr(sqreg + 1)}, {sp(sM0)}',
            f'v_cndmask_b32 {vr(t + 1)}, {vr(sqreg + 2)}, {vr(sqreg + 3)}, {sp(sM0)}',
            f'v_cndmask_b32 {vr(t)}, {vr(t)}, {vr(t + 1)}, {sp(sM1)}',
            f'ds_bpermute_b32 {vr(t)}, {vr(vperm)}, {vr(t)}',
            f'v_mul_f32 {vr(va + 1)}, {hx(-1.0 / 448)}, {vr(sumreg)}',
            f'v_mul_f32 {vr(t + 1)}, {vr(va + 1)}, {vr(va + 1)}',
            f'v_sub_f32 {vr(t + 1)}, {hx(1e-5)}, {vr(t + 1)}',
            f'v_fmac_f32 {vr(t + 1)}, {hx(1.0 / 448)}, {vr(t)}',
            f'v_max_f32 {vr(t + 1)}, {hx(1e-5)}, {vr(t + 1)}',
            f'v_rsq_f32 {vr(va)}, {vr(t + 1)}',
        ]

    def ln_masks(self, vperm):
        p = self.p
        p(f"""v_and_b32 {vr(vT)}, 1, {vr(vC)}
v_cmp_ne_u32 {sp(sM0)}, 0, {vr(vT)}
v_and_b32 {vr(vT)}, 2, {vr(vC)}
v_cmp_ne_u32 {sp(sM1)}, 0, {vr(vT)}
v_lshrrev_b32 {vr(vT)}, 2, {vr(vC)}
v_lshl_add_u32 {vr(vT)}, {vr(vT)}, 4, {vr(vC)}
v_lshlrev_b32 {vr(vperm)}, 2, {vr(vT)}""")

    def phase1(self):
        p = self.p
        ACC, CS, SA, XF, WF, ONES = 16, 64, 76, 84, 124, 148
        acc = lambda sec, tt: ACC + (sec * 4 + tt) * 4
        xf = lambda b, tt: XF + (b * 5 + tt) * 4
        wf = lambda b, sec: WF + (b * 3 + sec) * 4
        vX0, vX1, vW0, vW1 = 152, 153, 154, 155
        rX0, rX1, rO0, rO1, rW = 156, 157, 158, 159, 160
        vPerm, vFl, t = 161, 162, 6
        CH = 32768
        STS = 156 * 1024
        p(f"""v_lshrrev_b32 {vr(t)}, 3, {vr(vL)}
v_and_b32 {vr(t + 1)}, 7, {vr(vL)}
v_xor_b32 {vr(t + 2)}, {vr(t + 1)}, {vr(vQ)}
v_mul_u32_u24 {vr(vX0)}, 896, {vr(t)}
v_xor_b32 {vr(t + 3)}, 4, {vr(t + 2)}
v_lshl_add_u32 {vr(vX1)}, {vr(t + 3)}, 4, {vr(vX0)}
v_lshl_add_u32 {vr(vX0)}, {vr(t + 2)}, 4, {vr(vX0)}
v_add_u32 {vr(vX1)}, {8 * 896 - 1024}, {vr(vX1)}
v_and_b32 {vr(t + 2)}, 1, {vr(vQ)}
v_lshlrev_b32 {vr(t + 2)}, 1, {vr(t + 2)}
v_xor_b32 {vr(t + 2)}, {vr(t + 2)}, {vr(t + 1)}
v_mul_u32_u24 {vr(vW0)}, 2688, {vr(t)}
v_xor_b32 {vr(t + 3)}, 4, {vr(t + 2)}
v_lshl_add_u32 {vr(vW1)}, {vr(t + 3)}, 4, {vr(vW0)}
v_lshl_add_u32 {vr(vW0)}, {vr(t + 2)}, 4, {vr(vW0)}
v_add_u32 {vr(vW1)}, {8 * 2688 - 1024}, {vr(vW1)}
s_lshl_b32 s{sT0}, s{sRB}, 2
s_add_u32 s{sT0}, s{sT0}, s{sW}
s_mul_i32 s{sA0}, s{sT0}, {16 * 896}
s_mul_i32 s{sA1}, s{sW}, {16 * 2688}
s_lshl_b32 s{sT0}, s{sCB}, 7
s_add_u32 s{sA1}, s{sA1}, s{sT0}
s_lshl_b32 s{sA2}, s{sW}, 11""")
        hyb = self.c.hyb and self.c.rot1
        if hyb:
            p(f"""s_and_b32 s{sT0}, s{sRB}, 3
s_mul_i32 s{sT0}, s{sT0}, 3
s_add_u32 s{sT0}, s{sT0}, 1
s_lshr_b32 s{sT0}, s{sT0}, 1
s_add_u32 s{sA3}, s{sT0}, s{sCB}
s_sub_u32 s{sT0}, s{sA3}, 6
s_cmp_ge_u32 s{sA3}, 6
s_cselect_b32 s{sA3}, s{sT0}, s{sA3}""")
        elif self.c.rot1:
            p(f"""s_and_b32 s{sA3}, s{sRB}, 3
s_lshl_b32 s{sA3}, s{sA3}, 1
s_add_u32 s{sA3}, s{sA3}, s{sCB}
s_sub_u32 s{sT0}, s{sA3}, 7
s_cmp_ge_u32 s{sA3}, 7
s_cselect_b32 s{sA3}, s{sT0}, s{sA3}""")
        else:
            p(f's_mov_b32 s{sA3}, 0')

        def chunk(m):
            base = (m % 4) * CH
            o = []
            ld = lambda v, rs, so, o_: [(f'buffer_load_dwordx4 {vr(v)}, {srd(rs)}, s{so} offen{off(o_)} lds', [f'c{m}'])]
            if m == 0 and hyb:
                o += [[f's_mov_b32 s{sT4}, s{sA0}'], [f's_mov_b32 s{sT5}, s{sA1}']]
            else:
                if m:
                    o += [[f's_add_u32 s{sA3}, s{sA3}, 1'], [f's_cmp_eq_u32 s{sA3}, 7', f's_cselect_b32 s{sA3}, {int(hyb)}, s{sA3}']]
                o += [[f's_lshl_b32 s{sT4}, s{sA3}, 7'], [f's_mul_i32 s{sT5}, s{sA3}, {64 * 2688}'],
                      [f's_add_u32 s{sT4}, s{sT4}, s{sA0}'], [f's_add_u32 s{sT5}, s{sT5}, s{sA1}']]
            o += [[f's_add_u32 m0, s{sA2}, {base}'], ld(vX0, sX, sT4, 0), ld(vX1, sX, sT4, 1024)]
            for sec in range(3):
                o += [[f's_add_u32 m0, s{sA2}, {base + 8192 * (sec + 1)}']]
                if sec:
                    o += [[f's_add_u32 s{sT5}, s{sT5}, 896']]
                o += [ld(vW0, sWQ, sT5, 0), ld(vW1, sWQ, sT5, 1024)]
            return o
        self.emit_groups(chunk(0))
        self.emit_groups(chunk(1))
        p(f"""v_lshrrev_b32 {vr(t)}, 1, {vr(vC)}
v_xor_b32 {vr(t)}, {vr(t)}, {vr(vQ)}
v_lshlrev_b32 {vr(t)}, 4, {vr(t)}
v_lshl_add_u32 {vr(rX0)}, {vr(vC)}, 7, {vr(t)}
v_xor_b32 {vr(rX1)}, 64, {vr(rX0)}
v_add_u32 {vr(rO0)}, s{sA2}, {vr(rX0)}
v_add_u32 {vr(rO1)}, s{sA2}, {vr(rX1)}
v_lshrrev_b32 {vr(t)}, 2, {vr(vC)}
v_lshl_add_u32 {vr(rW)}, {vr(vQ)}, 3, {vr(t)}
v_lshlrev_b32 {vr(rW)}, 7, {vr(rW)}
v_lshrrev_b32 {vr(t)}, 3, {vr(vC)}
v_and_b32 {vr(t + 1)}, 1, {vr(vQ)}
v_lshl_add_u32 {vr(t)}, {vr(t + 1)}, 1, {vr(t)}
v_xor_b32 {vr(t)}, s{sW}, {vr(t)}
v_lshl_add_u32 {vr(rW)}, {vr(t)}, 5, {vr(rW)}
v_and_b32 {vr(t)}, 3, {vr(vC)}
v_lshl_add_u32 {vr(rW)}, {vr(t)}, 3, {vr(rW)}""")
        for r in range(4):
            p(f'v_mov_b32 {vr(ONES + r)}, 0x3f803f80')
        self.ln_masks(vPerm)
        vP, vH, vS, vQa, vKa, vQb, vKb, vVa, vVc, vAr = 164, 165, 166, 167, 168, 169, 170, 171, 172, 173
        vVd, vK0, vK1, vSt, vSv = 176, 174, 175, 180, 181
        p(f"""s_lshl_b32 s{sT0}, s{sCB}, 2
s_add_u32 s{sKV}, s{sT0}, s{sW}
s_lshl_b32 s{sT0}, s{sKV}, 1
v_lshrrev_b32 {vr(vP)}, 1, {vr(vQ)}
v_add_u32 {vr(vP)}, s{sT0}, {vr(vP)}
v_mul_u32_u24 {vr(vH)}, 37, {vr(vP)}
v_lshrrev_b32 {vr(vH)}, 8, {vr(vH)}
v_mul_u32_u24 {vr(vS)}, 7, {vr(vH)}
v_sub_u32 {vr(vP)}, {vr(vP)}, {vr(vS)}
v_cmp_eq_u32 {sp(sM2)}, 3, {vr(vP)}
v_lshrrev_b32 {vr(vS)}, 2, {vr(vP)}
v_lshl_add_u32 {vr(vH)}, {vr(vH)}, 1, {vr(vS)}
v_and_b32 {vr(vS)}, 3, {vr(vP)}
v_lshlrev_b32 {vr(vS)}, 9, {vr(vS)}
v_lshl_add_u32 {vr(vQa)}, {vr(vH)}, 17, {vr(vS)}
v_lshl_add_u32 {vr(vKa)}, {vr(vH)}, 18, {vr(vS)}
v_and_b32 {vr(vS)}, 31, {vr(vL)}
v_lshl_add_u32 {vr(vQa)}, {vr(vS)}, 4, {vr(vQa)}
v_and_b32 {vr(vS)}, 8, {vr(vC)}
v_add_u32 {vr(vS)}, {vr(vS)}, {vr(vC)}
v_and_b32 {vr(vP)}, 1, {vr(vQ)}
v_lshl_add_u32 {vr(vS)}, {vr(vP)}, 3, {vr(vS)}
v_lshl_add_u32 {vr(vKa)}, {vr(vS)}, 4, {vr(vKa)}
v_mov_b32 {vr(vS)}, {OOR}
v_add_u32 {vr(vQb)}, 0x20000, {vr(vQa)}
v_add_u32 {vr(vKb)}, 0x40000, {vr(vKa)}
v_cndmask_b32 {vr(vQb)}, {vr(vS)}, {vr(vQb)}, {sp(sM2)}
v_cndmask_b32 {vr(vKb)}, {vr(vS)}, {vr(vKb)}, {sp(sM2)}
s_lshl_b32 s{sT0}, s{sKV}, 4
v_add_u32 {vr(vP)}, s{sT0}, {vr(vC)}
v_mul_u32_u24 {vr(vH)}, 2341, {vr(vP)}
v_lshrrev_b32 {vr(vH)}, 16, {vr(vH)}
v_mul_u32_u24 {vr(vVa)}, 28, {vr(vH)}
v_sub_u32 {vr(vP)}, {vr(vP)}, {vr(vVa)}
v_lshlrev_b32 {vr(vVa)}, 18, {vr(vH)}
v_lshl_add_u32 {vr(vVa)}, {vr(vQ)}, 9, {vr(vVa)}
v_lshl_add_u32 {vr(vVa)}, {vr(vP)}, 4, {vr(vVa)}
v_cmp_le_u32 vcc, 24, {vr(vP)}
v_add_u32 {vr(vVc)}, 64, {vr(vVa)}
v_cndmask_b32 {vr(vVc)}, {vr(vS)}, {vr(vVc)}, vcc
v_cmp_eq_u32 vcc, 24, {vr(vP)}
v_mov_b32 {vr(vK0)}, 0x3f803f80
v_mov_b32 {vr(vK1)}, 0x3f80
v_cndmask_b32 {vr(vVd)}, 0, {vr(vK0)}, vcc
v_mov_b32 {vr(vVd + 1)}, {vr(vVd)}
v_mov_b32 {vr(vVd + 2)}, {vr(vVd)}
v_mov_b32 {vr(vVd + 3)}, {vr(vVd)}
s_lshl_b32 s{sT0}, s{sKV}, 2
s_lshr_b32 s{sT1}, s{sRB}, 3
s_add_u32 s{sT0}, s{sT0}, s{sT1}
s_lshl_b32 s{sT0}, s{sT0}, 8
v_lshlrev_b32 {vr(vAr)}, 7, {vr(vL)}
v_add_u32 {vr(vAr)}, s{sT0}, {vr(vAr)}
s_lshl_b32 s{sT0}, s{sW}, 7
s_add_u32 s{sT0}, s{sT0}, {STS}
v_lshlrev_b32 {vr(vSt)}, 3, {vr(vC)}
v_add_u32 {vr(vH)}, s{sT0}, {vr(vSt)}
v_add_u32 {vr(vSt)}, {STS}, {vr(vSt)}
v_lshlrev_b32 {vr(vSv)}, 5, {vr(vQ)}
v_add_u32 {vr(vSv)}, {STS}, {vr(vSv)}""")
        vSw = vH
        self.r_setup()
        self.sentinel_init()

        def rds(ks):
            m, e, b = ks // 2, ks % 2, ks % 2
            base = (m % 2) * CH
            o = []
            for sec in (1, 2, 0):
                for jj in range(2):
                    o.append(f'ds_read_b64_tr_b16 {vr(wf(b, sec) + 2 * jj, 2)}, {vr(rW)}'
                             f'{off(base + 8192 * (sec + 1) + e * 4096 + jj * 512)}')
                if sec == 1:
                    for tt in range(4):
                        o.append(f'ds_read_b128 {vr(xf(b, tt), 4)}, {vr((rX0, rX1)[e])}{off(base + tt * 2048)}')
            o.append(f'ds_read_b128 {vr(xf(b, 4), 4)}, {vr((rO0, rO1)[e])}{off(base)}')
            return o

        def move(delta):
            return [f'v_add_u32 {vr(r)}, {delta & 0xffffffff}, {vr(r)}' for r in (rX0, rX1, rO0, rO1, rW)]
        p.need('c0')
        p('s_barrier')
        self.stamp(1)
        p.add(rds(0))
        ones = vr(ONES, 4)
        side = chunk(2)
        for ks in range(14):
            b = ks % 2
            nx = ks + 1
            if nx < 14 and nx % 2 == 0:
                m = nx // 2
                self.emit_groups(side)
                side = []
                p.need(f'c{m}')
                p('s_barrier')
                if m % 2 == 0:
                    p.add(move(2 * CH if m % 4 == 2 else -2 * CH))
                if m + 2 < 7:
                    side = chunk(m + 2)
                elif m == 5:
                    side = ([] if self.c.rlate else self.r_issue()) + self.sp_touch(True)
            if self.c.fine == 1 and ks % 2 == 1:
                self.stamp(24 + ks // 2)
            R = rds(nx) if nx < 14 else []
            z = ks == 0
            ms = []
            for sec in (1, 2, 0):
                w_ = vr(wf(b, sec), 4)
                for tt in range(4):
                    x_ = vr(xf(b, tt), 4)
                    a_, b_ = (w_, x_) if sec < 2 else (x_, w_)
                    ms.append(mf16(acc(sec, tt), a_, b_, None if z else acc(sec, tt)))
                a_, b_ = (w_, ones) if sec < 2 else (ones, w_)
                ms.append(mf16(CS + 4 * sec, a_, b_, None if z else CS + 4 * sec))
            xo = vr(xf(b, 4), 4)
            st = [mf16(SA, ones, xo, None if z else SA), mf16(SA + 4, xo, xo, None if z else SA + 4)]
            ms = (st + ms) if ks == 13 else (ms + st)
            fin = self.ln_finish(SA, SA + 4, t + 4, t, vPerm) if ks == 13 else []
            isv = lambda g_: (g_[0][0] if isinstance(g_[0], tuple) else g_[0]).startswith('buffer')
            for n, m_ in enumerate(ms):
                p(m_)
                didS = False
                if side and not isv(side[0]):
                    p.add(list(side.pop(0)))
                    didS = True
                if R and (n % 3 != 2 or len(R) >= len(ms) - n):
                    p(R.pop(0))
                elif side and isv(side[0]) and not didS:
                    p.add(list(side.pop(0)))
                elif fin and n >= 5:
                    p(fin.pop(0))
            p.add(fin)
            if ks == 8:
                p(f'v_mov_b32 {vr(vFl)}, 0')
                p(f'buffer_load_dword {vr(vFl)}, {vr(vFl)}, {srd(sDBG)}, 0 offen sc1')
        self.stamp(2)
        p('s_mov_b64 exec, 0xffff')
        p(f'ds_write_b64 {vr(vSw)}, {vr(t + 4, 2)}', tokw=['lnw'])
        p('s_mov_b64 exec, -1')
        qs = math.log2(math.e) / math.sqrt(28.0)
        p(f"""s_lshl_b32 s{sT0}, s{sRB}, 12
s_add_u32 s{sT0}, s{sT0}, {QF}
s_lshl_b32 s{sT1}, s{sRB}, 13
s_add_u32 s{sT1}, s{sT1}, {KV}
s_add_u32 s{sT2}, s{sT1}, 4096""")
        p.need('lnw')
        p('s_barrier')
        TK, TV, D = XF, XF + 8, 184
        for tt in range(4):
            p(f'ds_read_b64 {vr(TK + 2 * tt, 2)}, {vr(vSt)}{off(128 * tt)}')
        for tt in range(4):
            for h in range(2):
                p(f'ds_read_b128 {vr(TV + 8 * tt + 4 * h, 4)}, {vr(vSv)}{off(128 * tt + 16 * h)}')

        def qk_store(sec, tp, d):
            for e in range(2):
                tt = 2 * tp + e
                st = vr(TK + 2 * tt, 2)
                for h in range(2):
                    a = vr(acc(sec, tt) + 2 * h, 2)
                    p(f'v_pk_fma_f32 {a}, {vr(CS + 4 * sec + 2 * h, 2)}, {st}, {a} op_sel:[0,1,0] op_sel_hi:[1,1,1]')
                    p(f'v_pk_mul_f32 {a}, {a}, {st} op_sel_hi:[1,0]')
                a = acc(sec, tt)
                p(f'v_cvt_pk_bf16_f32 {vr(d + 2 * e)}, {vr(a)}, {vr(a + 1)}')
                p(f'v_cvt_pk_bf16_f32 {vr(d + 2 * e + 1)}, {vr(a + 2)}, {vr(a + 3)}')
            c0, c1 = ('0', '0') if sec == 0 else (vr(vK0), vr(vK1))
            p(f'v_mov_b32 {vr(d + 6)}, {c0}\nv_mov_b32 {vr(d + 7)}, {c1}')
            p(f'v_permlane16_swap_b32 {vr(d)}, {vr(d + 2)}')
            p(f'v_permlane16_swap_b32 {vr(d + 1)}, {vr(d + 3)}')
            p(f"""v_mov_b32 {vr(d + 4)}, {vr(d + 2)}
v_mov_b32 {vr(d + 5)}, {vr(d + 3)}
v_cndmask_b32 {vr(d + 2)}, {vr(d + 2)}, {vr(d + 6)}, {sp(sM2)}
v_cndmask_b32 {vr(d + 3)}, {vr(d + 3)}, {vr(d + 7)}, {sp(sM2)}""")
            va, vb, so, o = (vQa, vQb, sT0, 2048 * tp) if sec == 0 else (vKa, vKb, (sT1, sT2)[tp], 0)
            p(f'buffer_store_dwordx4 {vr(d, 4)}, {vr(va)}, {srd(sWS)}, s{so} offen{off(o)} sc1', tokw=['st1'])
            p(f'buffer_store_dwordx4 {vr(d + 4, 4)}, {vr(vb)}, {srd(sWS)}, s{so} offen{off(o)} sc1', tokw=['st1'])

        qk_store(1, 0, D)
        qk_store(1, 1, D + 8)
        for tp in range(2):
            d = D + 16 + 4 * tp
            for e in range(2):
                tt = 2 * tp + e
                for r in range(4):
                    a = acc(2, tt) + r
                    st = TV + 8 * tt + 2 * r
                    p(f'v_fmac_f32 {vr(a)}, {vr(st + 1)}, {vr(CS + 8)}')
                    p(f'v_mul_f32 {vr(a)}, {vr(a)}, {vr(st)}')
                a = acc(2, tt)
                p(f'v_cvt_pk_bf16_f32 {vr(d + 2 * e)}, {vr(a)}, {vr(a + 1)}')
                p(f'v_cvt_pk_bf16_f32 {vr(d + 2 * e + 1)}, {vr(a + 2)}, {vr(a + 3)}')
            so = (sT1, sT2)[tp]
            p(f'buffer_store_dwordx4 {vr(d, 4)}, {vr(vVa)}, {srd(sWS)}, s{so} offen offset:2048 sc1', tokw=['st1'])
            p(f'buffer_store_dwordx4 {vr(vVd, 4)}, {vr(vVc)}, {srd(sWS)}, s{so} offen offset:2048 sc1', tokw=['st1'])
        for tt in range(4):
            p(f'v_mul_f32 {vr(TK + 2 * tt)}, {hx(qs)}, {vr(TK + 2 * tt)}')
        qk_store(0, 0, D + 24)
        qk_store(0, 1, D + 32)
        if self.c.rlate:
            self.emit_groups(self.r_issue())
        self.attn_setup()
        p(f'v_mov_b32 {vr(vP)}, 0')
        self.check(vFl, vP, 32, sDBG)
        p.need('st1', 'sent')
        self.arrive(vAr, 3)
        self.stamp(3)
        p('s_branch .Lattn')

    def spare(self):
        p = self.p
        p('.Lspare:')
        sSPI, sOM = sT0, sA0
        t = 6
        p(f'''s_lshl_b32 s{sOM}, s{sXC}, 2
s_add_u32 s{sOM}, s{sOM}, s{sIDX}
s_sub_u32 s{sOM}, s{sOM}, 28
s_lshl_b32 s{sOM}, s{sOM}, 2
s_add_u32 s{sOM}, s{sOM}, s{sW}''')
        p(f's_lshl_b32 s{sT1}, s{sOM}, 10')
        for r in range(4):
            p(f'v_mov_b32 {vr(8 + r)}, 0')
        p(f'buffer_store_dwordx4 {vr(8, 4)}, {vr(vL16)}, {srd(sWS)}, s{sT1} offen sc1', tokw=['z'])
        p(f'''s_sub_u32 s{sT1}, s{sIDX}, 28
s_lshl_b32 s{sT1}, s{sT1}, 2
s_add_u32 s{sT1}, s{sT1}, s{sW}
s_lshl_b32 s{sT1}, s{sT1}, 13
v_lshlrev_b32 {vr(t)}, 7, {vr(vL)}
v_add_u32 {vr(t)}, s{sT1}, {vr(t)}
s_mov_b32 s{sT1}, .Lend-.Lpc0
v_min_u32 {vr(t)}, s{sT1}, {vr(t)}
global_load_dword {vr(250)}, {vr(t)}, {sp(sPC)}''')
        p.need('z')
        p('s_barrier')
        p(f's_cmp_lg_u32 s{sW}, 0\ns_cbranch_scc1 .Lnozero')
        p(f's_mov_b64 exec, 1\nbuffer_atomic_add {vr(vONE)}, {vr(8)}, {srd(sDBG)}, 0 offen sc1\ns_mov_b64 exec, -1')
        p('.Lnozero:')
        if self.c.sdelay:
            p(f'v_mov_b32 {vr(12)}, 0')
            self.poll(12, 32, sDBG, 13)
        if self.c.wtouch:
            p(f'''v_lshlrev_b32 v100, 7, {vr(vL)}
s_mul_i32 s{sT1}, s{sOM}, {49 * 128}
s_mul_i32 s{sT2}, s{sOM}, {25 * 128}
s_mov_b32 exec_hi, 0x1ffff
buffer_load_dword v101, v100, {srd(sWU)}, s{sT1} offen
s_mov_b64 exec, 0x1ffffff
buffer_load_dword v102, v100, {srd(sWO)}, s{sT2} offen
s_mov_b64 exec, -1''')
        if self.c.stouch:
            p(f'''s_sub_u32 s{sT5}, s{sIDX}, 28
s_lshl_b32 s{sT5}, s{sT5}, 2
s_add_u32 s{sT5}, s{sT5}, s{sW}
s_lshl_b32 s{sT5}, s{sT5}, 4
s_lshl_b32 s{sG}, s{sXC}, 8
s_add_u32 s{sT5}, s{sT5}, s{sG}
s_lshl_b32 s{sT5}, s{sT5}, 12
s_add_u32 s{sT5}, s{sT5}, 4096
v_lshlrev_b32 v100, 12, {vr(vQ)}
v_lshl_add_u32 v100, {vr(vC)}, 8, v100''')
            for k in range(self.c.stouch):
                p(f'buffer_load_dword v{101 + k}, v100, {srd(sSP)}, s{sT5} offen\ns_add_u32 s{sT5}, s{sT5}, {4 * 4096}')
        B, A, vS = 16, 72, 14
        p(f'''s_mul_i32 s{sT0}, s{sOM}, 2341
s_lshr_b32 s{sA1}, s{sT0}, 16
s_mul_i32 s{sT0}, s{sA1}, 28
s_sub_u32 s{sA2}, s{sOM}, s{sT0}
s_mul_i32 s{sT0}, s{sA1}, {112 * 3584}
s_lshl_b32 s{sT1}, s{sA2}, 7
s_add_u32 s{sT0}, s{sT0}, s{sT1}
v_lshrrev_b32 {vr(t)}, 3, {vr(vL)}
v_and_b32 {vr(t + 1)}, 7, {vr(vL)}
v_mul_u32_u24 {vr(vS)}, 3584, {vr(t)}
v_lshl_add_u32 {vr(vS)}, {vr(t + 1)}, 4, {vr(vS)}''')
        for n in range(14):
            p(f's_add_u32 s{sT1}, s{sT0}, {n * 8 * 3584}')
            p(f'buffer_load_dwordx4 {vr(B + 4 * n, 4)}, {vr(vS)}, {srd(sWI)}, s{sT1} offen')
        n_, f_, j_, u_, m_ = 80, 81, 82, 83, 84
        p(f'''s_lshl_b32 s{sT1}, s{sA2}, 6
v_lshl_add_u32 {vr(n_)}, {vr(t + 1)}, 3, {vr(t)}
v_add_u32 {vr(n_)}, s{sT1}, {vr(n_)}
v_cmp_gt_u32 vcc, 896, {vr(n_)}
v_subrev_u32 {vr(f_)}, 896, {vr(n_)}
v_cndmask_b32 {vr(f_)}, {vr(f_)}, {vr(n_)}, vcc
v_cndmask_b32 {vr(n_)}, 0, {vr(vONE)}, vcc
v_lshrrev_b32 {vr(j_)}, 4, {vr(f_)}
v_mul_u32_u24 {vr(j_)}, 37, {vr(j_)}
v_lshrrev_b32 {vr(j_)}, 8, {vr(j_)}
v_mul_u32_u24 {vr(u_)}, 112, {vr(j_)}
v_sub_u32 {vr(f_)}, {vr(f_)}, {vr(u_)}
v_lshl_add_u32 {vr(j_)}, {vr(j_)}, 1, {vr(n_)}
v_mul_u32_u24 {vr(j_)}, 105, {vr(j_)}
v_lshrrev_b32 {vr(u_)}, 5, {vr(f_)}
v_bfe_u32 {vr(n_)}, {vr(f_)}, 2, 1
v_lshl_add_u32 {vr(u_)}, {vr(u_)}, 1, {vr(n_)}
v_bfe_u32 {vr(m_)}, {vr(f_)}, 3, 2
v_and_b32 {vr(n_)}, 3, {vr(f_)}
v_lshl_add_u32 {vr(m_)}, {vr(m_)}, 2, {vr(n_)}
v_cmp_gt_u32 vcc, 96, {vr(f_)}
v_subrev_u32 {vr(n_)}, 96, {vr(f_)}
v_cndmask_b32 {vr(m_)}, {vr(n_)}, {vr(m_)}, vcc
v_cndmask_b32 {vr(u_)}, 6, {vr(u_)}, vcc
v_add_u32 {vr(j_)}, {vr(j_)}, {vr(u_)}
v_lshlrev_b32 {vr(j_)}, 10, {vr(j_)}
v_lshl_add_u32 {vr(j_)}, {vr(m_)}, 4, {vr(j_)}
s_lshl_b32 s{sT1}, s{sA1}, 8
s_add_u32 s{sT1}, s{sT1}, {WIF + 98 * 1024}
s_cmp_ge_u32 s{sOM}, 112
s_cselect_b32 s{sA3}, {OOR}, s{sT1}''')
        self.r_setup()
        self.emit_groups(self.r_issue())
        self.sentinel_init()
        for n in range(14):
            for d in range(4):
                r = B + 4 * n + d
                if n == 0:
                    p(f'v_lshlrev_b32 {vr(A + 2 * d)}, 16, {vr(r)}\nv_and_b32 {vr(A + 2 * d + 1)}, 0xffff0000, {vr(r)}')
                else:
                    u = 86 + 2 * (d % 2)
                    p(f'v_lshlrev_b32 {vr(u)}, 16, {vr(r)}\nv_and_b32 {vr(u + 1)}, 0xffff0000, {vr(r)}')
                    p(f'v_pk_add_f32 {vr(A + 2 * d, 2)}, {vr(A + 2 * d, 2)}, {vr(u, 2)}')
        for k in range(4):
            p(f'v_permlane32_swap_b32 {vr(A + k)}, {vr(A + k + 4)}')
        for k in range(4):
            p(f'v_add_f32 {vr(A + k)}, {vr(A + k)}, {vr(A + k + 4)}')
        for k in range(2):
            p(f'v_permlane16_swap_b32 {vr(A + k)}, {vr(A + k + 2)}')
        for k in range(2):
            p(f'v_add_f32 {vr(A + k)}, {vr(A + k)}, {vr(A + k + 2)}')
        for k in range(2):
            p(f'v_add_f32_dpp {vr(A + k)}, {vr(A + k)}, {vr(A + k)} row_ror:8 row_mask:0xf bank_mask:0xf')
        p(f'''v_mov_b32_dpp {vr(A)}, {vr(A + 1)} quad_perm:[0,1,2,3] row_mask:0xf bank_mask:0xc
v_cvt_pk_bf16_f32 {vr(B)}, {vr(A)}, {vr(A)}
v_and_b32 {vr(A + 1)}, 0xffff0000, {vr(B)}
v_sub_f32 {vr(A)}, {vr(A)}, {vr(A + 1)}
v_cvt_pk_bf16_f32 {vr(B + 1)}, {vr(A)}, {vr(A)}
v_mov_b32 {vr(B + 2)}, 0
v_mov_b32 {vr(B + 3)}, 0''')
        p(f'buffer_store_dwordx4 {vr(B, 4)}, {vr(j_)}, {srd(sWS)}, s{sA3} offen sc1', tokw=['cst'])
        if not self.c.sdelay:
            p(f'v_mov_b32 {vr(12)}, 0')
            self.poll(12, 32, sDBG, 13)
        p(f'''v_lshlrev_b32 {vr(15)}, 7, {vr(vL)}
v_add_u32 {vr(15)}, {CNT + self.C_RDY * 128}, {vr(15)}''')
        p.need('cst', 'sent')
        p('s_barrier')
        La = p.label('noarr')
        p(f's_cmp_lg_u32 s{sW}, 0\ns_cbranch_scc1 {La}')
        if self.NC == 4:
            p(f's_mov_b32 exec_hi, 0')
        p(f'buffer_atomic_add {vr(vONE)}, {vr(15)}, {srd(sWS)}, 0 offen sc1')
        p('s_mov_b64 exec, -1')
        p(f'{La}:')
        self.emit_groups(self.sp_touch(False))
        self.attn_setup()
        self.stamp(3)

    def attn_setup(self):
        p = self.p
        c = self.c
        SCR = 106 * 1024
        vPo, vSP, vRdy, vRv, vW0, vRa, t = 7, 8, 9, 10, 11, 14, 244
        p(f'''s_mul_i32 s{sT0}, s{sHD}, 28
s_lshr_b32 s{sT1}, s{sT0}, 4
s_add_u32 s{sT0}, s{sT0}, 27
s_lshr_b32 s{sT2}, s{sT0}, 4
s_lshr_b32 s{sT3}, s{sQB}, 2
s_lshr_b32 s{sT4}, s{sHD}, 1
v_and_b32 {vr(vPo)}, 3, {vr(vL)}
v_add_u32 {vr(vPo)}, s{sT1}, {vr(vPo)}
v_min_u32 {vr(vPo)}, s{sT2}, {vr(vPo)}
v_mul_u32_u24 {vr(t)}, {16 * 2341}, {vr(vPo)}
v_lshrrev_b32 {vr(t)}, 17, {vr(t)}
v_sub_u32 {vr(t)}, s{sT4}, {vr(t)}
v_lshl_add_u32 {vr(vPo)}, {vr(vPo)}, 3, {vr(t)}
v_mov_b32 {vr(t)}, s{sW}
v_mov_b32 {vr(t + 2)}, s{sT3}
v_and_b32 {vr(t + 1)}, 4, {vr(vL)}
v_cmp_ne_u32 vcc, 0, {vr(t + 1)}
v_cndmask_b32 {vr(t)}, {vr(t)}, {vr(t + 2)}, vcc
v_lshl_add_u32 {vr(vPo)}, {vr(t)}, 1, {vr(vPo)}
v_lshlrev_b32 {vr(vPo)}, 7, {vr(vPo)}''')
        vD, vE = 226, 234
        p(f'''s_lshl_b32 s{sT0}, s{sJ}, {7 + self.LC}
s_add_u32 s{sT0}, s{sT0}, {CNT + self.C_RDY * 128}
v_lshlrev_b32 {vr(vRv)}, 7, {vr(vL)}
v_add_u32 {vr(vRa)}, s{sT0}, {vr(vRv)}
s_lshl_b32 s{sT1}, s{sRQ}, 7
s_add_u32 s{sT0}, s{sT0}, s{sT1}
v_mov_b32 {vr(vRdy)}, s{sT0}
v_cmp_lt_u32 {sp(sM2)}, 31, {vr(vL)}
v_lshrrev_b32 {vr(t)}, 3, {vr(vL)}
v_and_b32 {vr(t + 1)}, 7, {vr(vL)}
v_xor_b32 {vr(t + 1)}, {vr(t + 1)}, {vr(vQ)}
v_lshlrev_b32 {vr(t)}, 12, {vr(t)}
v_lshl_add_u32 {vr(t)}, {vr(t + 1)}, 4, {vr(t)}
v_xor_b32 {vr(t + 1)}, 64, {vr(t)}
v_lshrrev_b32 {vr(t + 2)}, 1, {vr(vC)}
v_xor_b32 {vr(t + 2)}, {vr(t + 2)}, {vr(vQ)}
v_lshlrev_b32 {vr(t + 2)}, 4, {vr(t + 2)}
v_lshl_add_u32 {vr(t + 2)}, {vr(vC)}, 7, {vr(t + 2)}
v_xor_b32 {vr(t + 3)}, 64, {vr(t + 2)}
s_lshl_b32 s{sA1}, s{sW}, 14
s_mul_i32 s{sA2}, s{sW}, 12288
s_add_u32 s{sA2}, s{sA2}, {SCR}
v_add_u32 {vr(vE)}, s{sA1}, {vr(t + 2)}
v_add_u32 {vr(vE + 1)}, s{sA1}, {vr(t + 3)}
v_add_u32 {vr(vE + 2)}, s{sA2}, {vr(t + 2)}
v_add_u32 {vr(vE + 3)}, s{sA2}, {vr(t + 3)}
v_add_u32 {vr(vSP)}, s{sA2}, {vr(vL16)}
s_lshl_b32 s{sA0}, s{sI}, 18''')
        for a in range(4):
            p(f's_add_u32 s{sT0}, s{sW}, {1 + a}\ns_and_b32 s{sT0}, s{sT0}, 3')
            p(f'''s_lshl_b32 s{sT1}, s{sT0}, 16
s_lshl_b32 s{sT2}, s{sW}, 10
s_add_u32 s{sT1}, s{sT1}, s{sT2}
s_add_u32 s{sT2}, s{sT1}, {4096 - 2048 * (a % 2)}
v_add_u32 {vr(vD + 2 * a)}, s{sT2}, {vr(t)}
s_add_u32 s{sT2}, s{sT1}, {4096 + 8 * 4096 - 2048 * (a % 2) - 1024}
v_add_u32 {vr(vD + 2 * a + 1)}, s{sT2}, {vr(t + 1)}''')
            if a < 3:
                p(f'''s_add_u32 s{sT1}, s{sW}, {3 - a}
s_and_b32 s{sT1}, s{sT1}, 3
s_mul_i32 s{sT1}, s{sT1}, 12288
s_add_u32 s{sT1}, s{sT1}, {SCR + a * 4096}
v_add_u32 {vr(vW0 + a)}, s{sT1}, {vr(vL16)}''')
            p(f'''s_lshl_b32 s{sT1}, s{sHD}, 6
s_lshl_b32 s{sT2}, s{sQB}, 2
s_add_u32 s{sT1}, s{sT1}, s{sT2}
s_add_u32 s{sT1}, s{sT1}, s{sT0}
s_lshl_b32 s{sT1}, s{sT1}, 11
s_add_u32 s{88 + a}, s{sT1}, {QF}''')
        p(f'''s_lshl_b32 s{sT0}, s{sHD}, 18
s_add_u32 s{sT0}, s{sT0}, {KV}
s_lshl_b32 s{sT1}, s{sQB}, 14
s_add_u32 s{92}, s{sT0}, s{sT1}
s_lshl_b32 s{sT1}, s{sW}, 16
s_add_u32 s{93}, s{sT0}, s{sT1}''')
        sKR, sSR = sK2, sK2 + 1
        if c.rot5:
            p(f's_lshl_b32 s{sSR}, s{sJ}, 7' if c.map48 else f's_and_b32 s{sSR}, s{sJ}, 3\ns_lshl_b32 s{sSR}, s{sSR}, 8')
        else:
            p(f's_mov_b32 s{sSR}, 0')
        for g in range(8):
            p(f's_add_u32 s{sT4}, s{sSR}, {128 * g}\ns_and_b32 s{sT4}, s{sT4}, 1023\ns_add_u32 s{36 + g}, s{sT4}, s{sA0}')
        p(f'''s_mul_i32 s{sT1}, s{sJ}, {210 * 1024}
s_mul_i32 s{sT5}, s{sW}, {11 * 1024}
s_min_u32 s{sT5}, s{sT5}, {31 * 1024}
s_add_u32 s44, s{sT1}, s{sT5}
s_add_u32 s44, s44, {WIF}
s_add_u32 s45, s{sT5}, {64 * 1024}
s_lshl_b32 s46, s{sJ}, 16''')
        p(f's_add_u32 s{sT1}, s{sW}, s{sJ}' if c.rot36 else f's_mov_b32 s{sT1}, s{sW}')
        p(f'''s_and_b32 s{sT1}, s{sT1}, 3
s_lshl_b32 s{sT1}, s{sT1}, 14
s_add_u32 s46, s46, s{sT1}
s_add_u32 s46, s46, {WOF}
s_mul_i32 s47, s{sRT}, {16 * 896}
s_mul_i32 s{sT1}, s{sJ}, 112
s_add_u32 s47, s47, s{sT1}
v_mul_u32_u24 v239, 896, {vr(vC)}
v_lshl_add_u32 v239, {vr(vQ)}, 4, v239
s_lshl_b32 s88, s{sRT}, 5
v_lshlrev_b32 v15, 1, {vr(vC)}''')

    def attention(self):
        p = self.p
        c = self.c
        vD, vE = 226, 234
        sKR, sSR = sK2, sK2 + 1
        Q, O, S, P, KB = 16, 48, 112, 144, 152
        SCR, FLG = 106 * 1024, 155 * 1024
        vPo, vSP, vRdy, vRv, vW0 = 7, 8, 9, 10, 11
        vM = 240
        t = 244
        vRa = 14
        qf = lambda a, u: Q + 8 * a + 4 * u
        kf = lambda b, u: KB + 16 * b + 4 * u
        vf = lambda b, u: KB + 16 * b + 8 + 4 * u
        p('.Lattn:')
        if c.stop <= 1:
            self.finish()
            return
        self.pre0_at = len(p.ins)
        self.poll(vPo, 8)
        self.stamp(4)
        QS = 96 * 1024
        p(f's_lshl_b32 s{sT0}, s{sW}, 11\ns_add_u32 m0, s{sT0}, {QS}')
        for u in range(2):
            p(f'buffer_load_dwordx4 {vr(vL16)}, {srd(sWS)}, s91 offen{off(1024 * u)} sc1 lds', tokw=['q'])
        p(f's_and_b32 s{sT0}, s{sW}, 1\ns_lshl_b32 s{sT0}, s{sT0}, 10\ns_add_u32 m0, s{sT0}, {QS + 8192}')
        p(f's_add_u32 s{sT0}, s{sT0}, s92')
        p(f'buffer_load_dwordx4 {vr(vL16)}, {srd(sWS)}, s{sT0} offen sc1 lds', tokw=['q'])

        def kvreg(tl, which):
            if tl >= 12:
                return vr(KB + 16 * (tl - 12) + 4 * which, 4)
            g, hh = 2 + tl // 2, tl % 2
            return ar((2 * hh + which // 2) * 64 + 8 * g + 4 * (which % 2), 4)

        def kvload(tl, which):
            return f'buffer_load_dwordx4 {kvreg(tl, which)}, {vr(vL16)}, {srd(sWS)}, s{sKV} offen' \
                   f'{off(1024 * which)} sc1'

        def kvnext():
            return [f's_add_u32 s{sKR}, s{sKR}, 4096', f's_and_b32 s{sKR}, s{sKR}, 0xffff', f's_add_u32 s{sKV}, s93, s{sKR}']

        def first_kv(t0=0, t1=3):
            if t0 == 0:
                p(f's_lshl_b32 s{sKR}, s{sQB}, 12' if c.rotkv else f's_mov_b32 s{sKR}, 0')
            for tl in range(t0, t1):
                p.add(kvnext())
                for wch in range(4):
                    p(kvload(tl, wch))
        first_kv(0, 1)
        for a in range(4):
            p(f's_add_u32 s{sT0}, s{sW}, {1 + a}\ns_and_b32 s{sT0}, s{sT0}, 3\ns_lshl_b32 s{sT0}, s{sT0}, 11')
            p(f'v_add_u32 {vr(t + 4 + a)}, s{sT0}, {vr(vA1)}')
        p.need('q')
        p('s_barrier')
        for u in range(2):
            p(f'ds_read_b128 {vr(kf(3, u), 4)}, {vr(vA1)}{off(32768 + 8192 + 1024 * u)}')
        for a in range(4):
            for u in range(2):
                p(f'ds_read_b128 {vr(qf(a, u), 4)}, {vr(t + 4 + a)}{off(32768 + 1024 * u)}')
        first_kv(1, 3)
        self.pre_at = len(p.ins)

        def tile_max(a, b, first):
            s = S + 16 * (a % 2)
            o = [mf32(s, kf(b, 0), qf(a, 0), None), mf32(s, kf(b, 1), qf(a, 1), s)]
            m = vM + a
            v = [f'v_max3_f32 {vr(m)}, {vr(s)}, {vr(s + 1)}, {vr(s + 2) if first else vr(m)}']
            rest = list(range(3 if first else 2, 16))
            while len(rest) >= 2:
                v.append(f'v_max3_f32 {vr(m)}, {vr(s + rest[0])}, {vr(s + rest[1])}, {vr(m)}')
                rest = rest[2:]
            if rest:
                v.append(f'v_max_f32 {vr(m)}, {vr(s + rest[0])}, {vr(m)}')
            return o, v

        def max_pass(b, first):
            ms = [tile_max(a, b, first) for a in range(4)]
            p.add(ms[0][0])
            for a in range(4):
                if a < 3:
                    p.add(ms[a + 1][0])
                p.add(ms[a][1])

        def half_max():
            for a in range(4):
                p(f'v_mov_b32 {vr(t + a)}, {vr(vM + a)}')
            for a in range(4):
                p(f'v_permlane32_swap_b32 {vr(t + a)}, {vr(vM + a)}')
            for a in range(4):
                p(f'v_max_f32 {vr(vM + a)}, {vr(t + a)}, {vr(vM + a)}')

        def patch_q(full):
            for a in range(4):
                m = vM + a
                p(f'v_sub_f32 {vr(m)}, 0, {vr(m)}')
                p(f'v_cvt_pk_bf16_f32 {vr(t)}, {vr(m)}, 0')
                if full:
                    p(f'''v_lshlrev_b32 {vr(t + 1)}, 16, {vr(t)}
v_sub_f32 {vr(m)}, {vr(m)}, {vr(t + 1)}
v_cvt_pk_bf16_f32 {vr(t + 1)}, {vr(m)}, 0
v_lshlrev_b32 {vr(t + 1)}, 16, {vr(t + 1)}
v_sub_f32 {vr(m)}, {vr(m)}, {vr(t + 1)}
v_or_b32 {vr(t)}, {vr(t)}, {vr(t + 1)}
v_cvt_pk_bf16_f32 {vr(t + 1)}, {vr(m)}, 0
v_cndmask_b32 {vr(qf(a, 1) + 3)}, {vr(qf(a, 1) + 3)}, {vr(t + 1)}, {sp(sM2)}''')
                p(f'v_cndmask_b32 {vr(qf(a, 1) + 2)}, {vr(qf(a, 1) + 2)}, {vr(t)}, {sp(sM2)}')
        max_pass(3, True)
        half_max()
        patch_q(False)
        def owrite(a):
            return [[(f'ds_write_b128 {vr(vSP)}, {vr(O + 16 * a + 4 * k, 4)}{off(4096 * a + 1024 * k)}', ['ow'])]
                    for k in range(4)]
        p('.Lsweep:')
        p(f'''s_lshl_b32 s{sA3}, s{sW}, 13
s_add_u32 s{sA3}, s{sA3}, {64 * 1024}
s_sub_u32 s{sT0}, s{sA3}, s{sA1}
v_add_u32 v250, s{sT0}, {vr(vE)}
v_add_u32 v251, s{sT0}, {vr(vE + 1)}''')
        self.stamp(5)
        NP = 256
        Ss = [None] * NP
        Ms = [[] for _ in range(NP)]
        valid = lambda q: 0 <= q < NP and q not in (2, 252, 253)

        def putS(item, lo, hi=None):
            rng = range(hi, lo - 1, -1) if hi is not None else range(lo, NP)
            for q in rng:
                if valid(q) and Ss[q] is None:
                    Ss[q] = item
                    return q
            raise AssertionError((item, lo, hi))

        def putM(item, lo, vm):
            for q in range(lo, NP):
                if valid(q) and not any(k == vm for k, _ in Ms[q]):
                    Ms[q].append((vm, item))
                    return q
            raise AssertionError(item)

        def stream(items, start, step):
            cur = start - 1
            tgt = float(start)
            last = start
            for k, it in items:
                if k == 'S':
                    cur = putS(it, cur + 1)
                elif k == 'N':
                    cur = putS(it, max(cur + 1, int(tgt))) - 1
                else:
                    cur = putM(it, max(cur + 1, int(tgt)), k)
                    tgt = max(tgt, cur - 1) + step
                    last = cur
            return last
        need = lambda *tk: ('; need', [], list(tk))
        for tl in range(2, 15):
            Ss[16 * tl + 11] = need(f'k{tl + 1}')
            Ss[16 * (tl + 1) + 2] = need(f'v{tl + 1}')
        for a in range(2):
            for k in range(4):
                Ms[248 + 4 * a + k].append(('D', owrite(a)[k][0]))

        def kv_items(t0, t1):
            it = []
            for tl in range(t0, t1):
                it += [('V', (kvload(tl, wch).replace(f's{sKV} ', f's{(sKV, sL)[tl % 2]} '), [f'{"kkvv"[wch]}{tl}']))
                       for wch in range(4)]
            return it

        def kv_scalar(tl, lo, hi):
            q = lo
            for x in kvnext():
                q = putS(x.replace(f's{sKV},', f's{(sKV, sL)[tl % 2]},'), q) + 1
            assert q <= hi, (tl, q, hi)

        def kv_stream(t0, t1, start, step):
            pos_ = start
            for tl in range(t0, t1):
                first = int(pos_)
                if tl > 3:
                    kv_scalar(tl, self._kvs, 10 ** 6)
                    first = max(first, max(q for q in range(NP) if Ss[q] is not None and isinstance(Ss[q], str)
                                           and f's{(sKV, sL)[tl % 2]},' in Ss[q]) + 1)
                self._kvs = first
                last = stream(kv_items(tl, tl + 1), first, step)
                assert last < 16 * (tl - 1) + 11 or tl < 4, (tl, last)
                pos_ = last + step
            return int(pos_)

        def sp_items(g, n0, n1):
            sb, ob = (sA1, 8192 * g) if g < 2 else ((sA2, 0) if g % 2 == 0 else (sA3, 0))
            it = []
            for n in range(n0, n1):
                if n % 4 == 0 or n == n0:
                    it.append(('S', f's_add_u32 m0, s{sb}, {ob + 1024 * (n - n % 4)}'))
                it.append(('V', (f'buffer_load_dwordx4 {vr(vD + n)}, {srd(sSP)}, s{36 + g} offen{off(1024 * (n % 4))} lds',
                                 [f'sd{g}'])))
            return it

        def sp_reads(g, start):
            ob = 8192 * g if g < 2 else 0
            ve = vE if g < 2 else (vE + 2 if g % 2 == 0 else 250)
            it = [('N', need(f'sd{g}'))]
            for a in range(4):
                for e in range(2):
                    it.append(('D', (f'ds_read_b128 {ar((a * 16 + 2 * g + e) * 4, 4)}, '
                                     f'{vr(ve + e)}{off(ob + a * 2048)}', [f'sr{g}'])))
            return stream(it, max(start, 32 * (g - 1) + 4), 1.0)
        rf = self.r_finish()
        stream([('N', rf[0])] + [('D', x) for x in rf[1:9]], 0, 1.0)
        self._kvs = 0
        misc = [('V', x) for x in rf[9:]]
        misc += [('V', f'buffer_load_dwordx4 {vr(vXR, 4)}, v239, {srd(sX)}, s47 offen'),
                 ('V', f'buffer_load_dwordx4 {vr(vXR + 4, 4)}, v239, {srd(sX)}, s47 offen offset:64'),
                 ('V', f'buffer_load_ushort {vr(vBS)}, v15, {srd(sBS)}, s88 offen')]
        rend = {}
        self.pre_items = []
        wo_it = []
        for n in range(16):
            if n % 4 == 0:
                wo_it += [('S', f's_add_u32 s{sG}, s46, {1024 * n}'), ('S', f's_add_u32 m0, s{sA1}, {1024 * n}')]
            wo_it.append(('V', (f'buffer_load_dwordx4 {vr(vL16)}, {srd(sWS)}, s{sG} offen{off(1024 * (n % 4))} sc1 lds', ['wo'])))
        if c.sched == 1:
            pos = kv_stream(3, c.ka, 0, c.vstep)
            pos = stream(misc, max(pos, 12), c.vstep) + 1
            pos = stream(sp_items(0, 0, 8), pos, c.vstep) + 1
            putS('ARRIVE', pos + 6)
            pos = stream(sp_items(1, 0, 3), pos, c.vstep) + 1
            pos = stream(sp_items(1, 3, 8), max(pos, c.pm - 26), c.vstep) + 1
            rend[0] = sp_reads(0, c.pm)
            rend[1] = sp_reads(1, max(rend[0] + 1, pos + c.splag))
        else:
            self.pre_items = [x[1] for x in sp_items(0, 0, 8)]
            pos = kv_stream(3, 4, 12, c.vstep)
            pos = kv_stream(4, c.ka, max(pos, c.p0), c.vstep)
            rend[0] = sp_reads(0, c.p0 + 8)
            pos = stream(misc, pos, c.vstep) + 1
            pos = stream(sp_items(1, 0, 8), pos, c.vstep) + 1
            putS('ARRIVE', pos + 6)
            rend[1] = sp_reads(1, c.pm)
        pos = max(pos, c.pm)
        nxt = c.ka
        for g in range(2, 8):
            if nxt < 16:
                n2 = min(16, nxt + (2 if g < 4 else 1) if 16 - nxt > 7 - g else nxt + 1)
                pos = kv_stream(nxt, n2, pos, c.vstep)
                nxt = n2
            it = []
            if g >= 4:
                if g == c.wog:
                    putM(f'buffer_load_dword {vr(vRv)}, {vr(vRdy)}, {srd(sWS)}, 0 offen sc1', pos - 30, 'V')
                    pos = putS('CHECK', max(pos, rend[1] + 1)) + 1
                    wo_it.insert(0, ('S', need('sr0', 'sr1')))
                if g >= c.wog:
                    k = 6 + len(wo_it) % 6
                    if rend[g - 2] + 1 > pos or g == 7:
                        pos = stream(wo_it[:k], pos, c.vstep) + 1
                        wo_it = wo_it[k:]
                pos = max(pos, rend[g - 2] + 1)
                it.append(('S', need(f'sr{g - 2}')))
            pos = stream(it + sp_items(g, 0, 8), pos, c.vstep) + 1
            rend[g] = sp_reads(g, pos + c.splag)
        assert nxt == 16
        if wo_it:
            pos = stream(wo_it, pos, c.vstep) + 1
        it = []
        for n in range(11):
            if n % 4 == 0:
                it += [('S', f's_add_u32 s{sG}, s44, {1024 * n}'), ('S', f's_add_u32 m0, s45, {1024 * n}')]
            it.append(('V', (f'buffer_load_dwordx4 {vr(vL16)}, {srd(sWS)}, s{sG} offen{off(1024 * (n % 4))} sc1 lds', ['z2a'])))
        self.z2a_items = [x[1] for x in it]
        pos = max(pos, rend[7])
        self.info = dict(rend=rend, wo_end=pos)
        assert pos < 246, pos
        tmp = Prog()
        tmp.add(self.pre_items)
        p.ins[self.pre_at:self.pre_at] = tmp.ins

        p.add([x.replace(f's{sKV},', f's{sL},') for x in kvnext()])
        p(mf32(S, kvreg(0, 0), qf(0, 0), None))
        p(mf32(S, kvreg(0, 1), qf(0, 1), S))
        for n in range(64):
            tl, a = n // 4, n % 4
            if c.fine == 2 and n % 8 == 0 and n:
                self.stamp(24 + n // 8 - 1)
            sc, sn = S + 16 * (n % 2), S + 16 * ((n + 1) % 2)
            ms = [None] * 4
            if n < 63:
                t1, a1 = (n + 1) // 4, (n + 1) % 4
                ms[0] = mf32(sn, kvreg(t1, 0), qf(a1, 0), None)
                ms[1] = mf32(sn, kvreg(t1, 1), qf(a1, 1), sn)
            if n > 0:
                t0, a0 = (n - 1) // 4, (n - 1) % 4
                ms[2] = mf32(O + 16 * a0, kvreg(t0, 3), P + 4, O + 16 * a0)
            ms[3] = mf32(O + 16 * a, kvreg(tl, 2), P, None if tl == 0 else O + 16 * a)
            for g in range(4):
                q = 4 * n + g
                if ms[g]:
                    p(ms[g])
                it = Ss[q]
                if it == 'CHECK':
                    self.check(vRv, vRdy, 160)
                elif it == 'ARRIVE':
                    La = p.label('noarr')
                    p(f's_cmp_lg_u32 s{sFB}, 0\ns_cbranch_scc1 {La}')
                    p.need('rst')
                    self.arrive(vRa, (1 << self.NC) - 1)
                    p(f'{La}:')
                elif it:
                    p.add(it)
                for _, it in sorted(Ms[q], key=lambda x: x[0]):
                    p.add(it)
                for jx in range(4):
                    p(f'v_exp_f32 {vr(sc + 4 * g + jx)}, {vr(sc + 4 * g + jx)}')
                p(f'v_cvt_pk_bf16_f32 {vr(P + 2 * g)}, {vr(sc + 4 * g)}, {vr(sc + 4 * g + 1)}')
                p(f'v_cvt_pk_bf16_f32 {vr(P + 2 * g + 1)}, {vr(sc + 4 * g + 2)}, {vr(sc + 4 * g + 3)}')
        p(mf32(O + 48, kvreg(15, 3), P + 4, O + 48))
        for g in owrite(2):
            p.add(list(g))
        self.stamp(6)
        p(f'''v_max3_f32 {vr(t)}, abs({vr(O + 12)}), abs({vr(O + 28)}), abs({vr(O + 44)})
v_add_f32 {vr(t + 1)}, {vr(O + 12)}, {vr(O + 28)}
v_add_f32 {vr(t + 1)}, {vr(t + 1)}, {vr(O + 44)}
v_add_f32 {vr(t + 1)}, {vr(t + 1)}, {vr(O + 60)}
v_max3_f32 {vr(t)}, {vr(t)}, abs({vr(O + 60)}), abs({vr(O + 60)})
v_cmp_nge_f32 vcc, {hx(2.0 ** 60)}, {vr(t)}
v_cmp_u_f32 {sp(sM0)}, {vr(t + 1)}, {vr(t + 1)}
s_or_b64 vcc, vcc, {sp(sM0)}
s_cmp_lg_u64 vcc, 0
s_cselect_b32 s{sT0}, 1, {1 if c.force_fb else 0}
s_lshl_b32 s{sT1}, s{sW}, 2
s_add_u32 s{sT1}, s{sT1}, {FLG}
v_mov_b32 {vr(t)}, s{sT0}
v_mov_b32 {vr(t + 1)}, s{sT1}''')
        p(f'ds_write_b32 {vr(t + 1)}, {vr(t)}', tokw=['ow'])
        p(f'v_mov_b32 {vr(t + 1)}, {FLG}')
        p.need('ow', 'wo', 'z2a')
        p('s_barrier')
        p(f'ds_read_b128 {vr(t + 4, 4)}, {vr(t + 1)}')
        R = S
        for a in range(3):
            for k in range(4):
                p(f'ds_read_b128 {vr(R + 16 * a + 4 * k, 4)}, {vr(vW0 + a)}{off(k * 1024)}')
        p(f'''v_or_b32 {vr(t + 4)}, {vr(t + 4)}, {vr(t + 5)}
v_or3_b32 {vr(t + 4)}, {vr(t + 4)}, {vr(t + 6)}, {vr(t + 7)}
v_readfirstlane_b32 s{sT0}, {vr(t + 4)}
s_andn2_b32 s{sT0}, s{sT0}, s{sFB}
s_cmp_lg_u32 s{sT0}, 0
s_cbranch_scc1 .Ltruemax''')
        Oo = O + 48
        for a in range(3):
            for k in range(8):
                p(f'v_pk_add_f32 {vr(Oo + 2 * k, 2)}, {vr(Oo + 2 * k, 2)}, {vr(R + 16 * a + 2 * k, 2)}')
        p(f'''v_mov_b32 {vr(t)}, {vr(Oo + 12)}
v_mov_b32 {vr(t + 2)}, {vr(Oo + 12)}
v_permlane32_swap_b32 {vr(t)}, {vr(t + 2)}
v_rcp_f32 {vr(t)}, {vr(t + 2)}
v_mov_b32 {vr(t + 1)}, {vr(t)}
v_cndmask_b32 {vr(t + 2)}, {vr(t)}, 0, {sp(sM2)}
v_mov_b32 {vr(t + 3)}, {vr(t + 2)}''')
        p(f'''s_lshl_b32 s{sT0}, s{sQB}, 3
s_lshl_b32 s{sT1}, s{sW}, 1
s_add_u32 s{sT0}, s{sT0}, s{sT1}
s_lshl_b32 s{sT0}, s{sT0}, 4
s_add_u32 s{sT0}, s{sT0}, s{sHD}
s_lshl_b32 s{sT0}, s{sT0}, 10
s_add_u32 s{sT0}, s{sT0}, {OF}
v_and_b32 {vr(vPo)}, 1, {vr(vQ)}
v_lshlrev_b32 {vr(vPo)}, 14, {vr(vPo)}
v_lshrrev_b32 {vr(vRv)}, 1, {vr(vQ)}
v_lshl_add_u32 {vr(vPo)}, {vr(vRv)}, 8, {vr(vPo)}
v_lshl_add_u32 {vr(vPo)}, {vr(vC)}, 4, {vr(vPo)}''')
        for k in range(8):
            sc = t if k < 6 else t + 2
            p(f'v_pk_mul_f32 {vr(Oo + 2 * k, 2)}, {vr(Oo + 2 * k, 2)}, {vr(sc, 2)}')
        for k in range(8):
            p(f'v_cvt_pk_bf16_f32 {vr(O + k)}, {vr(Oo + 2 * k)}, {vr(Oo + 2 * k + 1)}')
        for a in range(2):
            p(f'buffer_store_dwordx4 {vr(O + 4 * a, 4)}, {vr(vPo)}, {srd(sWS)}, s{sT0} offen{off(512 * a)} sc1',
              tokw=['st2'])
        p(f'''s_lshl_b32 s{sT0}, s{sQB}, 2
s_add_u32 s{sT0}, s{sT0}, s{sW}
s_lshl_b32 s{sT0}, s{sT0}, {7 + self.LR}
s_add_u32 s{sT0}, s{sT0}, {CNT + self.C_S2 * 128}
v_lshlrev_b32 {vr(vSP)}, 7, {vr(vL)}
v_add_u32 {vr(vSP)}, s{sT0}, {vr(vSP)}''')
        self.z2b(0, c.z2split)
        p.need('st2')
        self.arrive(vSP, (1 << self.NR) - 1)
        self.stamp(7)
        p.add(self.z2a_items)
        self.z2b(c.z2split, 4)

        def truemax():
            p('.Ltruemax:')
            p('s_waitcnt vmcnt(0) lgkmcnt(0)\ns_barrier')
            p(f's_mov_b32 s{sFB}, 1\ns_mov_b32 s{sRAd}, {OOR}\ns_mov_b32 s{sRBd}, {OOR}')
            for a in range(4):
                for r in (2, 3):
                    p(f'v_cndmask_b32 {vr(qf(a, 1) + r)}, {vr(qf(a, 1) + r)}, 0, {sp(sM2)}')
                p(f'v_mov_b32 {vr(vM + a)}, 0xff7fffff')
            p(f's_mov_b32 s{sKV}, s93\ns_mov_b32 s{sT0}, 16')
            p('.Ltm_loop:')
            p(kvload(15, 0))
            p(kvload(15, 1))
            max_pass(3, False)
            p(f's_add_u32 s{sKV}, s{sKV}, 4096\ns_sub_u32 s{sT0}, s{sT0}, 1\ns_cmp_lg_u32 s{sT0}, 0')
            p('s_cbranch_scc1 .Ltm_loop')
            half_max()
            for a in range(4):
                p(f'''s_add_u32 s{sT0}, s{sW}, {1 + a}
s_and_b32 s{sT0}, s{sT0}, 3
s_lshl_b32 s{sT0}, s{sT0}, 10
s_add_u32 s{sT0}, s{sT0}, {SCR}
v_lshlrev_b32 {vr(t + a)}, 2, {vr(vL)}
v_add_u32 {vr(t + a)}, s{sT0}, {vr(t + a)}
s_lshl_b32 s{sT0}, s{sW}, 8
v_add_u32 {vr(t + 4)}, s{sT0}, {vr(t + a)}''')
                p(f'ds_write_b32 {vr(t + 4)}, {vr(vM + a)}', tokw=['tm'])
            p.need('tm')
            p('s_barrier')
            for a in range(4):
                for k in range(4):
                    p(f'ds_read_b32 {vr(S + 4 * a + k)}, {vr(t + a)}{off(256 * k)}')
            for a in range(4):
                p(f'v_max3_f32 {vr(vM + a)}, {vr(S + 4 * a)}, {vr(S + 4 * a + 1)}, {vr(S + 4 * a + 2)}')
                p(f'v_max_f32 {vr(vM + a)}, {vr(vM + a)}, {vr(S + 4 * a + 3)}')
            patch_q(True)
            p('s_waitcnt lgkmcnt(0)\ns_barrier')
            first_kv()
            p.add(self.pre_items)
            p('s_branch .Lsweep')
        self.truemax = truemax

    def gemm_lds(self, nks, nct, lds_addr, act, acc, ring, nring, w_is_a, fill=(), per=0.0, hooks=None, ahead=6,
                 pre=None, fstart=0, side=None, init=None):
        p = self.p
        seq = [(ks, ct) for ks in range(nks) for ct in range(nct)]
        fill = list(fill)
        hooks = hooks or {}
        rd = lambda n: lds_rd(ring + 4 * (n % nring), lds_addr(*seq[n]))
        issued = 0
        accu = 0.0

        def run_hook(n):
            if n < len(seq) and seq[n][1] == 0 and seq[n][0] in hooks:
                hooks.pop(seq[n][0])()
        while issued < min(ahead, len(seq)):
            run_hook(issued)
            p(rd(issued))
            issued += 1
        for n, (ks, ct) in enumerate(seq):
            if ct == 0 and pre and ks in pre:
                if callable(pre[ks]):
                    pre[ks]()
                else:
                    p.add(pre[ks])
            wf = vr(ring + 4 * (n % nring), 4)
            a, b = (wf, act(ks)) if w_is_a else (act(ks), wf)
            p(mf16(acc(ct), a, b, (init(ct) if init else None) if ks == 0 else acc(ct)))
            if issued < len(seq):
                run_hook(issued)
                p(rd(issued))
                issued += 1
            if side and n in side:
                p.add(side[n])
            if n >= fstart:
                accu += per
            while accu >= 1 and fill:
                p.add(fill.pop(0))
                accu -= 1
        p.add(fill)

    def gelu(self, regs, t, scale):
        o = []
        for n in range(0, len(regs), 2):
            r = regs[n]
            u = t + 2 * ((n // 2) % 4)
            o.append([f'v_pk_mul_f32 {vr(r, 2)}, {vr(r, 2)}, {scale(n // 2)}',
                      f'v_pk_mul_f32 {vr(u, 2)}, {vr(r, 2)}, {vr(r, 2)}',
                      f'v_pk_fma_f32 {vr(u, 2)}, {vr(u, 2)}, {vr(168, 2)}, {vr(170, 2)}',
                      f'v_pk_mul_f32 {vr(u, 2)}, {vr(u, 2)}, {vr(r, 2)}',
                      f'v_exp_f32 {vr(u)}, {vr(u)}',
                      f'v_exp_f32 {vr(u + 1)}, {vr(u + 1)}',
                      f'v_pk_add_f32 {vr(u, 2)}, {vr(u, 2)}, 1.0 op_sel_hi:[1,0]',
                      f'v_rcp_f32 {vr(u)}, {vr(u)}',
                      f'v_rcp_f32 {vr(u + 1)}, {vr(u + 1)}',
                      f'v_pk_mul_f32 {vr(r, 2)}, {vr(r, 2)}, {vr(u, 2)}'])
        out = []
        for n in range(0, len(o), 2):
            if n + 1 < len(o):
                for a, b in zip(o[n], o[n + 1]):
                    out += [a, b]
            else:
                out += o[n]
        return out

    def z2b(self, a0, a1):
        p = self.p
        p(f's_mul_i32 s{sT1}, s{sJ}, {210 * 1024}')
        for a in range(a0, a1):
            if a < 3:
                p(f"""s_add_u32 s{sT5}, s{sW}, {3 - a}
s_and_b32 s{sT5}, s{sT5}, 3
s_mul_i32 s{sT5}, s{sT5}, 12288
s_add_u32 s{sT5}, s{sT5}, {a * 4096}""")
            else:
                p(f's_mov_b32 s{sT5}, {48 * 1024}')
            p(f"""s_add_u32 s{sG}, s{sT1}, s{sT5}
s_add_u32 m0, s{sT5}, {106 * 1024}
s_add_u32 s{sG}, s{sG}, {WIF + 42 * 1024}""")
            for n in range(4 if a < 3 else 1):
                p(f'buffer_load_dwordx4 {vr(vL16)}, {srd(sWS)}, s{sG} offen{off(n * 1024)} sc1 lds', tokw=['z2b'])

    def row_counter(self, base, idreg, varr, vpoll):
        o = [f's_lshl_b32 s{sT0}, s{idreg}, {7 + self.LR}', f's_add_u32 s{sT0}, s{sT0}, {CNT + base * 128}']
        if varr is not None:
            o += [f'v_lshlrev_b32 {vr(varr)}, 7, {vr(vL)}', f'v_add_u32 {vr(varr)}, s{sT0}, {vr(varr)}']
        if vpoll is not None:
            o += [f's_lshl_b32 s{sT3}, s{sCH}, 7', f's_add_u32 s{sT0}, s{sT0}, s{sT3}', f'v_mov_b32 {vr(vpoll)}, s{sT0}']
        return o

    def bar(self, *tok):
        def f():
            self.p.need(*tok)
            self.p('s_barrier')
        return f

    def phase3(self):
        p = self.p
        OB, RING, ACC = 16, 80, 112
        vA, vB, t, vAr, vPo = 7, 8, 10, 12, 13
        K = 1024
        p(f's_lshr_b32 s{sT2}, s{sRT}, 1')
        p.add(self.row_counter(self.C_S2, sT2, None, vA))
        p(f's_lshl_b32 s{sT0}, s{sRT}, 14\ns_add_u32 s{sT0}, s{sT0}, {OF}')
        for g in range(4):
            p(f's_add_u32 s{sT2}, s{sJ}, {g}' if self.c.rot36 else f's_mov_b32 s{sT2}, {g}')
            p(f's_and_b32 s{sT2}, s{sT2}, 3\ns_lshl_b32 s{sT2}, s{sT2}, 12\ns_add_u32 s{sA0 + g}, s{sT2}, s{sT0}')
        p.add(self.row_counter(self.C_S3, sRT, vAr, vPo))
        p(f"""s_mul_i32 s{sT4}, s{sRT}, 14336
s_mul_i32 s{sT2}, s{sJ}, {7 * 256}
s_add_u32 s{sT4}, s{sT4}, s{sT2}
s_add_u32 s{sT4}, s{sT4}, {HF}
v_cmp_eq_u32 vcc, 3, {vr(vQ)}
v_mov_b32 {vr(vB)}, {OOR}
v_cndmask_b32 {vr(vB)}, {vr(vL16)}, {vr(vB)}, vcc""")
        XF = 128
        for k in range(8):
            p(f'v_lshlrev_b32 {vr(XF + 2 * k)}, 16, {vr(vXR + k)}\nv_and_b32 {vr(XF + 2 * k + 1)}, 0xffff0000, {vr(vXR + k)}')
        self.poll(vA, 16)
        self.stamp(8)

        def old(ks):
            return f'buffer_load_dwordx4 {vr(OB + 4 * ks, 4)}, {vr(vL16)}, {srd(sWS)}, s{sA0 + ks // 4} offen' \
                   f'{off(1024 * (ks % 4))} sc1'
        for ks in range(8):
            p(old(ks))
        self.gemm_lds(16, 4, lambda ks, ct: (ks * 4 + ct) * 1024, lambda ks: vr(OB + 4 * ks, 4),
                      lambda ct: ACC + 4 * ct, RING, 8, True, side={4 * ks: [old(ks + 8)] for ks in range(8)},
                      init=lambda ct: XF + 4 * ct)
        self.bar('z2b', 'z2a')()
        for k in range(8):
            p(f'v_cvt_pk_bf16_f32 {vr(vXR + k)}, {vr(ACC + 2 * k)}, {vr(ACC + 2 * k + 1)}')
            if k == 3:
                p(f'buffer_store_dwordx4 {vr(vXR, 4)}, {vr(vL16)}, {srd(sWS)}, s{sT4} offen sc1', tokw=['st3'])
        p(f'buffer_store_dwordx4 {vr(vXR + 4, 4)}, {vr(vB)}, {srd(sWS)}, s{sT4} offen offset:1024 sc1', tokw=['st3'])
        p(f's_mul_i32 s{sT1}, s{sJ}, {210 * K}')
        d = self.dma_list(sT1, WIF + 91 * K, 0, 63, 'z1a')
        self.emit_groups(d[:self.c.z1split])
        p.need('st3')
        self.arrive(vAr, (1 << self.NR) - 1)
        self.stamp(9)
        self.emit_groups(d[self.c.z1split:])

    def phase4(self):
        p = self.p
        HB, RING, Z2, Z1 = 16, 80, 112, 140
        ONES, NA, G, SA, RS = 172, 176, 180, 192, 200
        vA, vPerm, vS, vZ, vPo, vP4, vZo = 7, 8, 9, 12, 13, 14, 15
        vAr5, vPo5 = 208, 209
        t = 10
        K = 1024

        def z2addr(ks, ct):
            return (64 * K + (ks * 7 + ct) * K) if ks < 13 else ((ks - 13) * 7 + ct) * K

        def z1addr(ks, ct):
            return (14 * K + (ks * 7 + ct) * K) if ks < 7 else 64 * K + ((ks - 7) * 7 + ct) * K
        p(f's_mul_i32 s{sT0}, s{sRT}, 14336\ns_add_u32 s{sT0}, s{sT0}, {HF}')
        for g in range(4):
            p(f's_add_u32 s{sA0 + g}, s{sT0}, {4096 * g}')
        for r in range(4):
            p(f'v_mov_b32 {vr(ONES + r)}, 0x3f803f80')
        k1 = -2.0 * math.sqrt(2.0 / math.pi) * math.log2(math.e)
        p(f"""v_mov_b32 v168, {hx(k1 * 0.044715)}
v_mov_b32 v169, {hx(k1 * 0.044715)}
v_mov_b32 v170, {hx(k1)}
v_mov_b32 v171, {hx(k1)}
v_mov_b32 {vr(HB + 58)}, 0
v_mov_b32 {vr(HB + 59)}, 0
v_lshlrev_b32 {vr(vP4)}, 4, {vr(vQ)}""")
        self.ln_masks(vPerm)
        p(f"""v_lshlrev_b32 {vr(vS)}, 5, {vr(vQ)}
v_lshl_add_u32 {vr(vA)}, {vr(vC)}, 4, {vr(vS)}
v_and_b32 {vr(t)}, 7, {vr(vC)}
v_lshl_add_u32 {vr(vS)}, {vr(t)}, 7, {vr(vS)}
v_lshrrev_b32 {vr(t)}, 3, {vr(vC)}
v_lshl_add_u32 {vr(vS)}, {vr(t)}, 4, {vr(vS)}
s_lshl_b32 s88, s{sRT}, 10
s_add_u32 s88, s88, {ST}
s_lshl_b32 s89, s{sJ}, 7
s_add_u32 s89, s89, s88""")
        p(f"""s_lshl_b32 s90, s{sJ}, 6
s_lshr_b32 s{sT3}, s{sRT}, 1
s_add_u32 s90, s90, s{sT3}
s_mul_i32 s90, s90, 7168
s_and_b32 s{sT3}, s{sW}, 1
s_lshl_b32 s{sT3}, s{sT3}, 9
s_add_u32 s90, s90, s{sT3}
s_add_u32 s90, s90, {ZF}
s_add_u32 s91, s90, 4096
v_and_b32 {vr(t)}, 1, {vr(vQ)}
v_cmp_ne_u32 vcc, 0, {vr(t)}
v_lshlrev_b32 {vr(vZ)}, 10, {vr(t)}
v_lshrrev_b32 {vr(t)}, 1, {vr(vQ)}
v_lshl_add_u32 {vr(vZ)}, {vr(t)}, 8, {vr(vZ)}
v_lshl_add_u32 {vr(vZ)}, {vr(vC)}, 4, {vr(vZ)}
v_mov_b32 {vr(vZo)}, {OOR}
v_cndmask_b32 {vr(vZo)}, {vr(vZ)}, {vr(vZo)}, vcc""")
        p(f"""s_lshl_b32 s{sT0}, s{sJ}, 2
s_lshr_b32 s{sT3}, s{sI}, 3
s_add_u32 s{sT3}, s{sT3}, s{sT0}
s_lshl_b32 s{sT3}, s{sT3}, {7 + self.LC}
s_add_u32 s{sT3}, s{sT3}, {CNT + self.C_S5 * 128}
v_lshlrev_b32 {vr(vAr5)}, 7, {vr(vL)}
v_add_u32 {vr(vAr5)}, s{sT3}, {vr(vAr5)}
s_add_u32 s{sT0}, s{sT0}, s{sW}
s_lshl_b32 s{sT3}, s{sT0}, {self.LC}
s_add_u32 s{sT3}, s{sT3}, s{sRQ}
s_lshl_b32 s{sT3}, s{sT3}, 7
s_add_u32 s{sT3}, s{sT3}, {CNT + self.C_S5 * 128}
v_mov_b32 {vr(vPo5)}, s{sT3}
s_mul_i32 s92, s{sT0}, {16 * 7168}
s_add_u32 s92, s92, {ZF}
s_mul_i32 s{sT2}, s{sJ}, {112 * K}
s_add_u32 s{sT2}, s{sT2}, {WUF}""")
        self.poll(vPo, 8)
        self.stamp(10)

        def hld(ks):
            return f'buffer_load_dwordx4 {vr(HB + 4 * ks, 4)}, {vr(vL16)}, {srd(sWS)}, s{sA0 + ks // 4} offen' \
                   f'{off((ks % 4) * K)} sc1'
        for ks in range(8):
            p(hld(ks))
        pre = {}
        for ks in range(7):
            pre[ks] = []
            for k2 in (2 * ks, 2 * ks + 1):
                h = vr(HB + 4 * k2, 4)
                pre[ks] += [mf16(SA, vr(ONES, 4), h, None if k2 == 0 else SA),
                            mf16(SA + 4, h, h, None if k2 == 0 else SA + 4)]
        fill = self.ln_finish(SA, SA + 4, NA, t, vPerm)
        E = HB + 56
        fill += [f'v_cvt_pk_bf16_f32 {vr(E)}, {vr(NA + 1)}, {vr(NA + 1)}',
                 f'v_and_b32 {vr(t)}, 0xffff0000, {vr(E)}',
                 f'v_sub_f32 {vr(t)}, {vr(NA + 1)}, {vr(t)}',
                 f'v_cvt_pk_bf16_f32 {vr(E)}, {vr(NA + 1)}, {vr(t)}',
                 f'v_mov_b32 {vr(E + 1)}, {vr(E)}']
        fill += [f'ds_bpermute_b32 {vr(RS + r)}, {vr(vP4)}, {vr(NA)}{off(4 * r)}' for r in range(4)]
        self.gemm_lds(15, 7, z2addr, lambda ks: vr(HB + 4 * ks, 4), lambda ct: Z2 + 4 * ct, RING, 8, False,
                      fill=fill, per=0.5, fstart=52, pre=pre, side={3 * n: [hld(8 + n)] for n in range(6)},
                      hooks={13: self.bar('z1a')})
        p('s_barrier')
        self.stamp(12)
        d = self.dma_list(sT1, WIF + (105 + 49) * K, 64 * K, 56, 'z1b')
        g = self.gelu(list(range(Z2, Z2 + 28)), G, lambda n: vr(RS + 2 * (n % 2), 2))
        p.add(interleave(g, [list(x) for x in d], per=len(d) / float(len(g)) + 0.03))
        SS, SQ = G, G + 4
        for ct in range(7):
            for h in range(2):
                z = vr(Z2 + 4 * ct + 2 * h, 2)
                if ct == 0:
                    p(f'v_pk_mul_f32 {vr(SQ + 2 * h, 2)}, {z}, {z}')
                else:
                    p(f'v_pk_fma_f32 {vr(SQ + 2 * h, 2)}, {z}, {z}, {vr(SQ + 2 * h, 2)}')
                    a = vr(Z2 + 2 * h, 2) if ct == 1 else vr(SS + 2 * h, 2)
                    p(f'v_pk_add_f32 {vr(SS + 2 * h, 2)}, {z}, {a}')
        for sh in (8, 4, 2, 1):
            for r in range(8):
                p(f'v_add_f32_dpp {vr(G + r)}, {vr(G + r)}, {vr(G + r)} row_ror:{sh} row_mask:0xf bank_mask:0xf')
        PB = G + 8
        p(f"""v_cndmask_b32 {vr(PB)}, {vr(SS)}, {vr(SS + 2)}, {sp(sM0)}
v_cndmask_b32 {vr(PB + 1)}, {vr(SQ)}, {vr(SQ + 2)}, {sp(sM0)}
v_cndmask_b32 {vr(PB + 2)}, {vr(SS + 1)}, {vr(SS + 3)}, {sp(sM0)}
v_cndmask_b32 {vr(PB + 3)}, {vr(SQ + 1)}, {vr(SQ + 3)}, {sp(sM0)}""")
        for r in range(4):
            p(f'v_min_u32 {vr(PB + r)}, -2, {vr(PB + r)}')
        p(f's_mov_b32 exec_lo, 0x00030003\ns_mov_b32 exec_hi, 0x00030003')
        p(f'buffer_store_dwordx4 {vr(PB, 4)}, {vr(vA)}, {srd(sWS)}, s89 offen sc1')
        p('s_mov_b64 exec, -1')
        self.stamp(13)
        GB = 204
        gather = f'buffer_load_dwordx4 {vr(GB, 4)}, {vr(vS)}, {srd(sWS)}, s88 offen sc1'

        def normalise():
            self.stamp(14)
            L, Dn = p.label('st'), p.label('std')
            p(f'{L}:')
            p(f"""v_max3_u32 {vr(t)}, {vr(GB)}, {vr(GB + 1)}, {vr(GB + 2)}
v_max_u32 {vr(t)}, {vr(t)}, {vr(GB + 3)}
v_cmp_eq_u32 vcc, -1, {vr(t)}
s_cbranch_vccz {Dn}
{gather}
s_sub_u32 s{sTO}, s{sTO}, 1
s_cmp_lg_u32 s{sTO}, 0
s_cbranch_scc1 {L}
s_branch .Lexit
{Dn}:""")
            self.stamp(15)
            for m in ('quad_perm:[1,0,3,2]', 'quad_perm:[2,3,0,1]', 'row_half_mirror'):
                for r in range(4):
                    p(f'v_add_f32_dpp {vr(GB + r)}, {vr(GB + r)}, {vr(GB + r)} {m} row_mask:0xf bank_mask:0xf')
            ch = []
            for r in range(2):
                s_, q_ = GB + 2 * r, GB + 2 * r + 1
                ch.append([f'v_mul_f32 {vr(s_)}, {hx(-1.0 / 896)}, {vr(s_)}',
                           f'v_mul_f32 {vr(t + r)}, {vr(s_)}, {vr(s_)}',
                           f'v_sub_f32 {vr(t + r)}, {hx(1e-5)}, {vr(t + r)}',
                           f'v_fmac_f32 {vr(t + r)}, {hx(1.0 / 896)}, {vr(q_)}',
                           f'v_max_f32 {vr(t + r)}, {hx(1e-5)}, {vr(t + r)}',
                           f'v_rsq_f32 {vr(q_)}, {vr(t + r)}',
                           f'v_mul_f32 {vr(s_)}, {vr(s_)}, {vr(q_)}'])
            for a_, b_ in zip(*ch):
                p(a_)
                p(b_)
            RA, RB = G, G + 4
            for r in range(4):
                p(f'v_mov_b32 {vr(RA + r)}, {vr(GB + 2 * (r % 2) + 1)}')
                p(f'v_mov_b32 {vr(RB + r)}, {vr(GB + 2 * (r % 2))}')
            for r in range(4):
                bm = '0xc' if r < 2 else '0x3'
                p(f'v_mov_b32_dpp {vr(RA + r)}, {vr(GB + 2 * (r % 2) + 1)} row_ror:8 row_mask:0xf bank_mask:{bm}')
                p(f'v_mov_b32_dpp {vr(RB + r)}, {vr(GB + 2 * (r % 2))} row_ror:8 row_mask:0xf bank_mask:{bm}')
            for a in range(4):
                d = 188 + 4 * a
                for e in range(2):
                    ct = 2 * a + e
                    if ct < 7:
                        for h in range(2):
                            z = Z2 + 4 * ct + 2 * h
                            p(f'v_pk_fma_f32 {vr(z, 2)}, {vr(z, 2)}, {vr(RA + 2 * h, 2)}, {vr(RB + 2 * h, 2)}')
                        for h in range(2):
                            z = Z2 + 4 * ct + 2 * h
                            p(f'v_cvt_pk_bf16_f32 {vr(d + 2 * e + h)}, {vr(z)}, {vr(z + 1)}')
                p(f'v_permlane16_swap_b32 {vr(d)}, {vr(d + 2)}')
                p(f'v_permlane16_swap_b32 {vr(d + 1)}, {vr(d + 3)}')
                p(f'buffer_store_dwordx4 {vr(d, 4)}, {vr(vZ if a < 3 else vZo)}, {srd(sWS)}, s{90 + a // 2} offen'
                  f'{off((a % 2) * 2048)} sc1', tokw=['st5'])

        def arrive5():
            p.need('st5')
            p('s_barrier')
            Ls = p.label('noarr')
            p(f's_cmp_lg_u32 s{sW}, 0\ns_cbranch_scc1 {Ls}')
            self.arrive(vAr5, (1 << self.NC) - 1)
            p(f'{Ls}:')
            self.stamp(16)
        c = self.c
        d = [list(x) for x in self.dma_wu(0, 8, 120 * K, 'wua')]
        self.gemm_lds(15, 7, z1addr, lambda ks: vr(HB + 4 * ks, 4), lambda ct: Z1 + 4 * ct, RING, 8, True,
                      hooks={7: self.bar('z1b')}, side={7 * c.kgat: [gather]},
                      pre={c.knorm: normalise, c.karr: arrive5}, fill=d, per=1.0, fstart=7 * c.karr)
        p('s_barrier')
        self.stamp(17)
        g = self.gelu(list(range(Z1, Z1 + 28)), G, lambda n: f'{vr(NA, 2)} op_sel_hi:[1,0]')
        g += [f'v_cvt_pk_bf16_f32 {vr(vZ1 + k)}, {vr(Z1 + 2 * k)}, {vr(Z1 + 2 * k + 1)}' for k in range(14)]
        p.add(g[:c.gsplit])
        self.gelu_rest = g[c.gsplit:]

    def phase5(self):
        p = self.p
        ZB, ACC = 16, 100
        vW0, vYo, vAr, vPo, vRd = 8, 11, 12, 13, 7
        vPo5 = 209
        t = 14
        K = 1024
        acc = lambda a, ct: ACC + (a * 7 + ct) * 4
        zb = lambda ks, ct: ZB + ((ks % 3) * 7 + ct) * 4
        p(f"""s_mul_i32 s{sA3}, s{sK2 + 1}, {7168 * 2 // 128}
s_add_u32 s{sA0}, s92, s{sA3}
s_add_u32 s{sA1}, s{sA0}, 4096""")
        self.poll(vPo5, 8)
        self.stamp(18)

        def zl(ks, ct):
            o = []
            if ct == 0 and ks:
                o += [f's_add_u32 s{sA3}, s{sA3}, 7168']
                if ks % 2 == 0:
                    o += [f's_cmp_eq_u32 s{sA3}, {16 * 7168}', f's_cselect_b32 s{sA3}, 0, s{sA3}']
                o += [f's_add_u32 s{sA0}, s92, s{sA3}']
            if ct == 4 and ks:
                o += [f's_add_u32 s{sA1}, s{sA0}, 4096']
            o.append(f'buffer_load_dwordx4 {vr(zb(ks, ct), 4)}, {vr(vL16)}, {srd(sWS)}, s{sA0 if ct < 4 else sA1} offen'
                     f'{off((ct % 4) * K)} sc1')
            return o
        first = [zl(ks, ct) for ks in range(3) for ct in range(7)]
        p.add(first[:10])
        rest = first[10:] + [list(x) for x in self.dma_wu(8, 9, 84 * K, 'wub')]
        g = self.gelu_rest
        p.add(interleave(g, rest, per=len(rest) / float(max(len(g), 1)) + 0.02))
        for a in range(3):
            p(f"""s_add_u32 s{sT0}, s{sW}, {1 + a}
s_and_b32 s{sT0}, s{sT0}, 3
s_mul_i32 s{sT0}, s{sT0}, {3 * 7168}
s_add_u32 s{sT0}, s{sT0}, {a * 7168}
v_add_u32 {vr(vW0 + a)}, s{sT0}, {vr(vL16)}""")
        mm = lambda a, ks, ct: mf16(acc(a, ct), vr(zb(ks, ct), 4), ar((a * 16 + ks) * 4, 4),
                                    None if ks == 0 else acc(a, ct))
        fill = [f's_mul_i32 s{sT0}, s{sW}, {3 * 7168}', f'v_add_u32 {vr(vRd)}, s{sT0}, {vr(vL16)}']
        fill += self.row_counter(self.C_S6, sRT, vAr, vPo)
        fill += f"""s_mul_i32 s{sT4}, s{sRT}, 28672
s_mul_i32 s{sT1}, s{sJ}, {14 * 256}
s_add_u32 s{sT4}, s{sT4}, s{sT1}
s_add_u32 s{sT4}, s{sT4}, {YF}
v_and_b32 {vr(t)}, 1, {vr(vQ)}
v_cmp_ne_u32 vcc, 0, {vr(t)}
v_lshrrev_b32 {vr(t)}, 1, {vr(vQ)}
v_lshlrev_b32 {vr(vYo)}, 8, {vr(t)}
v_lshl_add_u32 {vr(vYo)}, {vr(vC)}, 4, {vr(vYo)}
v_mov_b32 {vr(t)}, {OOR}
v_cndmask_b32 {vr(vYo)}, {vr(vYo)}, {vr(t)}, vcc
v_lshlrev_b32 {vr(t)}, 16, {vr(vBS)}
v_mov_b32 {vr(t + 1)}, {vr(t)}""".split('\n')
        for ks in range(13):
            if self.c.fine == 5 and ks % 2 == 1:
                self.stamp(24 + ks // 2)
            for ct in range(7):
                z = zl(ks + 3, ct)
                for a in range(4):
                    p(mm(a, ks, ct))
                    if a < 3 and len(z) > 1:
                        p(z.pop(0))
                        if len(z) > 4 - a:
                            p(z.pop(0))
                    elif a == 1 and fill and ks >= 2:
                        p(fill.pop(0))
                p.add(z)
        assert not fill
        for a in range(4):
            w = []
            if a:
                w = [(f'ds_write_b128 {vr(vW0 + a - 1)}, {vr(acc(a - 1, ct), 4)}{off(ct * K)}', ['pw'])
                     for ct in range(7)]
            n = 0
            for ks in (13, 14, 15):
                for ct in range(7):
                    p(mm(a, ks, ct))
                    n += 1
                    if w and n >= 2 and (n % 3) == 2:
                        p.add(w.pop(0))
            p.add(w)
        self.stamp(19)
        p.need('pw', 'wua', 'wub')
        p('s_barrier')
        G = acc(3, 0)
        D = ACC
        for ct in range(7):
            for a in range(3):
                p(f'ds_read_b128 {vr(ZB + (a * 7 + ct) * 4, 4)}, {vr(vRd)}{off((a * 7 + ct) * K)}', tokw=['pr'])
        for k in range(14):
            p(f'v_pk_add_f32 {vr(G + 2 * k, 2)}, {vr(G + 2 * k, 2)}, {vr(t, 2)}')
        U = ACC + 16
        for k in range(14):
            u = U + 2 * k
            p(f'v_lshlrev_b32 {vr(u)}, 16, {vr(vZ1 + k)}\nv_and_b32 {vr(u + 1)}, 0xffff0000, {vr(vZ1 + k)}')
        for pr in range(4):
            ks_ = range(4 * pr, min(4 * pr + 4, 14))
            for a in range(3):
                for k in ks_:
                    p(f'v_pk_add_f32 {vr(G + 2 * k, 2)}, {vr(G + 2 * k, 2)}, {vr(ZB + a * 28 + 2 * k, 2)}')
            for k in ks_:
                p(f'v_pk_mul_f32 {vr(G + 2 * k, 2)}, {vr(G + 2 * k, 2)}, {vr(U + 2 * k, 2)}')
            for k in ks_:
                p(f'v_cvt_pk_bf16_f32 {vr(D + k)}, {vr(G + 2 * k)}, {vr(G + 2 * k + 1)}')
            if pr < 3:
                p(f'buffer_store_dwordx4 {vr(D + 4 * pr, 4)}, {vr(vL16)}, {srd(sWS)}, s{sT4} offen{off(1024 * pr)} sc1',
                  tokw=['st6'])
        p(f"""v_mov_b32 {vr(D + 14)}, {vr(D + 12)}
v_mov_b32 {vr(D + 15)}, {vr(D + 13)}
v_permlane16_swap_b32 {vr(D + 12)}, {vr(D + 14)}
v_permlane16_swap_b32 {vr(D + 13)}, {vr(D + 15)}""")
        p(f'buffer_store_dwordx4 {vr(D + 12, 4)}, {vr(vYo)}, {srd(sWS)}, s{sT4} offen offset:3072 sc1', tokw=['st6'])
        p.need('pr')
        p('s_barrier')
        d = self.dma_wu(17, 11, 0, 'wuc')
        self.emit_groups(d[:self.c.wusplit])
        p.need('st6')
        self.arrive(vAr, (1 << self.NR) - 1)
        self.stamp(20)
        self.emit_groups(d[self.c.wusplit:])

    def phase6(self):
        p = self.p
        YB, RING, ACC, XF = 16, 128, 160, 176
        vPo, vO, vOo = 13, 8, 9
        K = 1024

        def wuaddr(ks, ct):
            if ks < 8:
                return 120 * K + (ks * 4 + ct) * K
            if ks < 17:
                return 84 * K + ((ks - 8) * 4 + ct) * K
            return ((ks - 17) * 4 + ct) * K
        p(f"""s_mul_i32 s{sT0}, s{sRT}, 28672
s_add_u32 s{sT0}, s{sT0}, {YF}
s_mul_i32 s{sT1}, s{sRT}, {16 * 896}
s_mul_i32 s{sT3}, s{sJ}, 112
s_add_u32 s{sT1}, s{sT1}, s{sT3}
v_mul_u32_u24 {vr(vO)}, 896, {vr(vC)}
v_lshl_add_u32 {vr(vO)}, {vr(vQ)}, 4, {vr(vO)}
v_cmp_eq_u32 vcc, 3, {vr(vQ)}
v_mov_b32 {vr(vOo)}, {OOR}
v_cndmask_b32 {vr(vOo)}, {vr(vO)}, {vr(vOo)}, vcc""")
        for g in range(4):
            p(f's_add_u32 s{sT2}, s{sJ}, {g}' if self.c.rot36 else f's_mov_b32 s{sT2}, {g}')
            p(f's_and_b32 s{sT2}, s{sT2}, 3\ns_mul_i32 s{sT2}, s{sT2}, 7168\ns_add_u32 s{88 + 2 * g}, s{sT2}, s{sT0}')
            p(f's_add_u32 s{89 + 2 * g}, s{88 + 2 * g}, 4096')
        for k in range(8):
            p(f'v_lshlrev_b32 {vr(XF + 2 * k)}, 16, {vr(vXR + k)}\nv_and_b32 {vr(XF + 2 * k + 1)}, 0xffff0000, {vr(vXR + k)}')
        self.poll(vPo, 8)
        self.stamp(21)

        def yld(ks):
            g, r = ks // 7, ks % 7
            return f'buffer_load_dwordx4 {vr(YB + 4 * ks, 4)}, {vr(vL16)}, {srd(sWS)}, s{88 + 2 * g + r // 4} offen' \
                   f'{off((r % 4) * K)} sc1'
        for ks in range(10):
            p(yld(ks))
        self.gemm_lds(28, 4, wuaddr, lambda ks: vr(YB + 4 * ks, 4), lambda ct: ACC + 4 * ct, RING, 8, True,
                      side={4 * ks: [yld(ks + 10)] for ks in range(18)}, hooks={17: self.bar('wuc')},
                      init=lambda ct: XF + 4 * ct)
        self.stamp(22)
        for k in range(8):
            p(f'v_cvt_pk_bf16_f32 {vr(vXR + k)}, {vr(ACC + 2 * k)}, {vr(ACC + 2 * k + 1)}')
            if k == 3:
                p(f'buffer_store_dwordx4 {vr(vXR, 4)}, {vr(vO)}, {srd(sOUT)}, s{sT1} offen {self.c.outsc}')
        p(f'buffer_store_dwordx4 {vr(vXR + 4, 4)}, {vr(vOo)}, {srd(sOUT)}, s{sT1} offen offset:64 {self.c.outsc}')

    def build(self):
        p = self.p
        c = self.c
        self.truemax = None
        self.prologue()
        self.phase1()
        self.spare()
        self.attention()
        for n, ph in ((3, self.phase3), (4, self.phase4), (5, self.phase5), (6, self.phase6)):
            if c.stop >= n and c.stop > 1:
                ph()
        if c.stop >= 6:
            Lz = p.label('nz')
            p(f's_cmp_lg_u32 s2, 224\ns_cbranch_scc1 {Lz}\ns_cmp_lg_u32 s{sW}, 0\ns_cbranch_scc1 {Lz}')
            p(f'v_mov_b32 {vr(vT)}, 0\ns_mov_b64 exec, 1')
            p(f'buffer_store_dword {vr(vT)}, {vr(vT)}, {srd(sDBG)}, 0 offen sc1\ns_mov_b64 exec, -1')
            p(f'{Lz}:')
        p('.Lexit:')
        if c.probe >= 0:
            p('s_waitcnt vmcnt(0)')
            self.stamp(23)
            p(f'''.Lspin:
s_memrealtime {sp(sTM + 2)}
s_waitcnt lgkmcnt(0)
s_sub_u32 s{sT0}, s{sTM + 2}, s{sTM}
s_cmp_lt_u32 s{sT0}, 8000
s_cbranch_scc1 .Lspin''')
        if c.diag:
            p('s_waitcnt vmcnt(0)')
            self.stamp(23)
            p(f'''s_lshl_b32 s{sT0}, s2, 2
s_add_u32 s{sT0}, s{sT0}, s{sW}
s_lshl_b32 s{sT0}, s{sT0}, 8
s_add_u32 s{sT0}, s{sT0}, {STAMP}
v_lshlrev_b32 {vr(vT)}, 2, {vr(vL)}
buffer_store_dword {vr(vST)}, {vr(vT)}, {srd(sWS)}, s{sT0} offen''')
        p('s_endpgm')
        if self.truemax:
            self.truemax()
        p('.Lend:')
        p('s_endpgm')
        p.insert_waits()
        nn = p.insert_nops()
        hdr = open('sequential_preLN__softmax_full_mha__mixer_gmlp__prompt.s.ref').read()
        hdr = hdr[:hdr.index('; Override launch')]
        txt = hdr + '; @launch grid=(256,1,1) block=(256,1,1) lds=163840\n'
        txt += f'''.amdgcn_target "amdgcn-amd-amdhsa--gfx950"
.text
.globl {NAME}
.p2align 8
.type {NAME},@function
{NAME}:
'''
        txt += p.text()
        txt += f'''.section .rodata,"a"
.p2align 6
.amdhsa_kernel {NAME}
  .amdhsa_next_free_vgpr 512
  .amdhsa_next_free_sgpr 102
  .amdhsa_accum_offset 256
  .amdhsa_group_segment_fixed_size 0
  .amdhsa_kernarg_size 88
  .amdhsa_user_sgpr_count 2
  .amdhsa_user_sgpr_kernarg_segment_ptr 1
  .amdhsa_system_sgpr_workgroup_id_x 1
  .amdhsa_float_denorm_mode_32 3
  .amdhsa_ieee_mode 0
.end_amdhsa_kernel
'''
        return txt, nn


def generate(**kw):
    c = Cfg()
    for k, v in kw.items():
        assert hasattr(c, k), k
        setattr(c, k, v)
    return Gen(c).build()


if __name__ == '__main__':
    out = sys.argv[1]
    kw = {}
    for a in sys.argv[2:]:
        k, v = a.split('=')
        kw[k] = eval(v)
    txt, nn = generate(**kw)
    open(out, 'w').write(txt)
    print('written', out, len(txt), 'bytes; nop states inserted:', nn)
```

```python
import sys, math, struct
sys.path.insert(0, 'work')
from asmlib import *

NAME = 'sequential_preLN__softmax_full_mha__mixer_gmlp__prompt_kernel'


class Cfg:
    diag = False
    stop = 99
    force_fb = False
    touch = False
    spf = False
    probe = -1
    outsc = ''
    ntsp = ''
    nt1 = ''
    spstep = 1.7
    splag = 10
    sleep = 0
    sptouch = False
    map48 = False
    z2split = 0
    z1split = 12
    wusplit = 10
    kgat = 3
    knorm = 6
    karr = 12
    gsplit = 40
    rlate = False
    stouch = 0
    pre0 = False
    slow0 = 4.5
    hyb = False
    ka = 12
    pm = 124
    vstep = 1.35
    sched = 1
    p0 = 36
    wog = 5
    sdelay = False
    wtouch = True
    zpre = 18
    tag = True
    nosp = 0
    wubat = 1
    map1 = 1
    wubmain = False
    wubearly = True
    fine = 0
    rot1 = True
    rotkv = True
    rot5 = True
    rot36 = False


def f2u(x):
    return struct.unpack('<I', struct.pack('<f', x))[0]


def hx(x):
    return hex(f2u(x))


CNT = 0x000000
ST = 0x020000
QF = 0x100000
KV = 0x300000
OF = 0x700000
HF = 0x900000
ZF = 0xB00000
YF = 0xF00000
WOF = 0x1300000
WIF = 0x1400000
WUF = 0x1600000
STAMP = 0x1700000
WS_SIZE = 0x1800000
OOR = 0x7F000000

sX, sWQ, sWS, sSP, sBS, sOUT, sDBG, sWO, sWI, sWU = 8, 12, 16, 20, 24, 28, 32, 36, 40, 44
sW, sI, sJ, sQB, sHD, sXC, sIDX, sRB, sCB, sRQ, sCH = 48, 49, 50, 51, 52, 53, 54, 55, 56, 57, 58
sTO, sFB, sRT = 59, 60, 61
sT0, sT1, sT2, sT3, sT4, sT5 = 62, 63, 64, 65, 66, 67
sM0, sM1, sM2 = 68, 70, 72
sA0, sA1, sA2, sA3 = 74, 75, 76, 77
sKV, sG, sL = 78, 79, 80
sK1, sK2 = 82, 84
sPC = 86
sRB4 = 4
sRA, sRAd, sRBs, sRBd, sRBj = 94, 95, 3, 81, 101
sTM = 96

vL, vL16, vC, vQ, vA1, vA2 = 0, 1, 2, 3, 4, 5
vT = 6
vXR = 216
vBS = 224
vZ1 = 226
vONE = 225
vST = 255


def srd(n):
    return f's[{n}:{n + 3}]'


def vr(b, n=1):
    return f'v{b}' if n == 1 else f'v[{b}:{b + n - 1}]'


def ar(b, n=1):
    return f'a{b}' if n == 1 else f'a[{b}:{b + n - 1}]'


def sp(n):
    return f's[{n}:{n + 1}]'


def mf16(d, a, b, c):
    cs = '0' if c is None else vr(c, 4)
    return f'v_mfma_f32_16x16x32_bf16 {vr(d, 4)}, {a}, {b}, {cs}'


def mf32(d, a, b, c):
    cs = '0' if c is None else vr(c, 16)
    a = a if isinstance(a, str) else vr(a, 4)
    return f'v_mfma_f32_32x32x16_bf16 {vr(d, 16)}, {a}, {vr(b, 4)}, {cs}'


def off(o):
    return f' offset:{o}' if o else ''


def lds_rd(dst, byte):
    base = (vL16, vA1, vA2)[byte >> 16]
    return f'ds_read_b128 {vr(dst, 4)}, {vr(base)}{off(byte & 0xffff)}'


class Gen:
    def __init__(self, cfg):
        self.c = cfg
        self.p = Prog()
        self.nstamp = 0
        self.stubs = []
        self.gotstamp = None
        self.NR, self.NC = (1, 8) if cfg.map48 else (2, 4)
        self.LR, self.LC = self.NR.bit_length() - 1, self.NC.bit_length() - 1
        self.C_S2 = 224
        self.C_S3 = self.C_S2 + 64 * self.NR
        self.C_S6 = self.C_S3 + 128 * self.NR
        self.C_S5 = self.C_S6 + 128 * self.NR
        self.C_RDY = self.C_S5 + 32 * self.NC
        assert self.C_RDY + 8 * self.NC <= 1024

    def stamp(self, n):
        if self.c.probe == n:
            self.p(f's_memrealtime {sp(sTM)}\ns_waitcnt lgkmcnt(0)')
        if self.c.diag:
            self.p(f's_memrealtime {sp(sTM)}\ns_memtime {sp(sTM + 2)}\ns_waitcnt lgkmcnt(0)\n'
                   f'v_writelane_b32 {vr(vST)}, s{sTM}, {n}\nv_writelane_b32 {vr(vST)}, s{sTM + 2}, {32 + n}')

    def finish(self):
        self.p('s_branch .Lexit')

    def poll(self, vaddr, expect, srdn=sWS, vtmp=vT):
        p = self.p
        L = p.label('poll')
        D = p.label('got')
        p(f'{L}:')
        p(f'buffer_load_dword {vr(vtmp)}, {vr(vaddr)}, {srd(srdn)}, 0 offen sc1')
        p(f'v_cmp_gt_u32 vcc, {expect}, {vr(vtmp)}')
        p(f's_cbranch_vccz {D}')
        if self.c.sleep:
            p(f's_sleep {self.c.sleep}')
        p(f's_sub_u32 s{sTO}, s{sTO}, 1\ns_cmp_lg_u32 s{sTO}, 0\ns_cbranch_scc1 {L}')
        p('s_branch .Lexit')
        p(f'{D}:')

    def check(self, vval, vaddr, expect, srdn=sWS):
        p = self.p
        D = p.label('ok')
        p(f'v_cmp_gt_u32 vcc, {expect}, {vr(vval)}')
        p(f's_cbranch_vccz {D}')
        self.poll(vaddr, expect, srdn, vval)
        p(f'{D}:')

    def arrive(self, vaddr, mask):
        p = self.p
        p(f's_mov_b64 exec, {mask}')
        p(f'buffer_atomic_add {vr(vONE)}, {vr(vaddr)}, {srd(sWS)}, 0 offen sc1')
        p('s_mov_b64 exec, -1')

    def dma_list(self, gsreg, gofs, ldsofs, nfrag, tok):
        k = (nfrag + 3) // 4
        out = []
        pre = [f's_mul_i32 s{sT5}, s{sW}, {k * 1024}',
               f's_min_u32 s{sT5}, s{sT5}, {(nfrag - k) * 1024}',
               f's_add_u32 s{sG}, s{gsreg}, s{sT5}',
               f's_add_u32 s{sL}, s{sT5}, {ldsofs}',
               f's_add_u32 s{sG}, s{sG}, {gofs}']
        out.append(pre)
        for n in range(k):
            g = []
            if n % 4 == 0:
                if n:
                    g += [f's_add_u32 s{sG}, s{sG}, 4096', f's_add_u32 s{sL}, s{sL}, 4096']
                g.append(f's_mov_b32 m0, s{sL}')
                out.append(g)
            out.append([(f'buffer_load_dwordx4 {vr(vL16)}, {srd(sWS)}, s{sG} offen{off((n % 4) * 1024)} sc1 lds',
                         [tok])])
        return out

    def dma_wu(self, n0, cnt, ldsofs, tok):
        if not self.c.rot36:
            return self.dma_list(sT2, n0 * 4096, ldsofs, 4 * cnt, tok)
        k = (cnt + 3) // 4
        out = [[f's_mul_i32 s{sT5}, s{sW}, {k}', f's_min_u32 s{sT5}, s{sT5}, {cnt - k}'],
               [f's_lshl_b32 s{sL}, s{sT5}, 12', f's_add_u32 s{sL}, s{sL}, {ldsofs}'],
               [f's_and_b32 s{sG}, s{sJ}, 3' if self.c.rot36 else f's_mov_b32 s{sG}, 0', f's_mul_i32 s{sG}, s{sG}, 7'],
               [f's_add_u32 s{sT5}, s{sT5}, s{sG}', f's_add_u32 s{sT5}, s{sT5}, {n0}']]
        for n in range(k):
            g = []
            if n:
                g += [f's_add_u32 s{sT5}, s{sT5}, 1', f's_add_u32 s{sL}, s{sL}, 4096']
            g += [f's_sub_u32 s{sG}, s{sT5}, 28', f's_cmp_ge_u32 s{sT5}, 28', f's_cselect_b32 s{sG}, s{sG}, s{sT5}']
            out.append(g)
            out.append([f's_lshl_b32 s{sG}, s{sG}, 12', f's_add_u32 s{sG}, s{sG}, s{sT2}', f's_mov_b32 m0, s{sL}'])
            for e in range(4):
                out.append([(f'buffer_load_dwordx4 {vr(vL16)}, {srd(sWS)}, s{sG} offen{off(e * 1024)} sc1 lds', [tok])])
        return out

    def emit_groups(self, groups):
        for g in groups:
            self.p.add(list(g))

    def prologue(self):
        p = self.p
        if self.c.probe == 100:
            p(f's_memrealtime {sp(sTM)}')
        p(f's_getpc_b64 {sp(sPC)}')
        p('.Lpc0:')
        p('s_cmp_ge_u32 s2, 256\ns_cbranch_scc1 .Lend')
        for reg, slot in ((sX, 0), (sWQ, 1), (sWS, 10), (sWO, 2), (sWI, 4), (sSP, 5), (sBS, 6), (sWU, 7), (sOUT, 8),
                          (sDBG, 9)):
            p(f's_load_dwordx2 {sp(reg)}, s[0:1], {slot * 8}')
        p(f'v_lshrrev_b32 {vr(vT)}, 6, v0')
        p(f'v_and_b32 {vr(vL)}, 63, v0')
        p(f'v_readfirstlane_b32 s{sW}, {vr(vT)}')
        for reg, size in ((sX, 1835008), (sWQ, 1204224), (sWS, WS_SIZE), (sWO, 401408), (sWI, 1605632),
                          (sSP, 8388608 + 4096), (sBS, 4096), (sWU, 802816), (sOUT, 1835008), (sDBG, 256)):
            p(f's_mov_b32 s{reg + 2}, {size}\ns_mov_b32 s{reg + 3}, 0x20000')
        p(f'''v_lshlrev_b32 {vr(vL16)}, 4, {vr(vL)}
v_and_b32 {vr(vC)}, 15, {vr(vL)}
v_lshrrev_b32 {vr(vQ)}, 4, {vr(vL)}
v_add_u32 {vr(vA1)}, 0x10000, {vr(vL16)}
v_add_u32 {vr(vA2)}, 0x20000, {vr(vL16)}
v_mov_b32 {vr(vONE)}, 1
s_and_b32 s{sXC}, s2, 7
s_lshr_b32 s{sIDX}, s2, 3
s_lshr_b32 s{sRQ}, s{sXC}, 1
s_and_b32 s{sCH}, s{sXC}, 1
s_mov_b32 s{sTO}, 30000
s_mov_b32 s{sFB}, 0''')
        if self.c.map48:
            p(f'''s_lshr_b32 s{sT0}, s{sIDX}, 3
s_lshl_b32 s{sI}, s{sXC}, 2
s_add_u32 s{sI}, s{sI}, s{sT0}
s_and_b32 s{sJ}, s{sIDX}, 7
s_mov_b32 s{sRQ}, s{sXC}
s_mov_b32 s{sCH}, 0''')
        else:
            p(f'''s_lshr_b32 s{sT0}, s{sIDX}, 2
s_lshl_b32 s{sI}, s{sRQ}, 3
s_add_u32 s{sI}, s{sI}, s{sT0}
s_and_b32 s{sT0}, s{sIDX}, 3
s_lshl_b32 s{sJ}, s{sCH}, 2
s_add_u32 s{sJ}, s{sJ}, s{sT0}''')
        p(f'''s_lshl_b32 s{sRT}, s{sI}, 2
s_add_u32 s{sRT}, s{sRT}, s{sW}''')
        p(f'''s_and_b32 s{sT0}, s{sIDX}, 1
s_lshl_b32 s{sHD}, s{sXC}, 1
s_add_u32 s{sHD}, s{sHD}, s{sT0}
s_lshr_b32 s{sQB}, s{sIDX}, 1''')
        if self.c.map1:
            p(f'''s_and_b32 s{sT0}, s{sXC}, 1
s_lshl_b32 s{sT0}, s{sT0}, 2
s_lshr_b32 s{sT1}, s{sIDX}, 3
s_add_u32 s{sCB}, s{sT0}, s{sT1}
s_lshr_b32 s{sT0}, s{sXC}, 1
s_lshl_b32 s{sT0}, s{sT0}, 3
s_and_b32 s{sT1}, s{sIDX}, 7
s_add_u32 s{sRB}, s{sT0}, s{sT1}
s_lshl_b32 s{sT0}, s{sXC}, 2
s_add_u32 s{sT0}, s{sT0}, s{sT1}
s_cmp_ge_u32 s{sIDX}, 24
s_cselect_b32 s{sCB}, 3, s{sCB}
s_cselect_b32 s{sRB}, s{sT0}, s{sRB}''')
        else:
            p(f'''s_mul_i32 s{sT0}, s{sIDX}, 37
s_lshr_b32 s{sT0}, s{sT0}, 8
s_mul_i32 s{sT1}, s{sT0}, 7
s_sub_u32 s{sCB}, s{sIDX}, s{sT1}
s_lshl_b32 s{sRB}, s{sXC}, 2
s_add_u32 s{sRB}, s{sRB}, s{sT0}''')
        if self.c.diag:
            p(f'v_mov_b32 {vr(vST)}, 0')
        if 0 <= self.c.probe < 100:
            p(f's_memrealtime {sp(sTM)}')
        p('s_waitcnt lgkmcnt(0)')
        p(f's_sub_u32 s{sSP}, s{sSP}, 4096\ns_subb_u32 s{sSP + 1}, s{sSP + 1}, 0')
        self.stamp(0)
        if self.c.touch:
            p(f'''s_lshl_b32 s{sT0}, s{sIDX}, 2
s_add_u32 s{sT0}, s{sT0}, s{sW}
s_mul_i32 s{sT1}, s{sT0}, {74 * 128}
s_mul_i32 s{sT2}, s{sT0}, {14 * 128}
s_mul_i32 s{sT3}, s{sXC}, {256 * 896}
s_add_u32 s{sT2}, s{sT2}, s{sT3}
s_add_u32 s{sT3}, s{sT1}, 8192
v_lshlrev_b32 {vr(vT)}, 7, {vr(vL)}
s_mov_b64 exec, 0x3fff
buffer_load_dword v252, {vr(vT)}, {srd(sX)}, s{sT2} offen
s_mov_b64 exec, -1
buffer_load_dword v253, {vr(vT)}, {srd(sWQ)}, s{sT1} offen
s_mov_b64 exec, 0x3ff
buffer_load_dword v254, {vr(vT)}, {srd(sWQ)}, s{sT3} offen
s_mov_b64 exec, -1''')
        p(f's_cmp_ge_u32 s{sIDX}, 28\ns_cbranch_scc1 .Lspare')

    RST = 106 * 1024
    vRI, vRB, vRT0, vRT1, vRD2, vRD = 240, 241, 252, 253, 238, 152

    def r_setup(self):
        p = self.p
        t = 6
        vI, vB, R0, R1, D2 = self.vRI, self.vRB, self.vRT0, self.vRT1, self.vRD2
        p(f"""s_cmp_ge_u32 s{sRT}, 56
s_cselect_b32 s{sT0}, 1, 0
s_mul_i32 s{sT1}, s{sT0}, 56
s_sub_u32 s{sT1}, s{sRT}, s{sT1}
s_lshr_b32 s{sT1}, s{sT1}, 2
s_and_b32 s{sT2}, s{sRT}, 3
s_mul_i32 s{sRA}, s{sT1}, {32 * 3584}
s_mul_i32 s{sT3}, s{sJ}, 224
s_add_u32 s{sRA}, s{sRA}, s{sT3}
s_lshl_b32 s{sT3}, s{sT2}, 6
s_add_u32 s{sRA}, s{sRA}, s{sT3}
s_xor_b32 s{sT3}, s{sT0}, 1
s_mul_i32 s{sT3}, s{sT3}, 1792
s_add_u32 s{sRA}, s{sRA}, s{sT3}
s_lshl_b32 s{sRAd}, s{sJ}, 1
s_add_u32 s{sRAd}, s{sRAd}, s{sT0}
s_mul_i32 s{sRAd}, s{sRAd}, 105
s_mul_i32 s{sT3}, s{sT1}, 7
s_add_u32 s{sRAd}, s{sRAd}, s{sT3}
s_lshl_b32 s{sT3}, s{sT2}, 1
s_add_u32 s{sRAd}, s{sRAd}, s{sT3}
s_lshl_b32 s{sRAd}, s{sRAd}, 10
s_add_u32 s{sRAd}, s{sRAd}, {WIF}
s_cmp_ge_u32 s{sRT}, 112
s_cselect_b32 s{sRA}, {OOR}, s{sRA}
s_cselect_b32 s{sRAd}, {OOR}, s{sRAd}
s_cmp_eq_u32 s{sT2}, 3
s_cselect_b64 vcc, -1, 0
s_mul_i32 s{sT4}, s{sW}, 12288
s_add_u32 s{sT4}, s{sT4}, {self.RST}
v_and_b32 {vr(t + 1)}, 3, {vr(vC)}
v_add_u32 {vr(R0)}, s{sT4}, {vr(vL16)}
v_and_b32 {vr(t)}, 60, {vr(vL)}
v_lshrrev_b32 {vr(R1)}, 1, {vr(t + 1)}
v_add_u32 {vr(t)}, {vr(t)}, {vr(R1)}
v_lshlrev_b32 {vr(t)}, 4, {vr(t)}
v_and_b32 {vr(R1)}, 1, {vr(t + 1)}
v_lshl_add_u32 {vr(t)}, {vr(R1)}, 3, {vr(t)}
v_add_u32 {vr(t)}, s{sT4}, {vr(t)}
v_mov_b32 {vr(D2)}, {OOR}
v_cndmask_b32 {vr(R1)}, {vr(R0)}, {vr(t)}, vcc
v_cndmask_b32 {vr(D2)}, {vr(vL16)}, {vr(D2)}, vcc
v_lshrrev_b32 {vr(t + 2)}, 2, {vr(vC)}
v_lshl_add_u32 {vr(t)}, {vr(vQ)}, 3, {vr(t + 2)}
v_mul_u32_u24 {vr(vI)}, 3584, {vr(t)}
v_lshl_add_u32 {vr(vI)}, {vr(t + 1)}, 4, {vr(vI)}
v_lshrrev_b32 {vr(vB)}, 1, {vr(vQ)}
v_lshlrev_b32 {vr(vB)}, 4, {vr(vB)}
v_and_b32 {vr(t + 3)}, 1, {vr(vQ)}
v_lshl_add_u32 {vr(vB)}, {vr(t + 3)}, 2, {vr(vB)}
v_add_u32 {vr(vB)}, {vr(vB)}, {vr(t + 2)}""")
        p(f"""s_mov_b32 s{sRBj}, {4 * 896}
s_mov_b32 s{sT1}, {32 * 896}
s_mov_b32 s{sT3}, {WUF}
s_cmp_ge_u32 s{sRT}, 96
s_cselect_b64 vcc, -1, 0
s_cselect_b64 {sp(sRB4)}, {sp(sWO)}, {sp(sWU)}
s_cselect_b32 s{sRB4 + 2}, s{sWO + 2}, s{sWU + 2}
s_cselect_b32 s{sRBj}, {8 * 896}, s{sRBj}
s_cselect_b32 s{sT0}, 96, 0
s_cselect_b32 s{sT1}, {28 * 896}, s{sT1}
s_cselect_b32 s{sT2}, 16, 28
s_cselect_b32 s{sT3}, {WOF}, s{sT3}
s_mov_b32 s{sRB4 + 3}, 0x20000
s_sub_u32 s{sT0}, s{sRT}, s{sT0}
s_lshr_b32 s{sT0}, s{sT0}, 1
s_mul_i32 s{sRBs}, s{sT0}, s{sT1}
s_mul_i32 s{sT1}, s{sJ}, 112
s_add_u32 s{sRBs}, s{sRBs}, s{sT1}
s_and_b32 s{sT1}, s{sRT}, 1
s_lshl_b32 s{sT4}, s{sT1}, 6
s_add_u32 s{sRBs}, s{sRBs}, s{sT4}
s_mul_i32 s{sRBd}, s{sJ}, s{sT2}
s_add_u32 s{sRBd}, s{sRBd}, s{sT0}
s_lshl_b32 s{sRBd}, s{sRBd}, 1
s_add_u32 s{sRBd}, s{sRBd}, s{sT1}
s_lshl_b32 s{sRBd}, s{sRBd}, 11
s_add_u32 s{sRBd}, s{sRBd}, s{sT3}
s_sub_u32 s{sT0}, s{sRT}, 56
s_cmp_lt_u32 s{sT0}, 40
s_cselect_b32 s{sRBs}, {OOR}, s{sRBs}
s_cselect_b32 s{sRBd}, {OOR}, s{sRBd}
v_cndmask_b32 {vr(vB)}, {vr(t)}, {vr(vB)}, vcc
v_mul_u32_u24 {vr(vB)}, 896, {vr(vB)}
v_lshl_add_u32 {vr(vB)}, {vr(t + 1)}, 4, {vr(vB)}""")

    def r_issue(self):
        o = [[f's_mul_i32 s{sL}, s{sW}, 12288', f's_add_u32 m0, s{sL}, {self.RST}'],
             [(f'buffer_load_dwordx4 {vr(self.vRI)}, {srd(sWI)}, s{sRA} offen lds', ['rl'])],
             [f's_add_u32 s{sG}, s{sRA}, {4 * 3584 - 1024}'],
             [(f'buffer_load_dwordx4 {vr(self.vRI)}, {srd(sWI)}, s{sG} offen offset:1024 lds', ['rl'])],
             [f's_add_u32 m0, s{sL}, {self.RST + 2048}'],
             [(f'buffer_load_dwordx4 {vr(self.vRB)}, {srd(sRB4)}, s{sRBs} offen lds', ['rl'])],
             [f's_add_u32 s{sG}, s{sRBs}, s{sRBj}', f's_sub_u32 s{sG}, s{sG}, 1024'],
             [(f'buffer_load_dwordx4 {vr(self.vRB)}, {srd(sRB4)}, s{sG} offen offset:1024 lds', ['rl'])]]
        return o

    def r_finish(self):
        p = Prog()
        p.need('rl')
        for n in range(2):
            d = self.vRD + 8 * n
            for e in range(2):
                for jj in range(2):
                    base = self.vRT1 if (n == 0 and e == 0) else self.vRT0
                    p(f'ds_read_b64_tr_b16 {vr(d + 4 * e + 2 * jj, 2)}, {vr(base)}{off(n * 2048 + jj * 1024 + 8 * e)}')
        for n in range(2):
            d = self.vRD + 8 * n
            sd = (sRAd, sRBd)[n]
            p(f'buffer_store_dwordx4 {vr(d, 4)}, {vr(vL16)}, {srd(sWS)}, s{sd} offen sc1', tokw=['rst'])
            p(f'buffer_store_dwordx4 {vr(d + 4, 4)}, {vr(self.vRD2 if n == 0 else vL16)}, {srd(sWS)}, s{sd} offen'
              f' offset:1024 sc1', tokw=['rst'])
        return p.ins

    def sp_touch(self, main):
        if not self.c.sptouch:
            return []
        v = 245
        o = [[f's_lshl_b32 s{sT5}, s{sIDX}, 2', f's_add_u32 s{sT5}, s{sT5}, s{sW}']]
        if main:
            o += [[f's_mul_i32 s{sT5}, s{sT5}, 3']]
        else:
            o += [[f's_sub_u32 s{sT5}, s{sT5}, 112', f's_mul_i32 s{sT5}, s{sT5}, 11', f's_add_u32 s{sT5}, s{sT5}, 336']]
        o += [[f's_lshl_b32 s{sG}, s{sRQ}, 9', f's_add_u32 s{sT5}, s{sT5}, s{sG}'],
              [f's_lshl_b32 s{sT5}, s{sT5}, 12', f's_lshl_b32 s{sG}, s{sCH}, 11'],
              [f's_add_u32 s{sT5}, s{sT5}, s{sG}', f's_add_u32 s{sT5}, s{sT5}, 4096'],
              [f'v_lshlrev_b32 {vr(v)}, 12, {vr(vQ)}', f'v_lshl_add_u32 {vr(v)}, {vr(vC)}, 7, {vr(v)}']]
        n = 1 if main else 3
        for k in range(n):
            last = k == n - 1
            g = ['s_mov_b32 exec_hi, 0xffff'] if last else []
            g.append(f'buffer_load_dword {vr(v + 1 + k)}, {vr(v)}, {srd(sSP)}, s{sT5} offen')
            g.append('s_mov_b32 exec_hi, -1' if last else f's_add_u32 s{sT5}, s{sT5}, {4 * 4096}')
            o.append(g)
        return o

    def sentinel_init(self):
        p = self.p
        a, d = vT, vT + 2
        p(f'''s_lshl_b32 s{sT0}, s{sRT}, 3
s_add_u32 s{sT0}, s{sT0}, s{sJ}
s_lshl_b32 s{sT0}, s{sT0}, 7
s_add_u32 s{sT0}, s{sT0}, {ST}
v_mov_b32 {vr(d)}, -1
v_mov_b32 {vr(d + 1)}, -1
v_mov_b32 {vr(d + 2)}, -1
v_mov_b32 {vr(d + 3)}, -1
s_mov_b64 exec, 0xff''')
        p(f'buffer_store_dwordx4 {vr(d, 4)}, {vr(vL16)}, {srd(sWS)}, s{sT0} offen sc1', tokw=['sent'])
        p('s_mov_b64 exec, -1')

    def ln_finish(self, sumreg, sqreg, va, t, vperm):
        return [
            f'v_cndmask_b32 {vr(t)}, {vr(sqreg)}, {vr(sqreg + 1)}, {sp(sM0)}',
            f'v_cndmask_b32 {vr(t + 1)}, {vr(sqreg + 2)}, {vr(sqreg + 3)}, {sp(sM0)}',
            f'v_cndmask_b32 {vr(t)}, {vr(t)}, {vr(t + 1)}, {sp(sM1)}',
            f'ds_bpermute_b32 {vr(t)}, {vr(vperm)}, {vr(t)}',
            f'v_mul_f32 {vr(va + 1)}, {hx(-1.0 / 448)}, {vr(sumreg)}',
            f'v_mul_f32 {vr(t + 1)}, {vr(va + 1)}, {vr(va + 1)}',
            f'v_sub_f32 {vr(t + 1)}, {hx(1e-5)}, {vr(t + 1)}',
            f'v_fmac_f32 {vr(t + 1)}, {hx(1.0 / 448)}, {vr(t)}',
            f'v_max_f32 {vr(t + 1)}, {hx(1e-5)}, {vr(t + 1)}',
            f'v_rsq_f32 {vr(va)}, {vr(t + 1)}',
        ]

    def ln_masks(self, vperm):
        p = self.p
        p(f"""v_and_b32 {vr(vT)}, 1, {vr(vC)}
v_cmp_ne_u32 {sp(sM0)}, 0, {vr(vT)}
v_and_b32 {vr(vT)}, 2, {vr(vC)}
v_cmp_ne_u32 {sp(sM1)}, 0, {vr(vT)}
v_lshrrev_b32 {vr(vT)}, 2, {vr(vC)}
v_lshl_add_u32 {vr(vT)}, {vr(vT)}, 4, {vr(vC)}
v_lshlrev_b32 {vr(vperm)}, 2, {vr(vT)}""")

    def phase1(self):
        p = self.p
        ACC, CS, SA, XF, WF, ONES = 16, 64, 76, 84, 124, 148
        acc = lambda sec, tt: ACC + (sec * 4 + tt) * 4
        xf = lambda b, tt: XF + (b * 5 + tt) * 4
        wf = lambda b, sec: WF + (b * 3 + sec) * 4
        vX0, vX1, vW0, vW1 = 152, 153, 154, 155
        rX0, rX1, rO0, rO1, rW = 156, 157, 158, 159, 160
        vPerm, vFl, t = 161, 162, 6
        CH = 32768
        STS = 156 * 1024
        p(f"""v_lshrrev_b32 {vr(t)}, 3, {vr(vL)}
v_and_b32 {vr(t + 1)}, 7, {vr(vL)}
v_xor_b32 {vr(t + 2)}, {vr(t + 1)}, {vr(vQ)}
v_mul_u32_u24 {vr(vX0)}, 896, {vr(t)}
v_xor_b32 {vr(t + 3)}, 4, {vr(t + 2)}
v_lshl_add_u32 {vr(vX1)}, {vr(t + 3)}, 4, {vr(vX0)}
v_lshl_add_u32 {vr(vX0)}, {vr(t + 2)}, 4, {vr(vX0)}
v_add_u32 {vr(vX1)}, {8 * 896 - 1024}, {vr(vX1)}
v_and_b32 {vr(t + 2)}, 1, {vr(vQ)}
v_lshlrev_b32 {vr(t + 2)}, 1, {vr(t + 2)}
v_xor_b32 {vr(t + 2)}, {vr(t + 2)}, {vr(t + 1)}
v_mul_u32_u24 {vr(vW0)}, 2688, {vr(t)}
v_xor_b32 {vr(t + 3)}, 4, {vr(t + 2)}
v_lshl_add_u32 {vr(vW1)}, {vr(t + 3)}, 4, {vr(vW0)}
v_lshl_add_u32 {vr(vW0)}, {vr(t + 2)}, 4, {vr(vW0)}
v_add_u32 {vr(vW1)}, {8 * 2688 - 1024}, {vr(vW1)}
s_lshl_b32 s{sT0}, s{sRB}, 2
s_add_u32 s{sT0}, s{sT0}, s{sW}
s_mul_i32 s{sA0}, s{sT0}, {16 * 896}
s_mul_i32 s{sA1}, s{sW}, {16 * 2688}
s_lshl_b32 s{sT0}, s{sCB}, 7
s_add_u32 s{sA1}, s{sA1}, s{sT0}
s_lshl_b32 s{sA2}, s{sW}, 11""")
        hyb = self.c.hyb and self.c.rot1
        if hyb:
            p(f"""s_and_b32 s{sT0}, s{sRB}, 3
s_mul_i32 s{sT0}, s{sT0}, 3
s_add_u32 s{sT0}, s{sT0}, 1
s_lshr_b32 s{sT0}, s{sT0}, 1
s_add_u32 s{sA3}, s{sT0}, s{sCB}
s_sub_u32 s{sT0}, s{sA3}, 6
s_cmp_ge_u32 s{sA3}, 6
s_cselect_b32 s{sA3}, s{sT0}, s{sA3}""")
        elif self.c.rot1 and self.c.map1:
            p(f"""s_and_b32 s{sA3}, s{sRB}, 7
s_and_b32 s{sT0}, s{sCB}, 3
s_lshl_b32 s{sT0}, s{sT0}, 1
s_add_u32 s{sA3}, s{sA3}, s{sT0}
s_sub_u32 s{sT0}, s{sA3}, 7
s_cmp_ge_u32 s{sA3}, 7
s_cselect_b32 s{sA3}, s{sT0}, s{sA3}""")
        elif self.c.rot1:
            p(f"""s_and_b32 s{sA3}, s{sRB}, 3
s_lshl_b32 s{sA3}, s{sA3}, 1
s_add_u32 s{sA3}, s{sA3}, s{sCB}
s_sub_u32 s{sT0}, s{sA3}, 7
s_cmp_ge_u32 s{sA3}, 7
s_cselect_b32 s{sA3}, s{sT0}, s{sA3}""")
        else:
            p(f's_mov_b32 s{sA3}, 0')

        def chunk(m):
            base = (m % 4) * CH
            o = []
            ld = lambda v, rs, so, o_: [(f'buffer_load_dwordx4 {vr(v)}, {srd(rs)}, s{so} offen{off(o_)} lds', [f'c{m}'])]
            if m == 0 and hyb:
                o += [[f's_mov_b32 s{sT4}, s{sA0}'], [f's_mov_b32 s{sT5}, s{sA1}']]
            else:
                if m:
                    o += [[f's_add_u32 s{sA3}, s{sA3}, 1'], [f's_cmp_eq_u32 s{sA3}, 7', f's_cselect_b32 s{sA3}, {int(hyb)}, s{sA3}']]
                o += [[f's_lshl_b32 s{sT4}, s{sA3}, 7'], [f's_mul_i32 s{sT5}, s{sA3}, {64 * 2688}'],
                      [f's_add_u32 s{sT4}, s{sT4}, s{sA0}'], [f's_add_u32 s{sT5}, s{sT5}, s{sA1}']]
            o += [[f's_add_u32 m0, s{sA2}, {base}'], ld(vX0, sX, sT4, 0), ld(vX1, sX, sT4, 1024)]
            for sec in range(3):
                o += [[f's_add_u32 m0, s{sA2}, {base + 8192 * (sec + 1)}']]
                if sec:
                    o += [[f's_add_u32 s{sT5}, s{sT5}, 896']]
                o += [ld(vW0, sWQ, sT5, 0), ld(vW1, sWQ, sT5, 1024)]
            return o
        self.emit_groups(chunk(0))
        self.emit_groups(chunk(1))
        p(f"""v_lshrrev_b32 {vr(t)}, 1, {vr(vC)}
v_xor_b32 {vr(t)}, {vr(t)}, {vr(vQ)}
v_lshlrev_b32 {vr(t)}, 4, {vr(t)}
v_lshl_add_u32 {vr(rX0)}, {vr(vC)}, 7, {vr(t)}
v_xor_b32 {vr(rX1)}, 64, {vr(rX0)}
v_add_u32 {vr(rO0)}, s{sA2}, {vr(rX0)}
v_add_u32 {vr(rO1)}, s{sA2}, {vr(rX1)}
v_lshrrev_b32 {vr(t)}, 2, {vr(vC)}
v_lshl_add_u32 {vr(rW)}, {vr(vQ)}, 3, {vr(t)}
v_lshlrev_b32 {vr(rW)}, 7, {vr(rW)}
v_lshrrev_b32 {vr(t)}, 3, {vr(vC)}
v_and_b32 {vr(t + 1)}, 1, {vr(vQ)}
v_lshl_add_u32 {vr(t)}, {vr(t + 1)}, 1, {vr(t)}
v_xor_b32 {vr(t)}, s{sW}, {vr(t)}
v_lshl_add_u32 {vr(rW)}, {vr(t)}, 5, {vr(rW)}
v_and_b32 {vr(t)}, 3, {vr(vC)}
v_lshl_add_u32 {vr(rW)}, {vr(t)}, 3, {vr(rW)}""")
        for r in range(4):
            p(f'v_mov_b32 {vr(ONES + r)}, 0x3f803f80')
        self.ln_masks(vPerm)
        vP, vH, vS, vQa, vKa, vQb, vKb, vVa, vVc, vAr = 164, 165, 166, 167, 168, 169, 170, 171, 172, 173
        vVd, vK0, vK1, vSt, vSv = 176, 174, 175, 180, 181
        p(f"""s_lshl_b32 s{sT0}, s{sCB}, 2
s_add_u32 s{sKV}, s{sT0}, s{sW}
s_lshl_b32 s{sT0}, s{sKV}, 1
v_lshrrev_b32 {vr(vP)}, 1, {vr(vQ)}
v_add_u32 {vr(vP)}, s{sT0}, {vr(vP)}
v_mul_u32_u24 {vr(vH)}, 37, {vr(vP)}
v_lshrrev_b32 {vr(vH)}, 8, {vr(vH)}
v_mul_u32_u24 {vr(vS)}, 7, {vr(vH)}
v_sub_u32 {vr(vP)}, {vr(vP)}, {vr(vS)}
v_cmp_eq_u32 {sp(sM2)}, 3, {vr(vP)}
v_lshrrev_b32 {vr(vS)}, 2, {vr(vP)}
v_lshl_add_u32 {vr(vH)}, {vr(vH)}, 1, {vr(vS)}
v_and_b32 {vr(vS)}, 3, {vr(vP)}
v_lshlrev_b32 {vr(vS)}, 9, {vr(vS)}
v_lshl_add_u32 {vr(vQa)}, {vr(vH)}, 17, {vr(vS)}
v_lshl_add_u32 {vr(vKa)}, {vr(vH)}, 18, {vr(vS)}
v_and_b32 {vr(vS)}, 31, {vr(vL)}
v_lshl_add_u32 {vr(vQa)}, {vr(vS)}, 4, {vr(vQa)}
v_and_b32 {vr(vS)}, 8, {vr(vC)}
v_add_u32 {vr(vS)}, {vr(vS)}, {vr(vC)}
v_and_b32 {vr(vP)}, 1, {vr(vQ)}
v_lshl_add_u32 {vr(vS)}, {vr(vP)}, 3, {vr(vS)}
v_lshl_add_u32 {vr(vKa)}, {vr(vS)}, 4, {vr(vKa)}
v_mov_b32 {vr(vS)}, {OOR}
v_add_u32 {vr(vQb)}, 0x20000, {vr(vQa)}
v_add_u32 {vr(vKb)}, 0x40000, {vr(vKa)}
v_cndmask_b32 {vr(vQb)}, {vr(vS)}, {vr(vQb)}, {sp(sM2)}
v_cndmask_b32 {vr(vKb)}, {vr(vS)}, {vr(vKb)}, {sp(sM2)}
s_lshl_b32 s{sT0}, s{sKV}, 4
v_add_u32 {vr(vP)}, s{sT0}, {vr(vC)}
v_mul_u32_u24 {vr(vH)}, 2341, {vr(vP)}
v_lshrrev_b32 {vr(vH)}, 16, {vr(vH)}
v_mul_u32_u24 {vr(vVa)}, 28, {vr(vH)}
v_sub_u32 {vr(vP)}, {vr(vP)}, {vr(vVa)}
v_lshlrev_b32 {vr(vVa)}, 18, {vr(vH)}
v_lshl_add_u32 {vr(vVa)}, {vr(vQ)}, 9, {vr(vVa)}
v_lshl_add_u32 {vr(vVa)}, {vr(vP)}, 4, {vr(vVa)}
v_cmp_le_u32 vcc, 24, {vr(vP)}
v_add_u32 {vr(vVc)}, 64, {vr(vVa)}
v_cndmask_b32 {vr(vVc)}, {vr(vS)}, {vr(vVc)}, vcc
v_cmp_eq_u32 vcc, 24, {vr(vP)}
v_mov_b32 {vr(vK0)}, 0x3f803f80
v_mov_b32 {vr(vK1)}, 0x3f80
v_cndmask_b32 {vr(vVd)}, 0, {vr(vK0)}, vcc
v_mov_b32 {vr(vVd + 1)}, {vr(vVd)}
v_mov_b32 {vr(vVd + 2)}, {vr(vVd)}
v_mov_b32 {vr(vVd + 3)}, {vr(vVd)}
s_lshl_b32 s{sT0}, s{sKV}, 2
s_lshr_b32 s{sT1}, s{sRB}, 3
s_add_u32 s{sT0}, s{sT0}, s{sT1}
s_lshl_b32 s{sT0}, s{sT0}, 8
v_lshlrev_b32 {vr(vAr)}, 7, {vr(vL)}
v_add_u32 {vr(vAr)}, s{sT0}, {vr(vAr)}
s_lshl_b32 s{sT0}, s{sW}, 7
s_add_u32 s{sT0}, s{sT0}, {STS}
v_lshlrev_b32 {vr(vSt)}, 3, {vr(vC)}
v_add_u32 {vr(vH)}, s{sT0}, {vr(vSt)}
v_add_u32 {vr(vSt)}, {STS}, {vr(vSt)}
v_lshlrev_b32 {vr(vSv)}, 5, {vr(vQ)}
v_add_u32 {vr(vSv)}, {STS}, {vr(vSv)}""")
        vSw = vH
        self.r_setup()
        self.sentinel_init()

        def rds(ks):
            m, e, b = ks // 2, ks % 2, ks % 2
            base = (m % 2) * CH
            o = []
            for sec in (1, 2, 0):
                for jj in range(2):
                    o.append(f'ds_read_b64_tr_b16 {vr(wf(b, sec) + 2 * jj, 2)}, {vr(rW)}'
                             f'{off(base + 8192 * (sec + 1) + e * 4096 + jj * 512)}')
                if sec == 1:
                    for tt in range(4):
                        o.append(f'ds_read_b128 {vr(xf(b, tt), 4)}, {vr((rX0, rX1)[e])}{off(base + tt * 2048)}')
            o.append(f'ds_read_b128 {vr(xf(b, 4), 4)}, {vr((rO0, rO1)[e])}{off(base)}')
            return o

        def move(delta):
            return [f'v_add_u32 {vr(r)}, {delta & 0xffffffff}, {vr(r)}' for r in (rX0, rX1, rO0, rO1, rW)]
        p.need('c0')
        p('s_barrier')
        self.stamp(1)
        p.add(rds(0))
        ones = vr(ONES, 4)
        side = chunk(2)
        for ks in range(14):
            b = ks % 2
            nx = ks + 1
            if nx < 14 and nx % 2 == 0:
                m = nx // 2
                self.emit_groups(side)
                side = []
                p.need(f'c{m}')
                p('s_barrier')
                if m % 2 == 0:
                    p.add(move(2 * CH if m % 4 == 2 else -2 * CH))
                if m + 2 < 7:
                    side = chunk(m + 2)
                elif m == 5:
                    side = ([] if self.c.rlate else self.r_issue()) + self.sp_touch(True)
            if self.c.fine == 1 and ks % 2 == 1:
                self.stamp(24 + ks // 2)
            R = rds(nx) if nx < 14 else []
            z = ks == 0
            ms = []
            for sec in (1, 2, 0):
                w_ = vr(wf(b, sec), 4)
                for tt in range(4):
                    x_ = vr(xf(b, tt), 4)
                    a_, b_ = (w_, x_) if sec < 2 else (x_, w_)
                    ms.append(mf16(acc(sec, tt), a_, b_, None if z else acc(sec, tt)))
                a_, b_ = (w_, ones) if sec < 2 else (ones, w_)
                ms.append(mf16(CS + 4 * sec, a_, b_, None if z else CS + 4 * sec))
            xo = vr(xf(b, 4), 4)
            st = [mf16(SA, ones, xo, None if z else SA), mf16(SA + 4, xo, xo, None if z else SA + 4)]
            ms = (st + ms) if ks == 13 else (ms + st)
            fin = self.ln_finish(SA, SA + 4, t + 4, t, vPerm) if ks == 13 else []
            isv = lambda g_: (g_[0][0] if isinstance(g_[0], tuple) else g_[0]).startswith('buffer')
            for n, m_ in enumerate(ms):
                p(m_)
                didS = False
                if side and not isv(side[0]):
                    p.add(list(side.pop(0)))
                    didS = True
                if R and (n % 3 != 2 or len(R) >= len(ms) - n):
                    p(R.pop(0))
                elif side and isv(side[0]) and not didS:
                    p.add(list(side.pop(0)))
                elif fin and n >= 5:
                    p(fin.pop(0))
            p.add(fin)
            if ks == 8:
                p(f'v_mov_b32 {vr(vFl)}, 0')
                p(f'buffer_load_dword {vr(vFl)}, {vr(vFl)}, {srd(sDBG)}, 0 offen sc1')
        self.stamp(2)
        p('s_mov_b64 exec, 0xffff')
        p(f'ds_write_b64 {vr(vSw)}, {vr(t + 4, 2)}', tokw=['lnw'])
        p('s_mov_b64 exec, -1')
        qs = math.log2(math.e) / math.sqrt(28.0)
        p(f"""s_lshl_b32 s{sT0}, s{sRB}, 12
s_add_u32 s{sT0}, s{sT0}, {QF}
s_lshl_b32 s{sT1}, s{sRB}, 13
s_add_u32 s{sT1}, s{sT1}, {KV}
s_add_u32 s{sT2}, s{sT1}, 4096""")
        p.need('lnw')
        p('s_barrier')
        if self.c.fine == 11:
            self.stamp(24)
        TK, TV, D = XF, XF + 8, 184
        for tt in range(4):
            p(f'ds_read_b64 {vr(TK + 2 * tt, 2)}, {vr(vSt)}{off(128 * tt)}')
        for tt in range(4):
            for h in range(2):
                p(f'ds_read_b128 {vr(TV + 8 * tt + 4 * h, 4)}, {vr(vSv)}{off(128 * tt + 16 * h)}')

        def qk_store(sec, tp, d):
            for e in range(2):
                tt = 2 * tp + e
                st = vr(TK + 2 * tt, 2)
                for h in range(2):
                    a = vr(acc(sec, tt) + 2 * h, 2)
                    p(f'v_pk_fma_f32 {a}, {vr(CS + 4 * sec + 2 * h, 2)}, {st}, {a} op_sel:[0,1,0] op_sel_hi:[1,1,1]')
                    p(f'v_pk_mul_f32 {a}, {a}, {st} op_sel_hi:[1,0]')
                a = acc(sec, tt)
                p(f'v_cvt_pk_bf16_f32 {vr(d + 2 * e)}, {vr(a)}, {vr(a + 1)}')
                p(f'v_cvt_pk_bf16_f32 {vr(d + 2 * e + 1)}, {vr(a + 2)}, {vr(a + 3)}')
            c0, c1 = ('0', '0') if sec == 0 else (vr(vK0), vr(vK1))
            p(f'v_mov_b32 {vr(d + 6)}, {c0}\nv_mov_b32 {vr(d + 7)}, {c1}')
            p(f'v_permlane16_swap_b32 {vr(d)}, {vr(d + 2)}')
            p(f'v_permlane16_swap_b32 {vr(d + 1)}, {vr(d + 3)}')
            p(f"""v_mov_b32 {vr(d + 4)}, {vr(d + 2)}
v_mov_b32 {vr(d + 5)}, {vr(d + 3)}
v_cndmask_b32 {vr(d + 2)}, {vr(d + 2)}, {vr(d + 6)}, {sp(sM2)}
v_cndmask_b32 {vr(d + 3)}, {vr(d + 3)}, {vr(d + 7)}, {sp(sM2)}""")
            va, vb, so, o = (vQa, vQb, sT0, 2048 * tp) if sec == 0 else (vKa, vKb, (sT1, sT2)[tp], 0)
            p(f'buffer_store_dwordx4 {vr(d, 4)}, {vr(va)}, {srd(sWS)}, s{so} offen{off(o)} sc1', tokw=['st1'])
            p(f'buffer_store_dwordx4 {vr(d + 4, 4)}, {vr(vb)}, {srd(sWS)}, s{so} offen{off(o)} sc1', tokw=['st1'])

        qk_store(1, 0, D)
        qk_store(1, 1, D + 8)
        for tp in range(2):
            d = D + 16 + 4 * tp
            for e in range(2):
                tt = 2 * tp + e
                for r in range(4):
                    a = acc(2, tt) + r
                    st = TV + 8 * tt + 2 * r
                    p(f'v_fmac_f32 {vr(a)}, {vr(st + 1)}, {vr(CS + 8)}')
                    p(f'v_mul_f32 {vr(a)}, {vr(a)}, {vr(st)}')
                a = acc(2, tt)
                p(f'v_cvt_pk_bf16_f32 {vr(d + 2 * e)}, {vr(a)}, {vr(a + 1)}')
                p(f'v_cvt_pk_bf16_f32 {vr(d + 2 * e + 1)}, {vr(a + 2)}, {vr(a + 3)}')
            so = (sT1, sT2)[tp]
            p(f'buffer_store_dwordx4 {vr(d, 4)}, {vr(vVa)}, {srd(sWS)}, s{so} offen offset:2048 sc1', tokw=['st1'])
            p(f'buffer_store_dwordx4 {vr(vVd, 4)}, {vr(vVc)}, {srd(sWS)}, s{so} offen offset:2048 sc1', tokw=['st1'])
        for tt in range(4):
            p(f'v_mul_f32 {vr(TK + 2 * tt)}, {hx(qs)}, {vr(TK + 2 * tt)}')
        qk_store(0, 0, D + 24)
        qk_store(0, 1, D + 32)
        if self.c.rlate:
            self.emit_groups(self.r_issue())
        if self.c.fine == 11:
            self.stamp(25)
        p(f'v_mov_b32 {vr(vP)}, 0')
        self.check(vFl, vP, 32, sDBG)
        p.need('st1', 'sent')
        self.arrive(vAr, 3)
        self.stamp(3)
        self.attn_setup()
        p('s_branch .Lattn')

    def spare(self):
        p = self.p
        p('.Lspare:')
        sSPI, sOM = sT0, sA0
        t = 6
        p(f'''s_lshl_b32 s{sOM}, s{sXC}, 2
s_add_u32 s{sOM}, s{sOM}, s{sIDX}
s_sub_u32 s{sOM}, s{sOM}, 28
s_lshl_b32 s{sOM}, s{sOM}, 2
s_add_u32 s{sOM}, s{sOM}, s{sW}''')
        p(f's_lshl_b32 s{sT1}, s{sOM}, 10')
        for r in range(4):
            p(f'v_mov_b32 {vr(8 + r)}, 0')
        p(f'buffer_store_dwordx4 {vr(8, 4)}, {vr(vL16)}, {srd(sWS)}, s{sT1} offen sc1', tokw=['z'])
        p(f'''s_sub_u32 s{sT1}, s{sIDX}, 28
s_lshl_b32 s{sT1}, s{sT1}, 2
s_add_u32 s{sT1}, s{sT1}, s{sW}
s_lshl_b32 s{sT1}, s{sT1}, 13
v_lshlrev_b32 {vr(t)}, 7, {vr(vL)}
v_add_u32 {vr(t)}, s{sT1}, {vr(t)}
s_mov_b32 s{sT1}, .Lend-.Lpc0
v_min_u32 {vr(t)}, s{sT1}, {vr(t)}
global_load_dword {vr(250)}, {vr(t)}, {sp(sPC)}''')
        p.need('z')
        p('s_barrier')
        p(f's_cmp_lg_u32 s{sW}, 0\ns_cbranch_scc1 .Lnozero')
        p(f's_mov_b64 exec, 1\nbuffer_atomic_add {vr(vONE)}, {vr(8)}, {srd(sDBG)}, 0 offen sc1\ns_mov_b64 exec, -1')
        p('.Lnozero:')
        if self.c.sdelay:
            p(f'v_mov_b32 {vr(12)}, 0')
            self.poll(12, 32, sDBG, 13)
        if self.c.wtouch:
            p(f'''v_lshlrev_b32 v100, 7, {vr(vL)}
s_mul_i32 s{sT1}, s{sOM}, {49 * 128}
s_mul_i32 s{sT2}, s{sOM}, {25 * 128}
s_mov_b32 exec_hi, 0x1ffff
buffer_load_dword v101, v100, {srd(sWU)}, s{sT1} offen
s_mov_b64 exec, 0x1ffffff
buffer_load_dword v102, v100, {srd(sWO)}, s{sT2} offen
s_mov_b64 exec, -1''')
        if self.c.stouch:
            p(f'''s_sub_u32 s{sT5}, s{sIDX}, 28
s_lshl_b32 s{sT5}, s{sT5}, 2
s_add_u32 s{sT5}, s{sT5}, s{sW}
s_lshl_b32 s{sT5}, s{sT5}, 4
s_lshl_b32 s{sG}, s{sXC}, 8
s_add_u32 s{sT5}, s{sT5}, s{sG}
s_lshl_b32 s{sT5}, s{sT5}, 12
s_add_u32 s{sT5}, s{sT5}, 4096
v_lshlrev_b32 v100, 12, {vr(vQ)}
v_lshl_add_u32 v100, {vr(vC)}, 8, v100''')
            for k in range(self.c.stouch):
                p(f'buffer_load_dword v{101 + k}, v100, {srd(sSP)}, s{sT5} offen\ns_add_u32 s{sT5}, s{sT5}, {4 * 4096}')
        B, A, vS = 16, 72, 14
        p(f'''s_mul_i32 s{sT0}, s{sOM}, 2341
s_lshr_b32 s{sA1}, s{sT0}, 16
s_mul_i32 s{sT0}, s{sA1}, 28
s_sub_u32 s{sA2}, s{sOM}, s{sT0}
s_mul_i32 s{sT0}, s{sA1}, {112 * 3584}
s_lshl_b32 s{sT1}, s{sA2}, 7
s_add_u32 s{sT0}, s{sT0}, s{sT1}
v_lshrrev_b32 {vr(t)}, 3, {vr(vL)}
v_and_b32 {vr(t + 1)}, 7, {vr(vL)}
v_mul_u32_u24 {vr(vS)}, 3584, {vr(t)}
v_lshl_add_u32 {vr(vS)}, {vr(t + 1)}, 4, {vr(vS)}''')
        for n in range(14):
            p(f's_add_u32 s{sT1}, s{sT0}, {n * 8 * 3584}')
            p(f'buffer_load_dwordx4 {vr(B + 4 * n, 4)}, {vr(vS)}, {srd(sWI)}, s{sT1} offen')
        n_, f_, j_, u_, m_ = 80, 81, 82, 83, 84
        p(f'''s_lshl_b32 s{sT1}, s{sA2}, 6
v_lshl_add_u32 {vr(n_)}, {vr(t + 1)}, 3, {vr(t)}
v_add_u32 {vr(n_)}, s{sT1}, {vr(n_)}
v_cmp_gt_u32 vcc, 896, {vr(n_)}
v_subrev_u32 {vr(f_)}, 896, {vr(n_)}
v_cndmask_b32 {vr(f_)}, {vr(f_)}, {vr(n_)}, vcc
v_cndmask_b32 {vr(n_)}, 0, {vr(vONE)}, vcc
v_lshrrev_b32 {vr(j_)}, 4, {vr(f_)}
v_mul_u32_u24 {vr(j_)}, 37, {vr(j_)}
v_lshrrev_b32 {vr(j_)}, 8, {vr(j_)}
v_mul_u32_u24 {vr(u_)}, 112, {vr(j_)}
v_sub_u32 {vr(f_)}, {vr(f_)}, {vr(u_)}
v_lshl_add_u32 {vr(j_)}, {vr(j_)}, 1, {vr(n_)}
v_mul_u32_u24 {vr(j_)}, 105, {vr(j_)}
v_lshrrev_b32 {vr(u_)}, 5, {vr(f_)}
v_bfe_u32 {vr(n_)}, {vr(f_)}, 2, 1
v_lshl_add_u32 {vr(u_)}, {vr(u_)}, 1, {vr(n_)}
v_bfe_u32 {vr(m_)}, {vr(f_)}, 3, 2
v_and_b32 {vr(n_)}, 3, {vr(f_)}
v_lshl_add_u32 {vr(m_)}, {vr(m_)}, 2, {vr(n_)}
v_cmp_gt_u32 vcc, 96, {vr(f_)}
v_subrev_u32 {vr(n_)}, 96, {vr(f_)}
v_cndmask_b32 {vr(m_)}, {vr(n_)}, {vr(m_)}, vcc
v_cndmask_b32 {vr(u_)}, 6, {vr(u_)}, vcc
v_add_u32 {vr(j_)}, {vr(j_)}, {vr(u_)}
v_lshlrev_b32 {vr(j_)}, 10, {vr(j_)}
v_lshl_add_u32 {vr(j_)}, {vr(m_)}, 4, {vr(j_)}
s_lshl_b32 s{sT1}, s{sA1}, 8
s_add_u32 s{sT1}, s{sT1}, {WIF + 98 * 1024}
s_cmp_ge_u32 s{sOM}, 112
s_cselect_b32 s{sA3}, {OOR}, s{sT1}''')
        self.r_setup()
        self.emit_groups(self.r_issue())
        self.sentinel_init()
        for n in range(14):
            for d in range(4):
                r = B + 4 * n + d
                if n == 0:
                    p(f'v_lshlrev_b32 {vr(A + 2 * d)}, 16, {vr(r)}\nv_and_b32 {vr(A + 2 * d + 1)}, 0xffff0000, {vr(r)}')
                else:
                    u = 86 + 2 * (d % 2)
                    p(f'v_lshlrev_b32 {vr(u)}, 16, {vr(r)}\nv_and_b32 {vr(u + 1)}, 0xffff0000, {vr(r)}')
                    p(f'v_pk_add_f32 {vr(A + 2 * d, 2)}, {vr(A + 2 * d, 2)}, {vr(u, 2)}')
        for k in range(4):
            p(f'v_permlane32_swap_b32 {vr(A + k)}, {vr(A + k + 4)}')
        for k in range(4):
            p(f'v_add_f32 {vr(A + k)}, {vr(A + k)}, {vr(A + k + 4)}')
        for k in range(2):
            p(f'v_permlane16_swap_b32 {vr(A + k)}, {vr(A + k + 2)}')
        for k in range(2):
            p(f'v_add_f32 {vr(A + k)}, {vr(A + k)}, {vr(A + k + 2)}')
        for k in range(2):
            p(f'v_add_f32_dpp {vr(A + k)}, {vr(A + k)}, {vr(A + k)} row_ror:8 row_mask:0xf bank_mask:0xf')
        p(f'''v_mov_b32_dpp {vr(A)}, {vr(A + 1)} quad_perm:[0,1,2,3] row_mask:0xf bank_mask:0xc
v_cvt_pk_bf16_f32 {vr(B)}, {vr(A)}, {vr(A)}
v_and_b32 {vr(A + 1)}, 0xffff0000, {vr(B)}
v_sub_f32 {vr(A)}, {vr(A)}, {vr(A + 1)}
v_cvt_pk_bf16_f32 {vr(B + 1)}, {vr(A)}, {vr(A)}
v_mov_b32 {vr(B + 2)}, 0
v_mov_b32 {vr(B + 3)}, 0''')
        p(f'buffer_store_dwordx4 {vr(B, 4)}, {vr(j_)}, {srd(sWS)}, s{sA3} offen sc1', tokw=['cst'])
        if not self.c.sdelay:
            p(f'v_mov_b32 {vr(12)}, 0')
            self.poll(12, 32, sDBG, 13)
        p(f'''v_lshlrev_b32 {vr(15)}, 7, {vr(vL)}
v_add_u32 {vr(15)}, {CNT + self.C_RDY * 128}, {vr(15)}''')
        p.need('cst', 'sent')
        p('s_barrier')
        La = p.label('noarr')
        p(f's_cmp_lg_u32 s{sW}, 0\ns_cbranch_scc1 {La}')
        if self.NC == 4:
            p(f's_mov_b32 exec_hi, 0')
        p(f'buffer_atomic_add {vr(vONE)}, {vr(15)}, {srd(sWS)}, 0 offen sc1')
        p('s_mov_b64 exec, -1')
        p(f'{La}:')
        self.emit_groups(self.sp_touch(False))
        self.attn_setup()
        self.stamp(3)

    def attn_setup(self):
        p = self.p
        c = self.c
        SCR = 106 * 1024
        vPo, vSP, vRdy, vRv, vW0, vRa, t = 7, 8, 9, 10, 11, 14, 244
        p(f'''s_mul_i32 s{sT0}, s{sHD}, 28
s_lshr_b32 s{sT1}, s{sT0}, 4
s_add_u32 s{sT0}, s{sT0}, 27
s_lshr_b32 s{sT2}, s{sT0}, 4
s_lshr_b32 s{sT3}, s{sQB}, 2
s_lshr_b32 s{sT4}, s{sHD}, 1
v_and_b32 {vr(vPo)}, 3, {vr(vL)}
v_add_u32 {vr(vPo)}, s{sT1}, {vr(vPo)}
v_min_u32 {vr(vPo)}, s{sT2}, {vr(vPo)}
v_mul_u32_u24 {vr(t)}, {16 * 2341}, {vr(vPo)}
v_lshrrev_b32 {vr(t)}, 17, {vr(t)}
v_sub_u32 {vr(t)}, s{sT4}, {vr(t)}
v_lshl_add_u32 {vr(vPo)}, {vr(vPo)}, 3, {vr(t)}
v_mov_b32 {vr(t)}, s{sW}
v_mov_b32 {vr(t + 2)}, s{sT3}
v_and_b32 {vr(t + 1)}, 4, {vr(vL)}
v_cmp_ne_u32 vcc, 0, {vr(t + 1)}
v_cndmask_b32 {vr(t)}, {vr(t)}, {vr(t + 2)}, vcc
v_lshl_add_u32 {vr(vPo)}, {vr(t)}, 1, {vr(vPo)}
v_lshlrev_b32 {vr(vPo)}, 7, {vr(vPo)}''')
        vD, vE = 226, 234
        p(f'''s_lshl_b32 s{sT0}, s{sJ}, {7 + self.LC}
s_add_u32 s{sT0}, s{sT0}, {CNT + self.C_RDY * 128}
v_lshlrev_b32 {vr(vRv)}, 7, {vr(vL)}
v_add_u32 {vr(vRa)}, s{sT0}, {vr(vRv)}
s_lshl_b32 s{sT1}, s{sRQ}, 7
s_add_u32 s{sT1}, s{sT1}, {CNT + self.C_RDY * 128}
v_and_b32 {vr(vRdy)}, 7, {vr(vL)}
v_lshlrev_b32 {vr(vRdy)}, {7 + self.LC}, {vr(vRdy)}
v_add_u32 {vr(vRdy)}, s{sT1}, {vr(vRdy)}
v_cmp_lt_u32 {sp(sM2)}, 31, {vr(vL)}
v_lshrrev_b32 {vr(t)}, 3, {vr(vL)}
v_and_b32 {vr(t + 1)}, 7, {vr(vL)}
v_xor_b32 {vr(t + 1)}, {vr(t + 1)}, {vr(vQ)}
v_lshlrev_b32 {vr(t)}, 12, {vr(t)}
v_lshl_add_u32 {vr(t)}, {vr(t + 1)}, 4, {vr(t)}
v_xor_b32 {vr(t + 1)}, 64, {vr(t)}
v_lshrrev_b32 {vr(t + 2)}, 1, {vr(vC)}
v_xor_b32 {vr(t + 2)}, {vr(t + 2)}, {vr(vQ)}
v_lshlrev_b32 {vr(t + 2)}, 4, {vr(t + 2)}
v_lshl_add_u32 {vr(t + 2)}, {vr(vC)}, 7, {vr(t + 2)}
v_xor_b32 {vr(t + 3)}, 64, {vr(t + 2)}
s_lshl_b32 s{sA1}, s{sW}, 14
s_mul_i32 s{sA2}, s{sW}, 12288
s_add_u32 s{sA2}, s{sA2}, {SCR}
v_add_u32 {vr(vE)}, s{sA1}, {vr(t + 2)}
v_add_u32 {vr(vE + 1)}, s{sA1}, {vr(t + 3)}
v_add_u32 {vr(vE + 2)}, s{sA2}, {vr(t + 2)}
v_add_u32 {vr(vE + 3)}, s{sA2}, {vr(t + 3)}
v_add_u32 {vr(vSP)}, s{sA2}, {vr(vL16)}
s_lshl_b32 s{sA0}, s{sI}, 18''')
        for a in range(4):
            p(f's_add_u32 s{sT0}, s{sW}, {1 + a}\ns_and_b32 s{sT0}, s{sT0}, 3')
            p(f'''s_lshl_b32 s{sT1}, s{sT0}, 16
s_lshl_b32 s{sT2}, s{sW}, 10
s_add_u32 s{sT1}, s{sT1}, s{sT2}
s_add_u32 s{sT2}, s{sT1}, {4096 - 2048 * (a % 2)}
v_add_u32 {vr(vD + 2 * a)}, s{sT2}, {vr(t)}
s_add_u32 s{sT2}, s{sT1}, {4096 + 8 * 4096 - 2048 * (a % 2) - 1024}
v_add_u32 {vr(vD + 2 * a + 1)}, s{sT2}, {vr(t + 1)}''')
            if a < 3:
                p(f'''s_add_u32 s{sT1}, s{sW}, {3 - a}
s_and_b32 s{sT1}, s{sT1}, 3
s_mul_i32 s{sT1}, s{sT1}, 12288
s_add_u32 s{sT1}, s{sT1}, {SCR + a * 4096}
v_add_u32 {vr(vW0 + a)}, s{sT1}, {vr(vL16)}''')
            p(f'''s_lshl_b32 s{sT1}, s{sHD}, 6
s_lshl_b32 s{sT2}, s{sQB}, 2
s_add_u32 s{sT1}, s{sT1}, s{sT2}
s_add_u32 s{sT1}, s{sT1}, s{sT0}
s_lshl_b32 s{sT1}, s{sT1}, 11
s_add_u32 s{88 + a}, s{sT1}, {QF}''')
        p(f'''s_lshl_b32 s{sT0}, s{sHD}, 18
s_add_u32 s{sT0}, s{sT0}, {KV}
s_lshl_b32 s{sT1}, s{sQB}, 14
s_add_u32 s{92}, s{sT0}, s{sT1}
s_lshl_b32 s{sT1}, s{sW}, 16
s_add_u32 s{93}, s{sT0}, s{sT1}''')
        sKR, sSR = sK2, sK2 + 1
        if c.rot5:
            p(f's_lshl_b32 s{sSR}, s{sJ}, 7' if c.map48 else f's_and_b32 s{sSR}, s{sJ}, 3\ns_lshl_b32 s{sSR}, s{sSR}, 8')
        else:
            p(f's_mov_b32 s{sSR}, 0')
        for g in range(8):
            p(f's_add_u32 s{sT4}, s{sSR}, {128 * g}\ns_and_b32 s{sT4}, s{sT4}, 1023\ns_add_u32 s{36 + g}, s{sT4}, s{sA0}')
        p(f'''s_mul_i32 s{sT1}, s{sJ}, {210 * 1024}
s_mul_i32 s{sT5}, s{sW}, {11 * 1024}
s_min_u32 s{sT5}, s{sT5}, {31 * 1024}
s_add_u32 s44, s{sT1}, s{sT5}
s_add_u32 s44, s44, {WIF}
s_add_u32 s45, s{sT5}, {64 * 1024}
s_lshl_b32 s46, s{sJ}, 16''')
        p(f's_add_u32 s{sT1}, s{sW}, s{sJ}' if c.rot36 else f's_mov_b32 s{sT1}, s{sW}')
        p(f'''s_and_b32 s{sT1}, s{sT1}, 3
s_lshl_b32 s{sT1}, s{sT1}, 14
s_add_u32 s46, s46, s{sT1}
s_add_u32 s46, s46, {WOF}
s_mul_i32 s47, s{sRT}, {16 * 896}
s_mul_i32 s{sT1}, s{sJ}, 112
s_add_u32 s47, s47, s{sT1}
v_mul_u32_u24 v239, 896, {vr(vC)}
v_lshl_add_u32 v239, {vr(vQ)}, 4, v239
s_lshl_b32 s88, s{sRT}, 5
v_lshlrev_b32 v15, 1, {vr(vC)}''')

    def attention(self):
        p = self.p
        c = self.c
        vD, vE = 226, 234
        sKR, sSR = sK2, sK2 + 1
        Q, O, S, P, KB = 16, 48, 112, 144, 152
        SCR, FLG = 106 * 1024, 155 * 1024
        vPo, vSP, vRdy, vRv, vW0 = 7, 8, 9, 10, 11
        vM = 240
        t = 244
        vRa = 14
        qf = lambda a, u: Q + 8 * a + 4 * u
        kf = lambda b, u: KB + 16 * b + 4 * u
        vf = lambda b, u: KB + 16 * b + 8 + 4 * u
        p('.Lattn:')
        if c.stop <= 1:
            self.finish()
            return
        self.pre0_at = len(p.ins)
        self.poll(vPo, 8)
        self.stamp(4)
        QS = 96 * 1024
        p(f's_lshl_b32 s{sT0}, s{sW}, 11\ns_add_u32 m0, s{sT0}, {QS}')
        for u in range(2):
            p(f'buffer_load_dwordx4 {vr(vL16)}, {srd(sWS)}, s91 offen{off(1024 * u)} sc1 lds', tokw=['q'])
        p(f's_and_b32 s{sT0}, s{sW}, 1\ns_lshl_b32 s{sT0}, s{sT0}, 10\ns_add_u32 m0, s{sT0}, {QS + 8192}')
        p(f's_add_u32 s{sT0}, s{sT0}, s92')
        p(f'buffer_load_dwordx4 {vr(vL16)}, {srd(sWS)}, s{sT0} offen sc1 lds', tokw=['q'])

        def kvreg(tl, which):
            if tl >= 12:
                return vr(KB + 16 * (tl - 12) + 4 * which, 4)
            g, hh = 2 + tl // 2, tl % 2
            return ar((2 * hh + which // 2) * 64 + 8 * g + 4 * (which % 2), 4)

        def kvload(tl, which):
            return f'buffer_load_dwordx4 {kvreg(tl, which)}, {vr(vL16)}, {srd(sWS)}, s{sKV} offen' \
                   f'{off(1024 * which)} sc1'

        def kvnext():
            return [f's_add_u32 s{sKR}, s{sKR}, 4096', f's_and_b32 s{sKR}, s{sKR}, 0xffff', f's_add_u32 s{sKV}, s93, s{sKR}']

        def first_kv(t0=0, t1=3):
            if t0 == 0:
                p(f's_lshl_b32 s{sKR}, s{sQB}, 12' if c.rotkv else f's_mov_b32 s{sKR}, 0')
            for tl in range(t0, t1):
                p.add(kvnext())
                for wch in range(4):
                    p(kvload(tl, wch))
        first_kv(0, 1)
        for a in range(4):
            p(f's_add_u32 s{sT0}, s{sW}, {1 + a}\ns_and_b32 s{sT0}, s{sT0}, 3\ns_lshl_b32 s{sT0}, s{sT0}, 11')
            p(f'v_add_u32 {vr(t + 4 + a)}, s{sT0}, {vr(vA1)}')
        p.need('q')
        if self.c.fine == 11:
            self.stamp(27)
        p('s_barrier')
        if self.c.fine == 11:
            self.stamp(28)
        for u in range(2):
            p(f'ds_read_b128 {vr(kf(3, u), 4)}, {vr(vA1)}{off(32768 + 8192 + 1024 * u)}')
        for a in range(4):
            for u in range(2):
                p(f'ds_read_b128 {vr(qf(a, u), 4)}, {vr(t + 4 + a)}{off(32768 + 1024 * u)}')
        self.pre_at = len(p.ins)

        def tile_max(a, b, first):
            s = S + 16 * (a % 2)
            o = [mf32(s, kf(b, 0), qf(a, 0), None), mf32(s, kf(b, 1), qf(a, 1), s)]
            m = vM + a
            v = [f'v_max3_f32 {vr(m)}, {vr(s)}, {vr(s + 1)}, {vr(s + 2) if first else vr(m)}']
            rest = list(range(3 if first else 2, 16))
            while len(rest) >= 2:
                v.append(f'v_max3_f32 {vr(m)}, {vr(s + rest[0])}, {vr(s + rest[1])}, {vr(m)}')
                rest = rest[2:]
            if rest:
                v.append(f'v_max_f32 {vr(m)}, {vr(s + rest[0])}, {vr(m)}')
            return o, v

        def max_pass(b, first):
            ms = [tile_max(a, b, first) for a in range(4)]
            ex = []
            if first:
                for tl in (1, 2):
                    ex += [kvnext() + [kvload(tl, 0)]] + [[kvload(tl, wch)] for wch in (1, 2, 3)]

            def mf(a):
                for m_ in ms[a][0]:
                    p(m_)
                    if ex:
                        p.add(ex.pop(0))
            mf(0)
            for a in range(4):
                if a < 3:
                    mf(a + 1)
                p.add(ms[a][1])

        def half_max():
            for a in range(4):
                p(f'v_mov_b32 {vr(t + a)}, {vr(vM + a)}')
            for a in range(4):
                p(f'v_permlane32_swap_b32 {vr(t + a)}, {vr(vM + a)}')
            for a in range(4):
                p(f'v_max_f32 {vr(vM + a)}, {vr(t + a)}, {vr(vM + a)}')

        def patch_q(full):
            for a in range(4):
                m = vM + a
                p(f'v_sub_f32 {vr(m)}, 0, {vr(m)}')
                p(f'v_cvt_pk_bf16_f32 {vr(t)}, {vr(m)}, 0')
                if full:
                    p(f'''v_lshlrev_b32 {vr(t + 1)}, 16, {vr(t)}
v_sub_f32 {vr(m)}, {vr(m)}, {vr(t + 1)}
v_cvt_pk_bf16_f32 {vr(t + 1)}, {vr(m)}, 0
v_lshlrev_b32 {vr(t + 1)}, 16, {vr(t + 1)}
v_sub_f32 {vr(m)}, {vr(m)}, {vr(t + 1)}
v_or_b32 {vr(t)}, {vr(t)}, {vr(t + 1)}
v_cvt_pk_bf16_f32 {vr(t + 1)}, {vr(m)}, 0
v_cndmask_b32 {vr(qf(a, 1) + 3)}, {vr(qf(a, 1) + 3)}, {vr(t + 1)}, {sp(sM2)}''')
                p(f'v_cndmask_b32 {vr(qf(a, 1) + 2)}, {vr(qf(a, 1) + 2)}, {vr(t)}, {sp(sM2)}')
        if self.c.fine == 11:
            self.stamp(29)
        max_pass(3, True)
        half_max()
        patch_q(False)
        def owrite(a):
            return [[(f'ds_write_b128 {vr(vSP)}, {vr(O + 16 * a + 4 * k, 4)}{off(4096 * a + 1024 * k)}', ['ow'])]
                    for k in range(4)]
        p(f'''v_and_b32 {vr(vPo)}, 1, {vr(vQ)}
v_lshlrev_b32 {vr(vPo)}, 10, {vr(vPo)}
v_lshrrev_b32 {vr(t)}, 1, {vr(vQ)}
v_lshl_add_u32 {vr(vPo)}, {vr(t)}, 8, {vr(vPo)}
v_lshl_add_u32 {vr(vPo)}, {vr(vC)}, 4, {vr(vPo)}''')
        if c.tag:
            p(f'''s_mul_i32 s89, s{sRT}, 14336
s_mul_i32 s{sT2}, s{sJ}, {7 * 256}
s_add_u32 s89, s89, s{sT2}
s_add_u32 s89, s89, {HF}
v_cmp_eq_u32 vcc, 3, {vr(vQ)}
v_mov_b32 {vr(t)}, {OOR}
v_cndmask_b32 {vr(t)}, {vr(vL16)}, {vr(t)}, vcc''')
            for r in range(4):
                p(f'v_mov_b32 {vr(vM + r)}, -1')
        p(f's_mov_b32 s90, s91')
        p('.Lsweep:')
        p(f'''s_lshl_b32 s{sA3}, s{sW}, 13
s_add_u32 s{sA3}, s{sA3}, {64 * 1024}
s_sub_u32 s{sT0}, s{sA3}, s{sA1}
v_add_u32 v250, s{sT0}, {vr(vE)}
v_add_u32 v251, s{sT0}, {vr(vE + 1)}''')
        if c.sched == 5:
            p(f's_lshl_b32 s{sT0}, s{sJ}, 2\ns_add_u32 s{sT0}, s{sT0}, s{sW}\ns_lshl_b32 s{sT0}, s{sT0}, 13\n'
              f's_add_u32 s{sT0}, s{sT0}, 4096\nv_lshlrev_b32 v254, 7, {vr(vL)}\nv_add_u32 v254, s{sT0}, v254')
        if c.sched in (3, 4):
            p(f's_lshl_b32 s{sT0}, s{sW}, 10\ns_add_u32 s{sT0}, s{sT0}, 4096\nv_lshlrev_b32 v254, 12, {vr(vL)}\nv_add_u32 v254, s{sT0}, v254')
        self.stamp(5)
        NP = 256
        Ss = [None] * NP
        Ms = [[] for _ in range(NP)]
        valid = lambda q: 0 <= q < NP and q not in (2, 252, 253)

        def putS(item, lo, hi=None):
            rng = range(hi, lo - 1, -1) if hi is not None else range(lo, NP)
            for q in rng:
                if valid(q) and Ss[q] is None:
                    Ss[q] = item
                    return q
            raise AssertionError((item, lo, hi))

        def putM(item, lo, vm):
            for q in range(lo, NP):
                if valid(q) and not any(k == vm for k, _ in Ms[q]):
                    Ms[q].append((vm, item))
                    return q
            raise AssertionError(item)

        def stream(items, start, step):
            cur = start - 1
            tgt = float(start)
            last = start
            for k, it in items:
                if k == 'S':
                    cur = putS(it, cur + 1)
                elif k == 'N':
                    cur = putS(it, max(cur + 1, int(tgt))) - 1
                else:
                    cur = putM(it, max(cur + 1, int(tgt)), k)
                    tgt = max(tgt, cur - 1) + step
                    last = cur
            return last
        need = lambda *tk: ('; need', [], list(tk))
        for tl in range(2, 15):
            Ss[16 * tl + 11] = need(f'k{tl + 1}')
            Ss[16 * (tl + 1) + 2] = need(f'v{tl + 1}')
        for a in range(2):
            for k in range(4):
                Ms[248 + 4 * a + k].append(('D', owrite(a)[k][0]))

        def kv_items(t0, t1):
            it = []
            for tl in range(t0, t1):
                it += [('V', (kvload(tl, wch).replace(f's{sKV} ', f's{(sKV, sL)[tl % 2]} '), [f'{"kkvv"[wch]}{tl}']))
                       for wch in range(4)]
            return it

        def kv_scalar(tl, lo, hi):
            q = lo
            for x in kvnext():
                q = putS(x.replace(f's{sKV},', f's{(sKV, sL)[tl % 2]},'), q) + 1
            assert q <= hi, (tl, q, hi)

        def kv_stream(t0, t1, start, step):
            pos_ = start
            for tl in range(t0, t1):
                first = int(pos_)
                if tl > 3:
                    kv_scalar(tl, self._kvs, 10 ** 6)
                    first = max(first, max(q for q in range(NP) if Ss[q] is not None and isinstance(Ss[q], str)
                                           and f's{(sKV, sL)[tl % 2]},' in Ss[q]) + 1)
                self._kvs = first
                last = stream(kv_items(tl, tl + 1), first, step)
                assert last < 16 * (tl - 1) + 11 or tl < 4, (tl, last)
                pos_ = last + step
            return int(pos_)

        def sp_items(g, n0, n1):
            sb, ob = (sA1, 8192 * g) if g < 2 else ((sA2, 0) if g % 2 == 0 else (sA3, 0))
            it = []
            for n in range(n0, n1):
                if n % 4 == 0 or n == n0:
                    it.append(('S', f's_add_u32 m0, s{sb}, {ob + 1024 * (n - n % 4)}'))
                it.append(('V', (f'buffer_load_dwordx4 {vr(vD + n)}, {srd(sSP)}, s{36 + g} offen{off(1024 * (n % 4))} lds',
                                 [f'sd{g}'])))
            return it

        def sp_reads(g, start):
            ob = 8192 * g if g < 2 else 0
            ve = vE if g < 2 else (vE + 2 if g % 2 == 0 else 250)
            it = [('N', need(f'sd{g}'))]
            for a in range(4):
                for e in range(2):
                    it.append(('D', (f'ds_read_b128 {ar((a * 16 + 2 * g + e) * 4, 4)}, '
                                     f'{vr(ve + e)}{off(ob + a * 2048)}', [f'sr{g}'])))
            return stream(it, max(start, 32 * (g - 1) + 4), 1.0)
        rf = self.r_finish()
        stream([('N', rf[0])] + [('D', x) for x in rf[1:9]], 0, 1.0)
        self._kvs = 0
        misc = [('V', x) for x in rf[9:]]
        if c.tag:
            st = lambda va, so, o_: ('V', (f'buffer_store_dwordx4 {vr(vM, 4)}, {vr(va)}, {srd(sWS)}, s{so} offen{off(o_)} sc1', ['rst']))
            misc += [st(vL16, 90, 0), st(vL16, 90, 1024), st(vL16, 89, 0), st(t, 89, 1024)]
        misc += [('V', f'buffer_load_dwordx4 {vr(vXR, 4)}, v239, {srd(sX)}, s47 offen'),
                 ('V', f'buffer_load_dwordx4 {vr(vXR + 4, 4)}, v239, {srd(sX)}, s47 offen offset:64'),
                 ('V', f'buffer_load_ushort {vr(vBS)}, v15, {srd(sBS)}, s88 offen')]
        rend = {}
        self.pre_items = []
        wo_it = []
        for n in range(16):
            if n % 4 == 0:
                wo_it += [('S', f's_add_u32 s{sG}, s46, {1024 * n}'), ('S', f's_add_u32 m0, s{sA1}, {1024 * n}')]
            wo_it.append(('V', (f'buffer_load_dwordx4 {vr(vL16)}, {srd(sWS)}, s{sG} offen{off(1024 * (n % 4))} sc1 lds', ['wo'])))
        if c.sched == 1:
            pos = kv_stream(3, 5, 0, c.vstep)
            pos = stream(misc[:-3], max(pos, 11), c.vstep) + 1
            pos = kv_stream(5, c.ka, pos, c.vstep)
            putS('ARRIVE', pos - 6)
            pos = stream(misc[-3:] + sp_items(0, 0, 8), pos, c.vstep) + 1
            pos = stream(sp_items(1, 0, 3), pos, c.vstep) + 1
            pos = stream(sp_items(1, 3, 8), max(pos, c.pm - 26), c.vstep) + 1
            rend[0] = sp_reads(0, c.pm)
            rend[1] = sp_reads(1, max(rend[0] + 1, pos + c.splag))
        elif c.sched in (3, 4, 5):
            tch = lambda g: ('V', f'buffer_load_dword v{248 + g}, v254, {srd(sSP)}, s{36 + g} offen')
            pos = kv_stream(3, c.ka, 0, c.vstep)
            pos = stream(misc, max(pos, 12), c.vstep) + 1
            if c.sched == 3:
                pos = stream(sp_items(0, 0, 8) + [tch(1)], pos, c.vstep) + 1
                putS('ARRIVE', pos + 6)
                rend[0] = sp_reads(0, c.pm)
                pos = max(pos, c.pm)
            else:
                pos = stream([tch(0), tch(1)] if c.sched == 4 else
                             [('V', f'buffer_load_dword v248, v254, {srd(sSP)}, s{sA0} offen')], pos, c.vstep) + 1
                putS('ARRIVE', pos + 6)
                pos = stream(sp_items(0, 0, 8), max(pos, c.pm - 12), c.vstep) + 1
                rend[0] = sp_reads(0, pos + c.splag)
            pos = stream(sp_items(1, 0, 8), pos, c.vstep) + 1
            rend[1] = sp_reads(1, pos + c.splag)
        else:
            self.pre_items = [x[1] for x in sp_items(0, 0, 8)]
            pos = kv_stream(3, 4, 12, c.vstep)
            pos = kv_stream(4, c.ka, max(pos, c.p0), c.vstep)
            rend[0] = sp_reads(0, c.p0 + 8)
            pos = stream(misc, pos, c.vstep) + 1
            pos = stream(sp_items(1, 0, 8), pos, c.vstep) + 1
            putS('ARRIVE', pos + 6)
            rend[1] = sp_reads(1, c.pm)
        pos = max(pos, c.pm)
        nxt = c.ka
        for g in range(2, 8):
            if nxt < 16:
                n2 = min(16, nxt + (2 if g < 4 else 1) if 16 - nxt > 7 - g else nxt + 1)
                pos = kv_stream(nxt, n2, pos, c.vstep)
                nxt = n2
            it = []
            if g >= 4:
                if g == c.wog:
                    putM(f'buffer_load_dword {vr(vRv)}, {vr(vRdy)}, {srd(sWS)}, 0 offen sc1', pos - 30, 'V')
                    pos = putS('CHECK', max(pos, rend[1] + 1)) + 1
                    wo_it.insert(0, ('S', need('sr0', 'sr1')))
                if g >= c.wog:
                    k = 6 + len(wo_it) % 6
                    if rend[g - 2] + 1 > pos or g == 7:
                        pos = stream(wo_it[:k], pos, c.vstep) + 1
                        wo_it = wo_it[k:]
                pos = max(pos, rend[g - 2] + 1)
                it.append(('S', need(f'sr{g - 2}')))
            pos = stream(it + sp_items(g, 0, 8), pos, c.vstep) + 1
            rend[g] = sp_reads(g, pos + c.splag)
        assert nxt == 16
        if wo_it:
            pos = stream(wo_it, pos, c.vstep) + 1
        it = []
        for n in range(11):
            if n % 4 == 0:
                it += [('S', f's_add_u32 s{sG}, s44, {1024 * n}'), ('S', f's_add_u32 m0, s45, {1024 * n}')]
            it.append(('V', (f'buffer_load_dwordx4 {vr(vL16)}, {srd(sWS)}, s{sG} offen{off(1024 * (n % 4))} sc1 lds', ['z2a'])))
        self.z2a_items = [x[1] for x in it]
        pos = max(pos, rend[7])
        self.info = dict(rend=rend, wo_end=pos)
        assert pos < 246, pos
        tmp = Prog()
        tmp.add(self.pre_items)
        p.ins[self.pre_at:self.pre_at] = tmp.ins

        p.add([x.replace(f's{sKV},', f's{sL},') for x in kvnext()])
        p(mf32(S, kvreg(0, 0), qf(0, 0), None))
        p(mf32(S, kvreg(0, 1), qf(0, 1), S))
        for n in range(64):
            tl, a = n // 4, n % 4
            if c.fine == 2 and n % 8 == 0 and n:
                self.stamp(24 + n // 8 - 1)
            sc, sn = S + 16 * (n % 2), S + 16 * ((n + 1) % 2)
            ms = [None] * 4
            if n < 63:
                t1, a1 = (n + 1) // 4, (n + 1) % 4
                ms[0] = mf32(sn, kvreg(t1, 0), qf(a1, 0), None)
                ms[1] = mf32(sn, kvreg(t1, 1), qf(a1, 1), sn)
            if n > 0:
                t0, a0 = (n - 1) // 4, (n - 1) % 4
                ms[2] = mf32(O + 16 * a0, kvreg(t0, 3), P + 4, O + 16 * a0)
            ms[3] = mf32(O + 16 * a, kvreg(tl, 2), P, None if tl == 0 else O + 16 * a)
            for g in range(4):
                q = 4 * n + g
                if ms[g]:
                    p(ms[g])
                it = Ss[q]
                if it == 'CHECK':
                    self.check(vRv, vRdy, 160)
                elif it == 'ARRIVE':
                    La = p.label('noarr')
                    p(f's_cmp_lg_u32 s{sFB}, 0\ns_cbranch_scc1 {La}')
                    p.need('rst')
                    self.arrive(vRa, (1 << self.NC) - 1)
                    p(f'{La}:')
                elif it:
                    p.add(it)
                for _, it in sorted(Ms[q], key=lambda x: x[0]):
                    if c.nosp and isinstance(it, tuple) and it[1] and it[1][0][:2] in ('sd', 'sr') and \
                            (int(it[1][0][2:]) >= 8 - c.nosp if c.nosp > 0 else int(it[1][0][2:]) < -c.nosp):
                        continue
                    p.add(it)
                for jx in range(4):
                    p(f'v_exp_f32 {vr(sc + 4 * g + jx)}, {vr(sc + 4 * g + jx)}')
                p(f'v_cvt_pk_bf16_f32 {vr(P + 2 * g)}, {vr(sc + 4 * g)}, {vr(sc + 4 * g + 1)}')
                p(f'v_cvt_pk_bf16_f32 {vr(P + 2 * g + 1)}, {vr(sc + 4 * g + 2)}, {vr(sc + 4 * g + 3)}')
        p(mf32(O + 48, kvreg(15, 3), P + 4, O + 48))
        for g in owrite(2):
            p.add(list(g))
        self.stamp(6)
        p(f'''v_max3_f32 {vr(t)}, abs({vr(O + 12)}), abs({vr(O + 28)}), abs({vr(O + 44)})
v_add_f32 {vr(t + 1)}, {vr(O + 12)}, {vr(O + 28)}
v_add_f32 {vr(t + 1)}, {vr(t + 1)}, {vr(O + 44)}
v_add_f32 {vr(t + 1)}, {vr(t + 1)}, {vr(O + 60)}
v_max3_f32 {vr(t)}, {vr(t)}, abs({vr(O + 60)}), abs({vr(O + 60)})
v_cmp_nge_f32 vcc, {hx(2.0 ** 60)}, {vr(t)}
v_cmp_u_f32 {sp(sM0)}, {vr(t + 1)}, {vr(t + 1)}
s_or_b64 vcc, vcc, {sp(sM0)}
s_cmp_lg_u64 vcc, 0
s_cselect_b32 s{sT0}, 1, {1 if c.force_fb else 0}
s_lshl_b32 s{sT1}, s{sW}, 2
s_add_u32 s{sT1}, s{sT1}, {FLG}
v_mov_b32 {vr(t)}, s{sT0}
v_mov_b32 {vr(t + 1)}, s{sT1}''')
        p(f'ds_write_b32 {vr(t + 1)}, {vr(t)}', tokw=['ow'])
        p(f'v_mov_b32 {vr(t + 1)}, {FLG}')
        p.need('ow', 'wo', 'z2a')
        p('s_barrier')
        if self.c.fine == 12:
            self.stamp(24)
        p(f'ds_read_b128 {vr(t + 4, 4)}, {vr(t + 1)}')
        R = S
        for a in range(3):
            for k in range(4):
                p(f'ds_read_b128 {vr(R + 16 * a + 4 * k, 4)}, {vr(vW0 + a)}{off(k * 1024)}')
        p(f'''v_or_b32 {vr(t + 4)}, {vr(t + 4)}, {vr(t + 5)}
v_or3_b32 {vr(t + 4)}, {vr(t + 4)}, {vr(t + 6)}, {vr(t + 7)}
v_readfirstlane_b32 s{sT0}, {vr(t + 4)}
s_andn2_b32 s{sT0}, s{sT0}, s{sFB}
s_cmp_lg_u32 s{sT0}, 0
s_cbranch_scc1 .Ltruemax''')
        Oo = O + 48
        for a in range(3):
            for k in range(8):
                p(f'v_pk_add_f32 {vr(Oo + 2 * k, 2)}, {vr(Oo + 2 * k, 2)}, {vr(R + 16 * a + 2 * k, 2)}')
        p(f'''v_mov_b32 {vr(t)}, {vr(Oo + 12)}
v_mov_b32 {vr(t + 2)}, {vr(Oo + 12)}
v_permlane32_swap_b32 {vr(t)}, {vr(t + 2)}
v_rcp_f32 {vr(t)}, {vr(t + 2)}
v_mov_b32 {vr(t + 1)}, {vr(t)}
v_cndmask_b32 {vr(t + 2)}, {vr(t)}, 0, {sp(sM2)}
v_mov_b32 {vr(t + 3)}, {vr(t + 2)}''')
        for k in range(8):
            sc = t if k < 6 else t + 2
            p(f'v_pk_mul_f32 {vr(Oo + 2 * k, 2)}, {vr(Oo + 2 * k, 2)}, {vr(sc, 2)}')
        for a in range(2):
            for k in range(4 * a, 4 * a + 4):
                p(f'v_cvt_pk_bf16_f32 {vr(O + k)}, {vr(Oo + 2 * k)}, {vr(Oo + 2 * k + 1)}')
            if c.tag:
                p(f'v_min_u32 {vr(O + 4 * a)}, -2, {vr(O + 4 * a)}')
            p(f'buffer_store_dwordx4 {vr(O + 4 * a, 4)}, {vr(vPo)}, {srd(sWS)}, s91 offen{off(512 * a)} sc1',
              tokw=['st2'])
        if c.tag:
            self.stamp(7)
            p.add(self.z2a_items)
        else:
            p(f'''s_lshl_b32 s{sT0}, s{sQB}, 2
s_add_u32 s{sT0}, s{sT0}, s{sW}
s_lshl_b32 s{sT0}, s{sT0}, {7 + self.LR}
s_add_u32 s{sT0}, s{sT0}, {CNT + self.C_S2 * 128}
v_lshlrev_b32 {vr(vSP)}, 7, {vr(vL)}
v_add_u32 {vr(vSP)}, s{sT0}, {vr(vSP)}''')
            p.need('st2')
            self.arrive(vSP, (1 << self.NR) - 1)
            self.stamp(7)
            p.add(self.z2a_items)
            self.z2b(0, 4)

        def truemax():
            p('.Ltruemax:')
            p('s_waitcnt vmcnt(0) lgkmcnt(0)\ns_barrier')
            p(f's_mov_b32 s{sFB}, 1\ns_mov_b32 s{sRAd}, {OOR}\ns_mov_b32 s{sRBd}, {OOR}\n'
              f's_mov_b32 s89, {OOR}\ns_mov_b32 s90, {OOR}')
            for a in range(4):
                for r in (2, 3):
                    p(f'v_cndmask_b32 {vr(qf(a, 1) + r)}, {vr(qf(a, 1) + r)}, 0, {sp(sM2)}')
                p(f'v_mov_b32 {vr(vM + a)}, 0xff7fffff')
            p(f's_mov_b32 s{sKV}, s93\ns_mov_b32 s{sT0}, 16')
            p('.Ltm_loop:')
            p(kvload(15, 0))
            p(kvload(15, 1))
            max_pass(3, False)
            p(f's_add_u32 s{sKV}, s{sKV}, 4096\ns_sub_u32 s{sT0}, s{sT0}, 1\ns_cmp_lg_u32 s{sT0}, 0')
            p('s_cbranch_scc1 .Ltm_loop')
            half_max()
            for a in range(4):
                p(f'''s_add_u32 s{sT0}, s{sW}, {1 + a}
s_and_b32 s{sT0}, s{sT0}, 3
s_lshl_b32 s{sT0}, s{sT0}, 10
s_add_u32 s{sT0}, s{sT0}, {SCR}
v_lshlrev_b32 {vr(t + a)}, 2, {vr(vL)}
v_add_u32 {vr(t + a)}, s{sT0}, {vr(t + a)}
s_lshl_b32 s{sT0}, s{sW}, 8
v_add_u32 {vr(t + 4)}, s{sT0}, {vr(t + a)}''')
                p(f'ds_write_b32 {vr(t + 4)}, {vr(vM + a)}', tokw=['tm'])
            p.need('tm')
            p('s_barrier')
            for a in range(4):
                for k in range(4):
                    p(f'ds_read_b32 {vr(S + 4 * a + k)}, {vr(t + a)}{off(256 * k)}')
            for a in range(4):
                p(f'v_max3_f32 {vr(vM + a)}, {vr(S + 4 * a)}, {vr(S + 4 * a + 1)}, {vr(S + 4 * a + 2)}')
                p(f'v_max_f32 {vr(vM + a)}, {vr(vM + a)}, {vr(S + 4 * a + 3)}')
            patch_q(True)
            p('s_waitcnt lgkmcnt(0)\ns_barrier')
            first_kv()
            p.add(self.pre_items)
            p('s_branch .Lsweep')
        self.truemax = truemax

    def gemm_lds(self, nks, nct, lds_addr, act, acc, ring, nring, w_is_a, fill=(), per=0.0, hooks=None, ahead=6,
                 pre=None, fstart=0, side=None, init=None, tagged=None):
        p = self.p
        seq = [(ks, ct) for ks in range(nks) for ct in range(nct)]
        fill = list(fill)
        hooks = hooks or {}
        rd = lambda n: lds_rd(ring + 4 * (n % nring), lds_addr(*seq[n]))
        issued = 0
        accu = 0.0

        def run_hook(n):
            if n < len(seq) and seq[n][1] == 0 and seq[n][0] in hooks:
                hooks.pop(seq[n][0])()
        if tagged:
            freg, fld, up, later, needs, tmp = tagged
            nld = up
            for f in range(up):
                p.add(fld(f))

            def test(fr):
                o = []
                r = [vr(freg(f)) for f in fr]
                if len(r) == 1:
                    return [f'v_cmp_eq_u32 vcc, -1, {r[0]}']
                cur = r.pop(0)
                while r:
                    if len(r) >= 2:
                        o.append(f'v_max3_u32 {vr(tmp)}, {cur}, {r.pop(0)}, {r.pop(0)}')
                    else:
                        o.append(f'v_max_u32 {vr(tmp)}, {cur}, {r.pop(0)}')
                    cur = vr(tmp)
                return o + [f'v_cmp_eq_u32 vcc, -1, {vr(tmp)}']

            def guard(fr, upto):
                stub, back = p.label('again'), p.label('back')
                p(f's_cbranch_vccnz {stub}')
                p(f'{back}:')
                q = Prog()
                q(f'{stub}:')
                q(f's_sub_u32 s{sTO}, s{sTO}, 1\ns_cmp_eq_u32 s{sTO}, 0\ns_cbranch_scc1 .Lexit')
                for f in range(fr[0], upto):
                    q.add(fld(f, True))
                q.add(test(fr))
                q(f's_cbranch_vccnz {stub}\ns_branch {back}')
                self.stubs += q.ins
        while issued < min(ahead, len(seq)):
            run_hook(issued)
            p(rd(issued))
            issued += 1
        pend = []
        for n, (ks, ct) in enumerate(seq):
            if tagged and ct == 0 and ks in needs:
                assert max(needs[ks]) < nld, (ks, nld)
                if ks == 0:
                    pend = test(needs[ks])
                p.add(pend)
                pend = []
                guard(needs[ks], nld)
                if ks == 0 and self.gotstamp is not None:
                    self.stamp(self.gotstamp)
            if tagged and ct == max(0, nct - 3) and (ks + 1) in needs:
                pend = test(needs[ks + 1])
            if ct == 0 and pre and ks in pre:
                if callable(pre[ks]):
                    pre[ks]()
                else:
                    p.add(pre[ks])
            wf = vr(ring + 4 * (n % nring), 4)
            a, b = (wf, act(ks)) if w_is_a else (act(ks), wf)
            p(mf16(acc(ct), a, b, (init(ct) if init else None) if ks == 0 else acc(ct)))
            if issued < len(seq):
                run_hook(issued)
                p(rd(issued))
                issued += 1
            if side and n in side:
                p.add(side[n])
            if tagged and n in later:
                assert later[n] == nld
                p.add(fld(nld))
                nld += 1
            if pend and max(needs[ks + 1]) < nld:
                p(pend.pop(0))
            if n >= fstart:
                accu += per
            while accu >= 1 and fill:
                p.add(fill.pop(0))
                accu -= 1
        p.add(fill)

    def gelu(self, regs, t, scale):
        o = []
        for n in range(0, len(regs), 2):
            r = regs[n]
            u = t + 2 * ((n // 2) % 4)
            o.append([f'v_pk_mul_f32 {vr(r, 2)}, {vr(r, 2)}, {scale(n // 2)}',
                      f'v_pk_mul_f32 {vr(u, 2)}, {vr(r, 2)}, {vr(r, 2)}',
                      f'v_pk_fma_f32 {vr(u, 2)}, {vr(u, 2)}, {vr(168, 2)}, {vr(170, 2)}',
                      f'v_pk_mul_f32 {vr(u, 2)}, {vr(u, 2)}, {vr(r, 2)}',
                      f'v_exp_f32 {vr(u)}, {vr(u)}',
                      f'v_exp_f32 {vr(u + 1)}, {vr(u + 1)}',
                      f'v_pk_add_f32 {vr(u, 2)}, {vr(u, 2)}, 1.0 op_sel_hi:[1,0]',
                      f'v_rcp_f32 {vr(u)}, {vr(u)}',
                      f'v_rcp_f32 {vr(u + 1)}, {vr(u + 1)}',
                      f'v_pk_mul_f32 {vr(r, 2)}, {vr(r, 2)}, {vr(u, 2)}'])
        out = []
        for n in range(0, len(o), 2):
            if n + 1 < len(o):
                for a, b in zip(o[n], o[n + 1]):
                    out += [a, b]
            else:
                out += o[n]
        return out

    def z2b(self, a0, a1):
        p = self.p
        p(f's_mul_i32 s{sT1}, s{sJ}, {210 * 1024}')
        for a in range(a0, a1):
            if a < 3:
                p(f"""s_add_u32 s{sT5}, s{sW}, {3 - a}
s_and_b32 s{sT5}, s{sT5}, 3
s_mul_i32 s{sT5}, s{sT5}, 12288
s_add_u32 s{sT5}, s{sT5}, {a * 4096}""")
            else:
                p(f's_mov_b32 s{sT5}, {48 * 1024}')
            p(f"""s_add_u32 s{sG}, s{sT1}, s{sT5}
s_add_u32 m0, s{sT5}, {106 * 1024}
s_add_u32 s{sG}, s{sG}, {WIF + 42 * 1024}""")
            for n in range(4 if a < 3 else 1):
                p(f'buffer_load_dwordx4 {vr(vL16)}, {srd(sWS)}, s{sG} offen{off(n * 1024)} sc1 lds', tokw=['z2b'])

    def row_counter(self, base, idreg, varr, vpoll):
        o = [f's_lshl_b32 s{sT0}, s{idreg}, {7 + self.LR}', f's_add_u32 s{sT0}, s{sT0}, {CNT + base * 128}']
        if varr is not None:
            o += [f'v_lshlrev_b32 {vr(varr)}, 7, {vr(vL)}', f'v_add_u32 {vr(varr)}, s{sT0}, {vr(varr)}']
        if vpoll is not None:
            o += [f's_lshl_b32 s{sT3}, s{sCH}, 7', f's_add_u32 s{sT0}, s{sT0}, s{sT3}', f'v_mov_b32 {vr(vpoll)}, s{sT0}']
        return o

    def bar(self, *tok):
        def f():
            self.p.need(*tok)
            self.p('s_barrier')
        return f

    def phase3(self):
        p = self.p
        OB, RING, ACC = 16, 80, 112
        vA, vB, t, vAr, vPo = 7, 8, 10, 12, 13
        K = 1024
        tag = self.c.tag
        if not tag:
            p(f's_lshr_b32 s{sT2}, s{sRT}, 1')
            p.add(self.row_counter(self.C_S2, sT2, None, vA))
            p.add(self.row_counter(self.C_S3, sRT, vAr, vPo))
        p(f's_lshl_b32 s{sT0}, s{sRT}, 10\ns_add_u32 s{sT0}, s{sT0}, {QF}')
        for g in range(4):
            p(f's_add_u32 s{sT2}, s{sJ}, {g}' if self.c.rot36 else f's_mov_b32 s{sT2}, {g}')
            p(f's_and_b32 s{sT2}, s{sT2}, 3\ns_lshl_b32 s{sT2}, s{sT2}, 19\ns_add_u32 s{sA0 + g}, s{sT2}, s{sT0}')
        for k in range(1, 4):
            p(f'v_add_u32 {vr(143 + k)}, {k << 17}, {vr(vL16)}')
        p(f"""s_mul_i32 s{sT4}, s{sRT}, 14336
s_mul_i32 s{sT2}, s{sJ}, {7 * 256}
s_add_u32 s{sT4}, s{sT4}, s{sT2}
s_add_u32 s{sT4}, s{sT4}, {HF}
v_cmp_eq_u32 vcc, 3, {vr(vQ)}
v_mov_b32 {vr(vB)}, {OOR}
v_cndmask_b32 {vr(vB)}, {vr(vL16)}, {vr(vB)}, vcc""")
        XF = 128
        for k in range(8):
            p(f'v_lshlrev_b32 {vr(XF + 2 * k)}, 16, {vr(vXR + k)}\nv_and_b32 {vr(XF + 2 * k + 1)}, 0xffff0000, {vr(vXR + k)}')
        def old(ks, again=False):
            return f'buffer_load_dwordx4 {vr(OB + 4 * ks, 4)}, {vr(vL16 if ks % 4 == 0 else 143 + ks % 4)}, {srd(sWS)}, ' \
                   f's{sA0 + ks // 4} offen sc1'
        args = (16, 4, lambda ks, ct: (ks * 4 + ct) * 1024, lambda ks: vr(OB + 4 * ks, 4), lambda ct: ACC + 4 * ct, RING, 8, True)
        if tag:
            self.gotstamp = 8
            self.gemm_lds(*args, init=lambda ct: XF + 4 * ct,
                          tagged=(lambda f: OB + 4 * f, old, 8, {4 * k: 8 + k for k in range(8)},
                                  {4 * g: list(range(4 * g, 4 * g + 4)) for g in range(4)}, t))
        else:
            self.poll(vA, 16)
            self.stamp(8)
            for ks in range(8):
                p(old(ks))
            self.gemm_lds(*args, side={4 * ks: [old(ks + 8)] for ks in range(8)}, init=lambda ct: XF + 4 * ct)
        for k in range(8):
            p(f'v_cvt_pk_bf16_f32 {vr(vXR + k)}, {vr(ACC + 2 * k)}, {vr(ACC + 2 * k + 1)}')
            if tag and k % 4 == 0:
                p(f'v_min_u32 {vr(vXR + k)}, -2, {vr(vXR + k)}')
            if k == 3:
                p(f'buffer_store_dwordx4 {vr(vXR, 4)}, {vr(vL16)}, {srd(sWS)}, s{sT4} offen sc1', tokw=['st3'])
        p(f'buffer_store_dwordx4 {vr(vXR + 4, 4)}, {vr(vB)}, {srd(sWS)}, s{sT4} offen offset:1024 sc1', tokw=['st3'])
        if tag:
            self.stamp(9)
            self.z2b(0, 4)
            self.bar('z2a')()
        else:
            self.bar('z2b', 'z2a')()
            p(f's_mul_i32 s{sT1}, s{sJ}, {210 * K}')
            d = self.dma_list(sT1, WIF + 91 * K, 0, 63, 'z1a')
            self.emit_groups(d[:self.c.z1split])
            p.need('st3')
            self.arrive(vAr, (1 << self.NR) - 1)
            self.stamp(9)
            self.emit_groups(d[self.c.z1split:])

    def phase4(self):
        p = self.p
        HB, RING, Z2, Z1 = 16, 80, 112, 140
        ONES, NA, G, SA, RS = 172, 176, 180, 192, 200
        vA, vPerm, vS, vZ, vPo, vP4, vZo = 7, 8, 9, 12, 13, 14, 15
        vAr5, vPo5 = 208, 209
        t = 10
        K = 1024

        def z2addr(ks, ct):
            return (64 * K + (ks * 7 + ct) * K) if ks < 13 else ((ks - 13) * 7 + ct) * K

        def z1addr(ks, ct):
            return (14 * K + (ks * 7 + ct) * K) if ks < 7 else 64 * K + ((ks - 7) * 7 + ct) * K
        p(f's_mul_i32 s{sT0}, s{sRT}, 14336\ns_add_u32 s{sT0}, s{sT0}, {HF}')
        for g in range(4):
            p(f's_add_u32 s{sA0 + g}, s{sT0}, {4096 * g}')
        for r in range(4):
            p(f'v_mov_b32 {vr(ONES + r)}, 0x3f803f80')
        k1 = -2.0 * math.sqrt(2.0 / math.pi) * math.log2(math.e)
        p(f"""v_mov_b32 v168, {hx(k1 * 0.044715)}
v_mov_b32 v169, {hx(k1 * 0.044715)}
v_mov_b32 v170, {hx(k1)}
v_mov_b32 v171, {hx(k1)}
v_mov_b32 {vr(HB + 58)}, 0
v_mov_b32 {vr(HB + 59)}, 0
v_lshlrev_b32 {vr(vP4)}, 4, {vr(vQ)}""")
        self.ln_masks(vPerm)
        p(f"""v_lshlrev_b32 {vr(vS)}, 5, {vr(vQ)}
v_lshl_add_u32 {vr(vA)}, {vr(vC)}, 4, {vr(vS)}
v_and_b32 {vr(t)}, 7, {vr(vC)}
v_lshl_add_u32 {vr(vS)}, {vr(t)}, 7, {vr(vS)}
v_lshrrev_b32 {vr(t)}, 3, {vr(vC)}
v_lshl_add_u32 {vr(vS)}, {vr(t)}, 4, {vr(vS)}
s_lshl_b32 s88, s{sRT}, 10
s_add_u32 s88, s88, {ST}
s_lshl_b32 s89, s{sJ}, 7
s_add_u32 s89, s89, s88""")
        p(f"""s_lshl_b32 s90, s{sJ}, 6
s_lshr_b32 s{sT3}, s{sRT}, 1
s_add_u32 s90, s90, s{sT3}
s_mul_i32 s90, s90, 7168
s_and_b32 s{sT3}, s{sW}, 1
s_lshl_b32 s{sT3}, s{sT3}, 9
s_add_u32 s90, s90, s{sT3}
s_add_u32 s90, s90, {ZF}
s_add_u32 s91, s90, 4096
v_and_b32 {vr(t)}, 1, {vr(vQ)}
v_cmp_ne_u32 vcc, 0, {vr(t)}
v_lshlrev_b32 {vr(vZ)}, 10, {vr(t)}
v_lshrrev_b32 {vr(t)}, 1, {vr(vQ)}
v_lshl_add_u32 {vr(vZ)}, {vr(t)}, 8, {vr(vZ)}
v_lshl_add_u32 {vr(vZ)}, {vr(vC)}, 4, {vr(vZ)}
v_mov_b32 {vr(vZo)}, {OOR}
v_cndmask_b32 {vr(vZo)}, {vr(vZ)}, {vr(vZo)}, vcc""")
        vYo = 211
        p(f"""s_mul_i32 s93, s{sRT}, 28672
s_mul_i32 s{sT3}, s{sJ}, {14 * 256}
s_add_u32 s93, s93, s{sT3}
s_add_u32 s93, s93, {YF}
v_lshlrev_b32 {vr(vYo)}, 8, {vr(t)}
v_lshl_add_u32 {vr(vYo)}, {vr(vC)}, 4, {vr(vYo)}
v_mov_b32 {vr(t)}, {OOR}
v_cndmask_b32 {vr(vYo)}, {vr(vYo)}, {vr(t)}, vcc""")
        for r in range(4):
            p(f'v_mov_b32 {vr(204 + r)}, -1')
        p(f"""s_lshl_b32 s{sT0}, s{sJ}, 2
s_lshr_b32 s{sT3}, s{sI}, 3
s_add_u32 s{sT3}, s{sT3}, s{sT0}
s_lshl_b32 s{sT3}, s{sT3}, {7 + self.LC}
s_add_u32 s{sT3}, s{sT3}, {CNT + self.C_S5 * 128}
v_lshlrev_b32 {vr(vAr5)}, 7, {vr(vL)}
v_add_u32 {vr(vAr5)}, s{sT3}, {vr(vAr5)}
s_add_u32 s{sT0}, s{sT0}, s{sW}
s_lshl_b32 s{sT3}, s{sT0}, {self.LC}
s_add_u32 s{sT3}, s{sT3}, s{sRQ}
s_lshl_b32 s{sT3}, s{sT3}, 7
s_add_u32 s{sT3}, s{sT3}, {CNT + self.C_S5 * 128}
v_mov_b32 {vr(vPo5)}, s{sT3}
s_mul_i32 s92, s{sT0}, {16 * 7168}
s_add_u32 s92, s92, {ZF}
s_mul_i32 s{sT2}, s{sJ}, {112 * K}
s_add_u32 s{sT2}, s{sT2}, {WUF}""")
        tag = self.c.tag
        if not tag:
            self.poll(vPo, 8)
            self.stamp(10)

        def hld(ks, again=False):
            return f'buffer_load_dwordx4 {vr(HB + 4 * ks, 4)}, {vr(vL16)}, {srd(sWS)}, s{sA0 + ks // 4} offen' \
                   f'{off((ks % 4) * K)} sc1'
        if not tag:
            for ks in range(8):
                p(hld(ks))
        pre = {}
        for ks in range(7):
            pre[ks] = []
            for k2 in (2 * ks, 2 * ks + 1):
                h = vr(HB + 4 * k2, 4)
                pre[ks] += [mf16(SA, vr(ONES, 4), h, None if k2 == 0 else SA),
                            mf16(SA + 4, h, h, None if k2 == 0 else SA + 4)]
        fill = self.ln_finish(SA, SA + 4, NA, t, vPerm)
        E = HB + 56
        fill += [f'v_cvt_pk_bf16_f32 {vr(E)}, {vr(NA + 1)}, {vr(NA + 1)}',
                 f'v_and_b32 {vr(t)}, 0xffff0000, {vr(E)}',
                 f'v_sub_f32 {vr(t)}, {vr(NA + 1)}, {vr(t)}',
                 f'v_cvt_pk_bf16_f32 {vr(E)}, {vr(NA + 1)}, {vr(t)}',
                 f'v_mov_b32 {vr(E + 1)}, {vr(E)}']
        fill += [f'ds_bpermute_b32 {vr(RS + r)}, {vr(vP4)}, {vr(NA)}{off(4 * r)}' for r in range(4)]
        args = (15, 7, z2addr, lambda ks: vr(HB + 4 * ks, 4), lambda ct: Z2 + 4 * ct, RING, 8, False)
        if tag:
            d = [list(x) for x in self.dma_list(sT1, WIF + 91 * K, 0, 63, 'z1a')]
            Y0 = 204
            yst = lambda va, o_: [(f'buffer_store_dwordx4 {vr(Y0, 4)}, {vr(va)}, {srd(sWS)}, s93 offen{off(o_)} sc1', ['yf'])]
            d += [yst(vL16, 0), yst(vL16, 1024), yst(vL16, 2048), yst(vYo, 3072)]
            side = {20 + 2 * n: x for n, x in enumerate(d)}
            self.gotstamp = 10
            self.gemm_lds(*args, fill=fill, per=0.5, fstart=52, pre=pre, side=side,
                          hooks={6: self.bar('z2b'), 13: self.bar('z1a')},
                          tagged=(lambda f: HB + 4 * f, hld, 8, {3 * n: 8 + n for n in range(6)},
                                  {0: [0, 1, 2, 3], 2: [4, 5, 6, 7], 4: [8, 9, 10, 11], 6: [12, 13]}, 210))
        else:
            self.gemm_lds(*args, fill=fill, per=0.5, fstart=52, pre=pre, side={3 * n: [hld(8 + n)] for n in range(6)},
                          hooks={13: self.bar('z1a')})
        p('s_barrier')
        self.stamp(12)
        d = self.dma_list(sT1, WIF + (105 + 49) * K, 64 * K, 56, 'z1b')
        g = self.gelu(list(range(Z2, Z2 + 28)), G, lambda n: vr(RS + 2 * (n % 2), 2))
        p.add(interleave(g, [list(x) for x in d], per=len(d) / float(len(g)) + 0.03))
        SS, SQ = G, G + 4
        for ct in range(7):
            for h in range(2):
                z = vr(Z2 + 4 * ct + 2 * h, 2)
                if ct == 0:
                    p(f'v_pk_mul_f32 {vr(SQ + 2 * h, 2)}, {z}, {z}')
                else:
                    p(f'v_pk_fma_f32 {vr(SQ + 2 * h, 2)}, {z}, {z}, {vr(SQ + 2 * h, 2)}')
                    a = vr(Z2 + 2 * h, 2) if ct == 1 else vr(SS + 2 * h, 2)
                    p(f'v_pk_add_f32 {vr(SS + 2 * h, 2)}, {z}, {a}')
        for sh in (8, 4, 2, 1):
            for r in range(8):
                p(f'v_add_f32_dpp {vr(G + r)}, {vr(G + r)}, {vr(G + r)} row_ror:{sh} row_mask:0xf bank_mask:0xf')
        PB = G + 8
        p(f"""v_cndmask_b32 {vr(PB)}, {vr(SS)}, {vr(SS + 2)}, {sp(sM0)}
v_cndmask_b32 {vr(PB + 1)}, {vr(SQ)}, {vr(SQ + 2)}, {sp(sM0)}
v_cndmask_b32 {vr(PB + 2)}, {vr(SS + 1)}, {vr(SS + 3)}, {sp(sM0)}
v_cndmask_b32 {vr(PB + 3)}, {vr(SQ + 1)}, {vr(SQ + 3)}, {sp(sM0)}""")
        for r in range(4):
            p(f'v_min_u32 {vr(PB + r)}, -2, {vr(PB + r)}')
        p.need('yf')
        p(f's_mov_b32 exec_lo, 0x00030003\ns_mov_b32 exec_hi, 0x00030003')
        p(f'buffer_store_dwordx4 {vr(PB, 4)}, {vr(vA)}, {srd(sWS)}, s89 offen sc1')
        p('s_mov_b64 exec, -1')
        self.stamp(13)
        GB = 204
        gather = f'buffer_load_dwordx4 {vr(GB, 4)}, {vr(vS)}, {srd(sWS)}, s88 offen sc1'

        def normalise():
            self.stamp(14)
            L, Dn = p.label('st'), p.label('std')
            p(f'{L}:')
            p(f"""v_max3_u32 {vr(t)}, {vr(GB)}, {vr(GB + 1)}, {vr(GB + 2)}
v_max_u32 {vr(t)}, {vr(t)}, {vr(GB + 3)}
v_cmp_eq_u32 vcc, -1, {vr(t)}
s_cbranch_vccz {Dn}
{gather}
s_sub_u32 s{sTO}, s{sTO}, 1
s_cmp_lg_u32 s{sTO}, 0
s_cbranch_scc1 {L}
s_branch .Lexit
{Dn}:""")
            self.stamp(15)
            for m in ('quad_perm:[1,0,3,2]', 'quad_perm:[2,3,0,1]', 'row_half_mirror'):
                for r in range(4):
                    p(f'v_add_f32_dpp {vr(GB + r)}, {vr(GB + r)}, {vr(GB + r)} {m} row_mask:0xf bank_mask:0xf')
            ch = []
            for r in range(2):
                s_, q_ = GB + 2 * r, GB + 2 * r + 1
                ch.append([f'v_mul_f32 {vr(s_)}, {hx(-1.0 / 896)}, {vr(s_)}',
                           f'v_mul_f32 {vr(t + r)}, {vr(s_)}, {vr(s_)}',
                           f'v_sub_f32 {vr(t + r)}, {hx(1e-5)}, {vr(t + r)}',
                           f'v_fmac_f32 {vr(t + r)}, {hx(1.0 / 896)}, {vr(q_)}',
                           f'v_max_f32 {vr(t + r)}, {hx(1e-5)}, {vr(t + r)}',
                           f'v_rsq_f32 {vr(q_)}, {vr(t + r)}',
                           f'v_mul_f32 {vr(s_)}, {vr(s_)}, {vr(q_)}'])
            for a_, b_ in zip(*ch):
                p(a_)
                p(b_)
            RA, RB = G, G + 4
            for r in range(4):
                p(f'v_mov_b32 {vr(RA + r)}, {vr(GB + 2 * (r % 2) + 1)}')
                p(f'v_mov_b32 {vr(RB + r)}, {vr(GB + 2 * (r % 2))}')
            for r in range(4):
                bm = '0xc' if r < 2 else '0x3'
                p(f'v_mov_b32_dpp {vr(RA + r)}, {vr(GB + 2 * (r % 2) + 1)} row_ror:8 row_mask:0xf bank_mask:{bm}')
                p(f'v_mov_b32_dpp {vr(RB + r)}, {vr(GB + 2 * (r % 2))} row_ror:8 row_mask:0xf bank_mask:{bm}')
            for a in range(4):
                d = 188 + 4 * a
                for e in range(2):
                    ct = 2 * a + e
                    if ct < 7:
                        for h in range(2):
                            z = Z2 + 4 * ct + 2 * h
                            p(f'v_pk_fma_f32 {vr(z, 2)}, {vr(z, 2)}, {vr(RA + 2 * h, 2)}, {vr(RB + 2 * h, 2)}')
                        for h in range(2):
                            z = Z2 + 4 * ct + 2 * h
                            p(f'v_cvt_pk_bf16_f32 {vr(d + 2 * e + h)}, {vr(z)}, {vr(z + 1)}')
                p(f'v_permlane16_swap_b32 {vr(d)}, {vr(d + 2)}')
                p(f'v_permlane16_swap_b32 {vr(d + 1)}, {vr(d + 3)}')
                p(f'buffer_store_dwordx4 {vr(d, 4)}, {vr(vZ if a < 3 else vZo)}, {srd(sWS)}, s{90 + a // 2} offen'
                  f'{off((a % 2) * 2048)} sc1', tokw=['st5'])

        def arrive5():
            p.need('st5')
            p('s_barrier')
            Ls = p.label('noarr')
            p(f's_cmp_lg_u32 s{sW}, 0\ns_cbranch_scc1 {Ls}')
            self.arrive(vAr5, (1 << self.NC) - 1)
            p(f'{Ls}:')
            self.stamp(16)
        c = self.c
        d = [list(x) for x in self.dma_wu(0, 8, 120 * K, 'wua')]
        self.gemm_lds(15, 7, z1addr, lambda ks: vr(HB + 4 * ks, 4), lambda ct: Z1 + 4 * ct, RING, 8, True,
                      hooks={7: self.bar('z1b')}, side={7 * c.kgat: [gather]},
                      pre={c.knorm: normalise, c.karr: arrive5}, fill=d, per=1.0, fstart=7 * c.karr)
        p('s_barrier')
        self.stamp(17)
        g = self.gelu(list(range(Z1, Z1 + 28)), G, lambda n: f'{vr(NA, 2)} op_sel_hi:[1,0]')
        g += [f'v_cvt_pk_bf16_f32 {vr(vZ1 + k)}, {vr(Z1 + 2 * k)}, {vr(Z1 + 2 * k + 1)}' for k in range(14)]
        if c.wubearly:
            d = [list(x) for x in self.dma_wu(8, 9, 84 * K, 'wub')]
            p.add(interleave(g[:c.gsplit], d, per=len(d) / float(max(c.gsplit, 1)) + 0.05))
        else:
            p.add(g[:c.gsplit])
        self.gelu_rest = g[c.gsplit:]

    def phase5(self):
        p = self.p
        ZB, ACC = 16, 100
        vW0, vYo, vAr, vPo, vRd = 8, 11, 12, 13, 7
        vPo5 = 209
        t = 14
        K = 1024
        acc = lambda a, ct: ACC + (a * 7 + ct) * 4
        zb = lambda ks, ct: ZB + ((ks % 3) * 7 + ct) * 4
        p(f"""s_mul_i32 s{sA3}, s{sK2 + 1}, {7168 * 2 // 128}
s_add_u32 s{sA0}, s92, s{sA3}
s_add_u32 s{sA1}, s{sA0}, 4096""")
        self.poll(vPo5, 8)
        self.stamp(18)

        def zl(ks, ct):
            o = []
            if ct == 0 and ks:
                o += [f's_add_u32 s{sA3}, s{sA3}, 7168']
                if ks % 2 == 0:
                    o += [f's_cmp_eq_u32 s{sA3}, {16 * 7168}', f's_cselect_b32 s{sA3}, 0, s{sA3}']
                o += [f's_add_u32 s{sA0}, s92, s{sA3}']
            if ct == 4 and ks:
                o += [f's_add_u32 s{sA1}, s{sA0}, 4096']
            o.append(f'buffer_load_dwordx4 {vr(zb(ks, ct), 4)}, {vr(vL16)}, {srd(sWS)}, s{sA0 if ct < 4 else sA1} offen'
                     f'{off((ct % 4) * K)} sc1')
            return o
        first = [zl(ks, ct) for ks in range(3) for ct in range(7)]
        p.add(first[:8])
        n1 = self.c.zpre
        rest = first[8:n1]
        late = first[n1:]
        wub = [list(x) for x in self.dma_wu(8, 9, 84 * K, 'wub')] if not self.c.wubearly else [[]]
        g = self.gelu_rest
        p.add(interleave(g, rest, per=len(rest) / float(max(len(g), 1)) + 0.02))
        for a in range(3):
            p(f"""s_add_u32 s{sT0}, s{sW}, {1 + a}
s_and_b32 s{sT0}, s{sT0}, 3
s_mul_i32 s{sT0}, s{sT0}, {3 * 7168}
s_add_u32 s{sT0}, s{sT0}, {a * 7168}
v_add_u32 {vr(vW0 + a)}, s{sT0}, {vr(vL16)}""")
        mm = lambda a, ks, ct: mf16(acc(a, ct), vr(zb(ks, ct), 4), ar((a * 16 + ks) * 4, 4),
                                    None if ks == 0 else acc(a, ct))
        fill = [f's_mul_i32 s{sT0}, s{sW}, {3 * 7168}', f'v_add_u32 {vr(vRd)}, s{sT0}, {vr(vL16)}']
        fill += wub.pop(0)
        if not self.c.tag:
            fill += self.row_counter(self.C_S6, sRT, vAr, vPo)
        fill += f"""s_mul_i32 s{sT4}, s{sRT}, 28672
s_mul_i32 s{sT1}, s{sJ}, {14 * 256}
s_add_u32 s{sT4}, s{sT4}, s{sT1}
s_add_u32 s{sT4}, s{sT4}, {YF}
v_and_b32 {vr(t)}, 1, {vr(vQ)}
v_cmp_ne_u32 vcc, 0, {vr(t)}
v_lshrrev_b32 {vr(t)}, 1, {vr(vQ)}
v_lshlrev_b32 {vr(vYo)}, 8, {vr(t)}
v_lshl_add_u32 {vr(vYo)}, {vr(vC)}, 4, {vr(vYo)}
v_mov_b32 {vr(t)}, {OOR}
v_cndmask_b32 {vr(vYo)}, {vr(vYo)}, {vr(t)}, vcc
v_lshlrev_b32 {vr(t)}, 16, {vr(vBS)}
v_mov_b32 {vr(t + 1)}, {vr(t)}""".split('\n')
        for ks in range(13):
            if self.c.fine == 5 and ks % 2 == 1:
                self.stamp(24 + ks // 2)
            for ct in range(7):
                if late:
                    late.append(zl(ks + 3, ct))
                    for a in range(4):
                        p(mm(a, ks, ct))
                        if a == 1 and len(late) > 1:
                            p.add(late.pop(0))
                    p.add(late.pop(0))
                    continue
                z = zl(ks + 3, ct)
                for a in range(4):
                    p(mm(a, ks, ct))
                    if a < 3 and len(z) > 1:
                        p(z.pop(0))
                        if len(z) > 4 - a:
                            p(z.pop(0))
                    elif a == 1 and fill and ks >= 3:
                        p(fill.pop(0))
                    elif a == 1 and self.c.wubmain and wub and not fill and ct in (2, 5):
                        p.add(wub.pop(0))
                p.add(z)
        assert not fill
        for a in range(4):
            w = []
            if a:
                w = [(f'ds_write_b128 {vr(vW0 + a - 1)}, {vr(acc(a - 1, ct), 4)}{off(ct * K)}', ['pw'])
                     for ct in range(7)]
            n = 0
            for ks in (13, 14, 15):
                for ct in range(7):
                    p(mm(a, ks, ct))
                    n += 1
                    if w and n >= 2 and (n % 3) == 2:
                        p.add(w.pop(0))
                    elif wub and n % 3 == 0 and a >= self.c.wubat:
                        p.add(wub.pop(0))
            p.add(w)
        assert not wub
        self.stamp(19)
        p.need('pw', 'wua', 'wub')
        p('s_barrier')
        if self.c.fine == 12:
            self.stamp(29)
        G = acc(3, 0)
        D = ACC
        for ct in range(7):
            for a in range(3):
                p(f'ds_read_b128 {vr(ZB + (a * 7 + ct) * 4, 4)}, {vr(vRd)}{off((a * 7 + ct) * K)}', tokw=['pr'])
        for k in range(14):
            p(f'v_pk_add_f32 {vr(G + 2 * k, 2)}, {vr(G + 2 * k, 2)}, {vr(t, 2)}')
        U = ACC + 16
        for k in range(14):
            u = U + 2 * k
            p(f'v_lshlrev_b32 {vr(u)}, 16, {vr(vZ1 + k)}\nv_and_b32 {vr(u + 1)}, 0xffff0000, {vr(vZ1 + k)}')
        for pr in range(4):
            ks_ = range(4 * pr, min(4 * pr + 4, 14))
            for a in range(3):
                for k in ks_:
                    p(f'v_pk_add_f32 {vr(G + 2 * k, 2)}, {vr(G + 2 * k, 2)}, {vr(ZB + a * 28 + 2 * k, 2)}')
            for k in ks_:
                p(f'v_pk_mul_f32 {vr(G + 2 * k, 2)}, {vr(G + 2 * k, 2)}, {vr(U + 2 * k, 2)}')
            for k in ks_:
                p(f'v_cvt_pk_bf16_f32 {vr(D + k)}, {vr(G + 2 * k)}, {vr(G + 2 * k + 1)}')
            if self.c.tag:
                p(f'v_min_u32 {vr(D + 4 * pr)}, -2, {vr(D + 4 * pr)}')
            if pr < 3:
                p(f'buffer_store_dwordx4 {vr(D + 4 * pr, 4)}, {vr(vL16)}, {srd(sWS)}, s{sT4} offen{off(1024 * pr)} sc1',
                  tokw=['st6'])
        p(f"""v_mov_b32 {vr(D + 14)}, {vr(D + 12)}
v_mov_b32 {vr(D + 15)}, {vr(D + 13)}
v_permlane16_swap_b32 {vr(D + 12)}, {vr(D + 14)}
v_permlane16_swap_b32 {vr(D + 13)}, {vr(D + 15)}""")
        p(f'buffer_store_dwordx4 {vr(D + 12, 4)}, {vr(vYo)}, {srd(sWS)}, s{sT4} offen offset:3072 sc1', tokw=['st6'])
        if self.c.fine == 12:
            self.stamp(30)
        p.need('pr')
        p('s_barrier')
        d = self.dma_wu(17, 11, 0, 'wuc')
        if self.c.tag:
            self.stamp(20)
            self.emit_groups(d)
        else:
            self.emit_groups(d[:self.c.wusplit])
            p.need('st6')
            self.arrive(vAr, (1 << self.NR) - 1)
            self.stamp(20)
            self.emit_groups(d[self.c.wusplit:])

    def phase6(self):
        p = self.p
        YB, RING, ACC, XF = 16, 128, 160, 176
        vPo, vO, vOo = 13, 8, 9
        K = 1024

        def wuaddr(ks, ct):
            if ks < 8:
                return 120 * K + (ks * 4 + ct) * K
            if ks < 17:
                return 84 * K + ((ks - 8) * 4 + ct) * K
            return ((ks - 17) * 4 + ct) * K
        p(f"""s_mul_i32 s{sT0}, s{sRT}, 28672
s_add_u32 s{sT0}, s{sT0}, {YF}
s_mul_i32 s{sT1}, s{sRT}, {16 * 896}
s_mul_i32 s{sT3}, s{sJ}, 112
s_add_u32 s{sT1}, s{sT1}, s{sT3}
v_mul_u32_u24 {vr(vO)}, 896, {vr(vC)}
v_lshl_add_u32 {vr(vO)}, {vr(vQ)}, 4, {vr(vO)}
v_cmp_eq_u32 vcc, 3, {vr(vQ)}
v_mov_b32 {vr(vOo)}, {OOR}
v_cndmask_b32 {vr(vOo)}, {vr(vO)}, {vr(vOo)}, vcc""")
        for g in range(4):
            p(f's_add_u32 s{sT2}, s{sJ}, {g}' if self.c.rot36 else f's_mov_b32 s{sT2}, {g}')
            p(f's_and_b32 s{sT2}, s{sT2}, 3\ns_mul_i32 s{sT2}, s{sT2}, 7168\ns_add_u32 s{88 + 2 * g}, s{sT2}, s{sT0}')
            p(f's_add_u32 s{89 + 2 * g}, s{88 + 2 * g}, 4096')
        for k in range(8):
            p(f'v_lshlrev_b32 {vr(XF + 2 * k)}, 16, {vr(vXR + k)}\nv_and_b32 {vr(XF + 2 * k + 1)}, 0xffff0000, {vr(vXR + k)}')
        if not self.c.tag:
            self.poll(vPo, 8)
            self.stamp(21)

        def yld(ks, again=False):
            g, r = ks // 7, ks % 7
            return f'buffer_load_dwordx4 {vr(YB + 4 * ks, 4)}, {vr(vL16)}, {srd(sWS)}, s{88 + 2 * g + r // 4} offen' \
                   f'{off((r % 4) * K)} sc1'
        args = (28, 4, wuaddr, lambda ks: vr(YB + 4 * ks, 4), lambda ct: ACC + 4 * ct, RING, 8, True)
        if self.c.tag:
            self.gotstamp = 21
            self.gemm_lds(*args, hooks={17: self.bar('wuc')}, init=lambda ct: XF + 4 * ct,
                          tagged=(lambda f: YB + 4 * f, yld, 10, {4 * k: 10 + k for k in range(18)},
                                  {4 * g: list(range(4 * g, 4 * g + 4)) for g in range(7)}, 10))
        else:
            for ks in range(10):
                p(yld(ks))
            self.gemm_lds(*args, side={4 * ks: [yld(ks + 10)] for ks in range(18)}, hooks={17: self.bar('wuc')},
                          init=lambda ct: XF + 4 * ct)
        self.stamp(22)
        for k in range(8):
            p(f'v_cvt_pk_bf16_f32 {vr(vXR + k)}, {vr(ACC + 2 * k)}, {vr(ACC + 2 * k + 1)}')
            if k == 3:
                p(f'buffer_store_dwordx4 {vr(vXR, 4)}, {vr(vO)}, {srd(sOUT)}, s{sT1} offen {self.c.outsc}')
        p(f'buffer_store_dwordx4 {vr(vXR + 4, 4)}, {vr(vOo)}, {srd(sOUT)}, s{sT1} offen offset:64 {self.c.outsc}')

    def build(self):
        p = self.p
        c = self.c
        self.truemax = None
        self.prologue()
        self.phase1()
        self.spare()
        self.attention()
        for n, ph in ((3, self.phase3), (4, self.phase4), (5, self.phase5), (6, self.phase6)):
            if c.stop >= n and c.stop > 1:
                ph()
        if c.stop >= 6:
            Lz = p.label('nz')
            p(f's_cmp_lg_u32 s2, 224\ns_cbranch_scc1 {Lz}\ns_cmp_lg_u32 s{sW}, 0\ns_cbranch_scc1 {Lz}')
            p(f'v_mov_b32 {vr(vT)}, 0\ns_mov_b64 exec, 1')
            p(f'buffer_store_dword {vr(vT)}, {vr(vT)}, {srd(sDBG)}, 0 offen sc1\ns_mov_b64 exec, -1')
            p(f'{Lz}:')
        p('.Lexit:')
        if c.probe >= 0:
            p('s_waitcnt vmcnt(0)')
            self.stamp(23)
            p(f'''.Lspin:
s_memrealtime {sp(sTM + 2)}
s_waitcnt lgkmcnt(0)
s_sub_u32 s{sT0}, s{sTM + 2}, s{sTM}
s_cmp_lt_u32 s{sT0}, 8000
s_cbranch_scc1 .Lspin''')
        if c.diag:
            p('s_waitcnt vmcnt(0)')
            self.stamp(23)
            p(f'''s_lshl_b32 s{sT0}, s2, 2
s_add_u32 s{sT0}, s{sT0}, s{sW}
s_lshl_b32 s{sT0}, s{sT0}, 8
s_add_u32 s{sT0}, s{sT0}, {STAMP}
v_lshlrev_b32 {vr(vT)}, 2, {vr(vL)}
buffer_store_dword {vr(vST)}, {vr(vT)}, {srd(sWS)}, s{sT0} offen''')
        p('s_endpgm')
        if self.truemax:
            self.truemax()
        p.ins += self.stubs
        p('.Lend:')
        p('s_endpgm')
        p.insert_waits()
        nn = p.insert_nops()
        hdr = open('sequential_preLN__softmax_full_mha__mixer_gmlp__prompt.s.ref').read()
        hdr = hdr[:hdr.index('; Override launch')]
        txt = hdr + '; @launch grid=(256,1,1) block=(256,1,1) lds=163840\n'
        txt += f'''.amdgcn_target "amdgcn-amd-amdhsa--gfx950"
.text
.globl {NAME}
.p2align 8
.type {NAME},@function
{NAME}:
'''
        txt += p.text()
        txt += f'''.section .rodata,"a"
.p2align 6
.amdhsa_kernel {NAME}
  .amdhsa_next_free_vgpr 512
  .amdhsa_next_free_sgpr 102
  .amdhsa_accum_offset 256
  .amdhsa_group_segment_fixed_size 0
  .amdhsa_kernarg_size 88
  .amdhsa_user_sgpr_count 2
  .amdhsa_user_sgpr_kernarg_segment_ptr 1
  .amdhsa_system_sgpr_workgroup_id_x 1
  .amdhsa_float_denorm_mode_32 3
  .amdhsa_ieee_mode 0
.end_amdhsa_kernel
'''
        return txt, nn


def generate(**kw):
    c = Cfg()
    for k, v in kw.items():
        assert hasattr(c, k), k
        setattr(c, k, v)
    return Gen(c).build()


if __name__ == '__main__':
    out = sys.argv[1]
    kw = {}
    for a in sys.argv[2:]:
        k, v = a.split('=')
        kw[k] = eval(v)
    txt, nn = generate(**kw)
    open(out, 'w').write(txt)
    print('written', out, len(txt), 'bytes; nop states inserted:', nn)
```

```python
import sys, math, struct
sys.path.insert(0, 'work')
from asmlib import *

NAME = 'sequential_preLN__softmax_full_mha__mixer_gmlp__prompt_kernel'


class Cfg:
    diag = False
    stop = 99
    force_fb = False
    touch = False
    spf = False
    probe = -1
    outsc = ''
    ntsp = ''
    nt1 = ''
    spstep = 1.7
    splag = 10
    sleep = 0
    sptouch = False
    map48 = False
    z2split = 0
    z1split = 12
    wusplit = 10
    kgat = 3
    knorm = 6
    karr = 12
    gsplit = 40
    rlate = False
    stouch = 0
    pre0 = False
    slow0 = 4.5
    hyb = False
    ka = 12
    pm = 124
    vstep = 1.35
    sched = 1
    p0 = 36
    wog = 5
    sdelay = False
    wtouch = True
    zpre = 18
    tag = True
    nosp = 0
    wubat = 1
    map1 = 1
    wubmain = False
    wubearly = True
    rearly = False
    ownmax = True
    stahead = True
    kvsh = 0
    vstep0 = 1.35
    rp1 = True
    rm = 3
    rfk = 10
    tagz = False
    dfirst = 7
    up3 = 8
    up4 = 8
    up6 = 10
    more = 0
    wl2 = 0
    otr = True
    csq = False
    onepoll = True
    timeout = 400000
    fine = 0
    rot1 = True
    rotkv = True
    rot5 = True
    rot36 = False


def f2u(x):
    return struct.unpack('<I', struct.pack('<f', x))[0]


def hx(x):
    return hex(f2u(x))


CNT = 0x000000
ST = 0x020000
CSQ = 0x048000
QF = 0x100000
KV = 0x300000
OF = 0x700000
HF = 0x900000
ZF = 0xB00000
YF = 0xF00000
WOF = 0x1300000
WIF = 0x1400000
WUF = 0x1600000
STAMP = 0x1700000
WS_SIZE = 0x1800000
OOR = 0x7F000000

sX, sWQ, sWS, sSP, sBS, sOUT, sDBG, sWO, sWI, sWU = 8, 12, 16, 20, 24, 28, 32, 36, 40, 44
sW, sI, sJ, sQB, sHD, sXC, sIDX, sRB, sCB, sRQ, sCH = 48, 49, 50, 51, 52, 53, 54, 55, 56, 57, 58
sTO, sFB, sRT = 59, 60, 61
sT0, sT1, sT2, sT3, sT4, sT5 = 62, 63, 64, 65, 66, 67
sM0, sM1, sM2 = 68, 70, 72
sA0, sA1, sA2, sA3 = 74, 75, 76, 77
sKV, sG, sL = 78, 79, 80
sK1, sK2 = 82, 84
sPC = 86
sRB4 = 4
sRA, sRAd, sRBs, sRBd, sRBj = 94, 95, 3, 81, 101
sTM = 96

vL, vL16, vC, vQ, vA1, vA2 = 0, 1, 2, 3, 4, 5
vT = 6
vXR = 216
vBS = 224
vZ1 = 226
vONE = 225
vST = 255


def srd(n):
    return f's[{n}:{n + 3}]'


def vr(b, n=1):
    return f'v{b}' if n == 1 else f'v[{b}:{b + n - 1}]'


def ar(b, n=1):
    return f'a{b}' if n == 1 else f'a[{b}:{b + n - 1}]'


def sp(n):
    return f's[{n}:{n + 1}]'


def mf16(d, a, b, c):
    cs = '0' if c is None else vr(c, 4)
    return f'v_mfma_f32_16x16x32_bf16 {vr(d, 4)}, {a}, {b}, {cs}'


def mf32(d, a, b, c):
    cs = '0' if c is None else vr(c, 16)
    a = a if isinstance(a, str) else vr(a, 4)
    return f'v_mfma_f32_32x32x16_bf16 {vr(d, 16)}, {a}, {vr(b, 4)}, {cs}'


def off(o):
    return f' offset:{o}' if o else ''


def lds_rd(dst, byte):
    base = (vL16, vA1, vA2)[byte >> 16]
    return f'ds_read_b128 {vr(dst, 4)}, {vr(base)}{off(byte & 0xffff)}'


class Gen:
    def __init__(self, cfg):
        self.c = cfg
        self.p = Prog()
        self.nstamp = 0
        if cfg.rp1:
            self.RST, self.RSW, self.vRD = 128 * 1024, 4096, 0
        else:
            self.RSW = 12288
        self.stubs = []
        self.gotstamp = None
        self.NR, self.NC = (1, 8) if cfg.map48 else (2, 4)
        self.LR, self.LC = self.NR.bit_length() - 1, self.NC.bit_length() - 1
        self.C_S2 = 224
        self.C_S3 = self.C_S2 + 64 * self.NR
        self.C_S6 = self.C_S3 + 128 * self.NR
        self.C_S5 = self.C_S6 + 128 * self.NR
        self.C_RDY = self.C_S5 + 32 * self.NC
        assert self.C_RDY + 8 * self.NC <= 1024

    def stamp(self, n):
        if self.c.probe == n:
            self.p(f's_memrealtime {sp(sTM)}\ns_waitcnt lgkmcnt(0)')
        if self.c.diag:
            self.p(f's_memrealtime {sp(sTM)}\ns_memtime {sp(sTM + 2)}\ns_waitcnt lgkmcnt(0)\n'
                   f'v_writelane_b32 {vr(vST)}, s{sTM}, {n}\nv_writelane_b32 {vr(vST)}, s{sTM + 2}, {32 + n}')

    def finish(self):
        self.p('s_branch .Lexit')

    def poll(self, vaddr, expect, srdn=sWS, vtmp=vT):
        p = self.p
        L = p.label('poll')
        D = p.label('got')
        p(f'{L}:')
        p(f'buffer_load_dword {vr(vtmp)}, {vr(vaddr)}, {srd(srdn)}, 0 offen sc1')
        p(f'v_cmp_gt_u32 vcc, {expect}, {vr(vtmp)}')
        p(f's_cbranch_vccz {D}')
        if self.c.sleep:
            p(f's_sleep {self.c.sleep}')
        p(f's_sub_u32 s{sTO}, s{sTO}, 1\ns_cmp_lg_u32 s{sTO}, 0\ns_cbranch_scc1 {L}')
        p('s_branch .Lexit')
        p(f'{D}:')

    def check(self, vval, vaddr, expect, srdn=sWS):
        p = self.p
        D = p.label('ok')
        p(f'v_cmp_gt_u32 vcc, {expect}, {vr(vval)}')
        p(f's_cbranch_vccz {D}')
        self.poll(vaddr, expect, srdn, vval)
        p(f'{D}:')

    def arrive(self, vaddr, mask):
        p = self.p
        p(f's_mov_b64 exec, {mask}')
        p(f'buffer_atomic_add {vr(vONE)}, {vr(vaddr)}, {srd(sWS)}, 0 offen sc1')
        p('s_mov_b64 exec, -1')

    def dma_list(self, gsreg, gofs, ldsofs, nfrag, tok):
        k = (nfrag + 3) // 4
        out = []
        pre = [f's_mul_i32 s{sT5}, s{sW}, {k * 1024}',
               f's_min_u32 s{sT5}, s{sT5}, {(nfrag - k) * 1024}',
               f's_add_u32 s{sG}, s{gsreg}, s{sT5}',
               f's_add_u32 s{sL}, s{sT5}, {ldsofs}',
               f's_add_u32 s{sG}, s{sG}, {gofs}']
        out.append(pre)
        for n in range(k):
            g = []
            if n % 4 == 0:
                if n:
                    g += [f's_add_u32 s{sG}, s{sG}, 4096', f's_add_u32 s{sL}, s{sL}, 4096']
                g.append(f's_mov_b32 m0, s{sL}')
                out.append(g)
            out.append([(f'buffer_load_dwordx4 {vr(vL16)}, {srd(sWS)}, s{sG} offen{off((n % 4) * 1024)} sc1 lds',
                         [tok])])
        return out

    def dma_wu(self, n0, cnt, ldsofs, tok):
        if not self.c.rot36:
            return self.dma_list(sT2, n0 * 4096, ldsofs, 4 * cnt, tok)
        k = (cnt + 3) // 4
        out = [[f's_mul_i32 s{sT5}, s{sW}, {k}', f's_min_u32 s{sT5}, s{sT5}, {cnt - k}'],
               [f's_lshl_b32 s{sL}, s{sT5}, 12', f's_add_u32 s{sL}, s{sL}, {ldsofs}'],
               [f's_and_b32 s{sG}, s{sJ}, 3' if self.c.rot36 else f's_mov_b32 s{sG}, 0', f's_mul_i32 s{sG}, s{sG}, 7'],
               [f's_add_u32 s{sT5}, s{sT5}, s{sG}', f's_add_u32 s{sT5}, s{sT5}, {n0}']]
        for n in range(k):
            g = []
            if n:
                g += [f's_add_u32 s{sT5}, s{sT5}, 1', f's_add_u32 s{sL}, s{sL}, 4096']
            g += [f's_sub_u32 s{sG}, s{sT5}, 28', f's_cmp_ge_u32 s{sT5}, 28', f's_cselect_b32 s{sG}, s{sG}, s{sT5}']
            out.append(g)
            out.append([f's_lshl_b32 s{sG}, s{sG}, 12', f's_add_u32 s{sG}, s{sG}, s{sT2}', f's_mov_b32 m0, s{sL}'])
            for e in range(4):
                out.append([(f'buffer_load_dwordx4 {vr(vL16)}, {srd(sWS)}, s{sG} offen{off(e * 1024)} sc1 lds', [tok])])
        return out

    def emit_groups(self, groups):
        for g in groups:
            self.p.add(list(g))

    def prologue(self):
        p = self.p
        if self.c.probe == 100:
            p(f's_memrealtime {sp(sTM)}')
        p(f's_getpc_b64 {sp(sPC)}')
        p('.Lpc0:')
        p('s_cmp_ge_u32 s2, 256\ns_cbranch_scc1 .Lend')
        for reg, slot in ((sX, 0), (sWQ, 1), (sWS, 10), (sWO, 2), (sWI, 4), (sSP, 5), (sBS, 6), (sWU, 7), (sOUT, 8),
                          (sDBG, 9)):
            p(f's_load_dwordx2 {sp(reg)}, s[0:1], {slot * 8}')
        p(f'v_lshrrev_b32 {vr(vT)}, 6, v0')
        p(f'v_and_b32 {vr(vL)}, 63, v0')
        p(f'v_readfirstlane_b32 s{sW}, {vr(vT)}')
        for reg, size in ((sX, 1835008), (sWQ, 1204224), (sWS, WS_SIZE), (sWO, 401408), (sWI, 1605632),
                          (sSP, 8388608 + 4096), (sBS, 4096), (sWU, 802816), (sOUT, 1835008), (sDBG, 256)):
            p(f's_mov_b32 s{reg + 2}, {size}\ns_mov_b32 s{reg + 3}, 0x20000')
        p(f'''v_lshlrev_b32 {vr(vL16)}, 4, {vr(vL)}
v_and_b32 {vr(vC)}, 15, {vr(vL)}
v_lshrrev_b32 {vr(vQ)}, 4, {vr(vL)}
v_add_u32 {vr(vA1)}, 0x10000, {vr(vL16)}
v_add_u32 {vr(vA2)}, 0x20000, {vr(vL16)}
v_mov_b32 {vr(vONE)}, 1
s_and_b32 s{sXC}, s2, 7
s_lshr_b32 s{sIDX}, s2, 3
s_lshr_b32 s{sRQ}, s{sXC}, 1
s_and_b32 s{sCH}, s{sXC}, 1
s_mov_b32 s{sTO}, {self.c.timeout}
s_mov_b32 s{sFB}, 0''')
        if self.c.map48:
            p(f'''s_lshr_b32 s{sT0}, s{sIDX}, 3
s_lshl_b32 s{sI}, s{sXC}, 2
s_add_u32 s{sI}, s{sI}, s{sT0}
s_and_b32 s{sJ}, s{sIDX}, 7
s_mov_b32 s{sRQ}, s{sXC}
s_mov_b32 s{sCH}, 0''')
        else:
            p(f'''s_lshr_b32 s{sT0}, s{sIDX}, 2
s_lshl_b32 s{sI}, s{sRQ}, 3
s_add_u32 s{sI}, s{sI}, s{sT0}
s_and_b32 s{sT0}, s{sIDX}, 3
s_lshl_b32 s{sJ}, s{sCH}, 2
s_add_u32 s{sJ}, s{sJ}, s{sT0}''')
        p(f'''s_lshl_b32 s{sRT}, s{sI}, 2
s_add_u32 s{sRT}, s{sRT}, s{sW}''')
        p(f'''s_and_b32 s{sT0}, s{sIDX}, 1
s_lshl_b32 s{sHD}, s{sXC}, 1
s_add_u32 s{sHD}, s{sHD}, s{sT0}
s_lshr_b32 s{sQB}, s{sIDX}, 1''')
        if self.c.map1:
            p(f'''s_and_b32 s{sT0}, s{sXC}, 1
s_lshl_b32 s{sT0}, s{sT0}, 2
s_lshr_b32 s{sT1}, s{sIDX}, 3
s_add_u32 s{sCB}, s{sT0}, s{sT1}
s_lshr_b32 s{sT0}, s{sXC}, 1
s_lshl_b32 s{sT0}, s{sT0}, 3
s_and_b32 s{sT1}, s{sIDX}, 7
s_add_u32 s{sRB}, s{sT0}, s{sT1}
s_lshl_b32 s{sT0}, s{sXC}, 2
s_add_u32 s{sT0}, s{sT0}, s{sT1}
s_cmp_ge_u32 s{sIDX}, 24
s_cselect_b32 s{sCB}, 3, s{sCB}
s_cselect_b32 s{sRB}, s{sT0}, s{sRB}''')
        else:
            p(f'''s_mul_i32 s{sT0}, s{sIDX}, 37
s_lshr_b32 s{sT0}, s{sT0}, 8
s_mul_i32 s{sT1}, s{sT0}, 7
s_sub_u32 s{sCB}, s{sIDX}, s{sT1}
s_lshl_b32 s{sRB}, s{sXC}, 2
s_add_u32 s{sRB}, s{sRB}, s{sT0}''')
        if self.c.diag:
            p(f'v_mov_b32 {vr(vST)}, 0')
        if 0 <= self.c.probe < 100:
            p(f's_memrealtime {sp(sTM)}')
        p('s_waitcnt lgkmcnt(0)')
        p(f's_sub_u32 s{sSP}, s{sSP}, 4096\ns_subb_u32 s{sSP + 1}, s{sSP + 1}, 0')
        self.stamp(0)
        if self.c.touch:
            p(f'''s_lshl_b32 s{sT0}, s{sIDX}, 2
s_add_u32 s{sT0}, s{sT0}, s{sW}
s_mul_i32 s{sT1}, s{sT0}, {74 * 128}
s_mul_i32 s{sT2}, s{sT0}, {14 * 128}
s_mul_i32 s{sT3}, s{sXC}, {256 * 896}
s_add_u32 s{sT2}, s{sT2}, s{sT3}
s_add_u32 s{sT3}, s{sT1}, 8192
v_lshlrev_b32 {vr(vT)}, 7, {vr(vL)}
s_mov_b64 exec, 0x3fff
buffer_load_dword v252, {vr(vT)}, {srd(sX)}, s{sT2} offen
s_mov_b64 exec, -1
buffer_load_dword v253, {vr(vT)}, {srd(sWQ)}, s{sT1} offen
s_mov_b64 exec, 0x3ff
buffer_load_dword v254, {vr(vT)}, {srd(sWQ)}, s{sT3} offen
s_mov_b64 exec, -1''')
        p(f's_cmp_ge_u32 s{sIDX}, 28\ns_cbranch_scc1 .Lspare')

    RST = 106 * 1024
    vRI, vRB, vRT0, vRT1, vRD2, vRD = 240, 241, 252, 253, 238, 152

    def r_setup(self):
        p = self.p
        t = 6
        vI, vB, R0, R1, D2 = self.vRI, self.vRB, self.vRT0, self.vRT1, self.vRD2
        p(f"""s_cmp_ge_u32 s{sRT}, 56
s_cselect_b32 s{sT0}, 1, 0
s_mul_i32 s{sT1}, s{sT0}, 56
s_sub_u32 s{sT1}, s{sRT}, s{sT1}
s_lshr_b32 s{sT1}, s{sT1}, 2
s_and_b32 s{sT2}, s{sRT}, 3
s_mul_i32 s{sRA}, s{sT1}, {32 * 3584}
s_mul_i32 s{sT3}, s{sJ}, 224
s_add_u32 s{sRA}, s{sRA}, s{sT3}
s_lshl_b32 s{sT3}, s{sT2}, 6
s_add_u32 s{sRA}, s{sRA}, s{sT3}
s_xor_b32 s{sT3}, s{sT0}, 1
s_mul_i32 s{sT3}, s{sT3}, 1792
s_add_u32 s{sRA}, s{sRA}, s{sT3}
s_lshl_b32 s{sRAd}, s{sJ}, 1
s_add_u32 s{sRAd}, s{sRAd}, s{sT0}
s_mul_i32 s{sRAd}, s{sRAd}, 105
s_mul_i32 s{sT3}, s{sT1}, 7
s_add_u32 s{sRAd}, s{sRAd}, s{sT3}
s_lshl_b32 s{sT3}, s{sT2}, 1
s_add_u32 s{sRAd}, s{sRAd}, s{sT3}
s_lshl_b32 s{sRAd}, s{sRAd}, 10
s_add_u32 s{sRAd}, s{sRAd}, {WIF}
s_cmp_ge_u32 s{sRT}, 112
s_cselect_b32 s{sRA}, {OOR}, s{sRA}
s_cselect_b32 s{sRAd}, {OOR}, s{sRAd}
s_cmp_eq_u32 s{sT2}, 3
s_cselect_b64 vcc, -1, 0
s_mul_i32 s{sT4}, s{sW}, {self.RSW}
s_add_u32 s{sT4}, s{sT4}, {self.RST}
v_and_b32 {vr(t + 1)}, 3, {vr(vC)}
v_add_u32 {vr(R0)}, s{sT4}, {vr(vL16)}
v_and_b32 {vr(t)}, 60, {vr(vL)}
v_lshrrev_b32 {vr(R1)}, 1, {vr(t + 1)}
v_add_u32 {vr(t)}, {vr(t)}, {vr(R1)}
v_lshlrev_b32 {vr(t)}, 4, {vr(t)}
v_and_b32 {vr(R1)}, 1, {vr(t + 1)}
v_lshl_add_u32 {vr(t)}, {vr(R1)}, 3, {vr(t)}
v_add_u32 {vr(t)}, s{sT4}, {vr(t)}
v_mov_b32 {vr(D2)}, {OOR}
v_cndmask_b32 {vr(R1)}, {vr(R0)}, {vr(t)}, vcc
v_cndmask_b32 {vr(D2)}, {vr(vL16)}, {vr(D2)}, vcc
v_lshrrev_b32 {vr(t + 2)}, 2, {vr(vC)}
v_lshl_add_u32 {vr(t)}, {vr(vQ)}, 3, {vr(t + 2)}
v_mul_u32_u24 {vr(vI)}, 3584, {vr(t)}
v_lshl_add_u32 {vr(vI)}, {vr(t + 1)}, 4, {vr(vI)}
v_lshrrev_b32 {vr(vB)}, 1, {vr(vQ)}
v_lshlrev_b32 {vr(vB)}, 4, {vr(vB)}
v_and_b32 {vr(t + 3)}, 1, {vr(vQ)}
v_lshl_add_u32 {vr(vB)}, {vr(t + 3)}, 2, {vr(vB)}
v_add_u32 {vr(vB)}, {vr(vB)}, {vr(t + 2)}""")
        p(f"""s_mov_b32 s{sRBj}, {4 * 896}
s_mov_b32 s{sT1}, {32 * 896}
s_mov_b32 s{sT3}, {WUF}
s_cmp_ge_u32 s{sRT}, 96
s_cselect_b64 vcc, -1, 0
s_cselect_b64 {sp(sRB4)}, {sp(sWO)}, {sp(sWU)}
s_cselect_b32 s{sRB4 + 2}, s{sWO + 2}, s{sWU + 2}
s_cselect_b32 s{sRBj}, {8 * 896}, s{sRBj}
s_cselect_b32 s{sT0}, 96, 0
s_cselect_b32 s{sT1}, {28 * 896}, s{sT1}
s_cselect_b32 s{sT2}, 16, 28
s_cselect_b32 s{sT3}, {WOF}, s{sT3}
s_mov_b32 s{sRB4 + 3}, 0x20000
s_sub_u32 s{sT0}, s{sRT}, s{sT0}
s_lshr_b32 s{sT0}, s{sT0}, 1
s_mul_i32 s{sRBs}, s{sT0}, s{sT1}
s_mul_i32 s{sT1}, s{sJ}, 112
s_add_u32 s{sRBs}, s{sRBs}, s{sT1}
s_and_b32 s{sT1}, s{sRT}, 1
s_lshl_b32 s{sT4}, s{sT1}, 6
s_add_u32 s{sRBs}, s{sRBs}, s{sT4}
s_mul_i32 s{sRBd}, s{sJ}, s{sT2}
s_add_u32 s{sRBd}, s{sRBd}, s{sT0}
s_lshl_b32 s{sRBd}, s{sRBd}, 1
s_add_u32 s{sRBd}, s{sRBd}, s{sT1}
s_lshl_b32 s{sRBd}, s{sRBd}, 11
s_add_u32 s{sRBd}, s{sRBd}, s{sT3}
s_sub_u32 s{sT0}, s{sRT}, 56
s_cmp_lt_u32 s{sT0}, 40
s_cselect_b32 s{sRBs}, {OOR}, s{sRBs}
s_cselect_b32 s{sRBd}, {OOR}, s{sRBd}
v_cndmask_b32 {vr(vB)}, {vr(t)}, {vr(vB)}, vcc
v_mul_u32_u24 {vr(vB)}, 896, {vr(vB)}
v_lshl_add_u32 {vr(vB)}, {vr(t + 1)}, 4, {vr(vB)}""")

    def r_issue(self):
        o = [[f's_mul_i32 s{sL}, s{sW}, {self.RSW}', f's_add_u32 m0, s{sL}, {self.RST}'],
             [(f'buffer_load_dwordx4 {vr(self.vRI)}, {srd(sWI)}, s{sRA} offen lds', ['rl'])],
             [f's_add_u32 s{sG}, s{sRA}, {4 * 3584 - 1024}'],
             [(f'buffer_load_dwordx4 {vr(self.vRI)}, {srd(sWI)}, s{sG} offen offset:1024 lds', ['rl'])],
             [f's_add_u32 m0, s{sL}, {self.RST + 2048}'],
             [(f'buffer_load_dwordx4 {vr(self.vRB)}, {srd(sRB4)}, s{sRBs} offen lds', ['rl'])],
             [f's_add_u32 s{sG}, s{sRBs}, s{sRBj}', f's_sub_u32 s{sG}, s{sG}, 1024'],
             [(f'buffer_load_dwordx4 {vr(self.vRB)}, {srd(sRB4)}, s{sG} offen offset:1024 lds', ['rl'])]]
        return o

    def r_finish(self):
        p = Prog()
        dr = ar if self.c.rp1 else vr
        p.need('rl')
        for n in range(2):
            d = self.vRD + 8 * n
            for e in range(2):
                for jj in range(2):
                    base = self.vRT1 if (n == 0 and e == 0) else self.vRT0
                    p(f'ds_read_b64_tr_b16 {dr(d + 4 * e + 2 * jj, 2)}, {vr(base)}{off(n * 2048 + jj * 1024 + 8 * e)}')
        for n in range(2):
            d = self.vRD + 8 * n
            sd = (sRAd, sRBd)[n]
            p(f'buffer_store_dwordx4 {dr(d, 4)}, {vr(vL16)}, {srd(sWS)}, s{sd} offen sc1', tokw=['rst'])
            p(f'buffer_store_dwordx4 {dr(d + 4, 4)}, {vr(self.vRD2 if n == 0 else vL16)}, {srd(sWS)}, s{sd} offen'
              f' offset:1024 sc1', tokw=['rst'])
        return p.ins

    def sp_touch(self, main):
        if not self.c.sptouch:
            return []
        v = 245
        o = [[f's_lshl_b32 s{sT5}, s{sIDX}, 2', f's_add_u32 s{sT5}, s{sT5}, s{sW}']]
        if main:
            o += [[f's_mul_i32 s{sT5}, s{sT5}, 3']]
        else:
            o += [[f's_sub_u32 s{sT5}, s{sT5}, 112', f's_mul_i32 s{sT5}, s{sT5}, 11', f's_add_u32 s{sT5}, s{sT5}, 336']]
        o += [[f's_lshl_b32 s{sG}, s{sRQ}, 9', f's_add_u32 s{sT5}, s{sT5}, s{sG}'],
              [f's_lshl_b32 s{sT5}, s{sT5}, 12', f's_lshl_b32 s{sG}, s{sCH}, 11'],
              [f's_add_u32 s{sT5}, s{sT5}, s{sG}', f's_add_u32 s{sT5}, s{sT5}, 4096'],
              [f'v_lshlrev_b32 {vr(v)}, 12, {vr(vQ)}', f'v_lshl_add_u32 {vr(v)}, {vr(vC)}, 7, {vr(v)}']]
        n = 1 if main else 3
        for k in range(n):
            last = k == n - 1
            g = ['s_mov_b32 exec_hi, 0xffff'] if last else []
            g.append(f'buffer_load_dword {vr(v + 1 + k)}, {vr(v)}, {srd(sSP)}, s{sT5} offen')
            g.append('s_mov_b32 exec_hi, -1' if last else f's_add_u32 s{sT5}, s{sT5}, {4 * 4096}')
            o.append(g)
        return o

    def h_marks(self):
        if not self.c.tag:
            return []
        a, d = 245, 248
        o = [[f's_mul_i32 s91, s{sRT}, 14336'], [f's_mul_i32 s92, s{sJ}, {7 * 256}'], [f's_add_u32 s91, s91, s92'],
             [f's_add_u32 s91, s91, {HF}'], [f'v_cmp_eq_u32 vcc, 3, {vr(vQ)}'], [f'v_mov_b32 {vr(a)}, {OOR}'],
             [f'v_cndmask_b32 {vr(a)}, {vr(vL16)}, {vr(a)}, vcc']]
        o += [[f'v_mov_b32 {vr(d + r)}, -1'] for r in range(4)]
        o += [[(f'buffer_store_dwordx4 {vr(d, 4)}, {vr(vL16)}, {srd(sWS)}, s91 offen sc1', ['rst'])],
              [(f'buffer_store_dwordx4 {vr(d, 4)}, {vr(a)}, {srd(sWS)}, s91 offen offset:1024 sc1', ['rst'])]]
        return o

    def colsum(self, B, A):
        p = self.p
        for n in range(14):
            for d in range(4):
                r = B + 4 * n + d
                if n == 0:
                    p(f'v_lshlrev_b32 {vr(A + 2 * d)}, 16, {vr(r)}\nv_and_b32 {vr(A + 2 * d + 1)}, 0xffff0000, {vr(r)}')
                else:
                    u = 86 + 2 * (d % 2)
                    p(f'v_lshlrev_b32 {vr(u)}, 16, {vr(r)}\nv_and_b32 {vr(u + 1)}, 0xffff0000, {vr(r)}')
                    p(f'v_pk_add_f32 {vr(A + 2 * d, 2)}, {vr(A + 2 * d, 2)}, {vr(u, 2)}')
        for k in range(4):
            p(f'v_permlane32_swap_b32 {vr(A + k)}, {vr(A + k + 4)}')
        for k in range(4):
            p(f'v_add_f32 {vr(A + k)}, {vr(A + k)}, {vr(A + k + 4)}')
        for k in range(2):
            p(f'v_permlane16_swap_b32 {vr(A + k)}, {vr(A + k + 2)}')
        for k in range(2):
            p(f'v_add_f32 {vr(A + k)}, {vr(A + k)}, {vr(A + k + 2)}')
        for k in range(2):
            p(f'v_add_f32_dpp {vr(A + k)}, {vr(A + k)}, {vr(A + k)} row_ror:8 row_mask:0xf bank_mask:0xf')
        p(f'v_mov_b32_dpp {vr(A)}, {vr(A + 1)} quad_perm:[0,1,2,3] row_mask:0xf bank_mask:0xc')

    def sentinel_init(self):
        p = self.p
        a, d = vT, vT + 2
        p(f'''s_lshl_b32 s{sT0}, s{sRT}, 3
s_add_u32 s{sT0}, s{sT0}, s{sJ}
s_lshl_b32 s{sT0}, s{sT0}, 7
s_add_u32 s{sT0}, s{sT0}, {ST}
v_mov_b32 {vr(d)}, -1
v_mov_b32 {vr(d + 1)}, -1
v_mov_b32 {vr(d + 2)}, -1
v_mov_b32 {vr(d + 3)}, -1
s_mov_b64 exec, 0xff''')
        p(f'buffer_store_dwordx4 {vr(d, 4)}, {vr(vL16)}, {srd(sWS)}, s{sT0} offen sc1', tokw=['sent'])
        p('s_mov_b64 exec, -1')

    def ln_finish(self, sumreg, sqreg, va, t, vperm):
        return [
            f'v_cndmask_b32 {vr(t)}, {vr(sqreg)}, {vr(sqreg + 1)}, {sp(sM0)}',
            f'v_cndmask_b32 {vr(t + 1)}, {vr(sqreg + 2)}, {vr(sqreg + 3)}, {sp(sM0)}',
            f'v_cndmask_b32 {vr(t)}, {vr(t)}, {vr(t + 1)}, {sp(sM1)}',
            f'ds_bpermute_b32 {vr(t)}, {vr(vperm)}, {vr(t)}',
            f'v_mul_f32 {vr(va + 1)}, {hx(-1.0 / 448)}, {vr(sumreg)}',
            f'v_mul_f32 {vr(t + 1)}, {vr(va + 1)}, {vr(va + 1)}',
            f'v_sub_f32 {vr(t + 1)}, {hx(1e-5)}, {vr(t + 1)}',
            f'v_fmac_f32 {vr(t + 1)}, {hx(1.0 / 448)}, {vr(t)}',
            f'v_max_f32 {vr(t + 1)}, {hx(1e-5)}, {vr(t + 1)}',
            f'v_rsq_f32 {vr(va)}, {vr(t + 1)}',
        ]

    def ln_masks(self, vperm):
        p = self.p
        p(f"""v_and_b32 {vr(vT)}, 1, {vr(vC)}
v_cmp_ne_u32 {sp(sM0)}, 0, {vr(vT)}
v_and_b32 {vr(vT)}, 2, {vr(vC)}
v_cmp_ne_u32 {sp(sM1)}, 0, {vr(vT)}
v_lshrrev_b32 {vr(vT)}, 2, {vr(vC)}
v_lshl_add_u32 {vr(vT)}, {vr(vT)}, 4, {vr(vC)}
v_lshlrev_b32 {vr(vperm)}, 2, {vr(vT)}""")

    def phase1(self):
        p = self.p
        ACC, CS, SA, XF, WF, ONES = 16, 64, 76, 84, 124, 148
        acc = lambda sec, tt: ACC + (sec * 4 + tt) * 4
        xf = lambda b, tt: XF + (b * 5 + tt) * 4
        wf = lambda b, sec: WF + (b * 3 + sec) * 4
        vX0, vX1, vW0, vW1 = 152, 153, 154, 155
        rX0, rX1, rO0, rO1, rW = 156, 157, 158, 159, 160
        vPerm, vFl, t = 161, 162, 6
        CH = 32768
        STS = 156 * 1024
        p(f"""v_lshrrev_b32 {vr(t)}, 3, {vr(vL)}
v_and_b32 {vr(t + 1)}, 7, {vr(vL)}
v_xor_b32 {vr(t + 2)}, {vr(t + 1)}, {vr(vQ)}
v_mul_u32_u24 {vr(vX0)}, 896, {vr(t)}
v_xor_b32 {vr(t + 3)}, 4, {vr(t + 2)}
v_lshl_add_u32 {vr(vX1)}, {vr(t + 3)}, 4, {vr(vX0)}
v_lshl_add_u32 {vr(vX0)}, {vr(t + 2)}, 4, {vr(vX0)}
v_add_u32 {vr(vX1)}, {8 * 896 - 1024}, {vr(vX1)}
v_and_b32 {vr(t + 2)}, 1, {vr(vQ)}
v_lshlrev_b32 {vr(t + 2)}, 1, {vr(t + 2)}
v_xor_b32 {vr(t + 2)}, {vr(t + 2)}, {vr(t + 1)}
v_mul_u32_u24 {vr(vW0)}, 2688, {vr(t)}
v_xor_b32 {vr(t + 3)}, 4, {vr(t + 2)}
v_lshl_add_u32 {vr(vW1)}, {vr(t + 3)}, 4, {vr(vW0)}
v_lshl_add_u32 {vr(vW0)}, {vr(t + 2)}, 4, {vr(vW0)}
v_add_u32 {vr(vW1)}, {8 * 2688 - 1024}, {vr(vW1)}
s_lshl_b32 s{sT0}, s{sRB}, 2
s_add_u32 s{sT0}, s{sT0}, s{sW}
s_mul_i32 s{sA0}, s{sT0}, {16 * 896}
s_mul_i32 s{sA1}, s{sW}, {16 * 2688}
s_lshl_b32 s{sT0}, s{sCB}, 7
s_add_u32 s{sA1}, s{sA1}, s{sT0}
s_lshl_b32 s{sA2}, s{sW}, 11""")
        hyb = self.c.hyb and self.c.rot1
        if hyb and self.c.map1:
            p(f"""s_and_b32 s{sA3}, s{sRB}, 7
s_and_b32 s{sT0}, s{sCB}, 3
s_lshl_b32 s{sT0}, s{sT0}, 1
s_add_u32 s{sA3}, s{sA3}, s{sT0}
s_sub_u32 s{sT0}, s{sA3}, 6
s_cmp_ge_u32 s{sA3}, 6
s_cselect_b32 s{sA3}, s{sT0}, s{sA3}
s_sub_u32 s{sT0}, s{sA3}, 6
s_cmp_ge_u32 s{sA3}, 6
s_cselect_b32 s{sA3}, s{sT0}, s{sA3}""")
        elif hyb:
            p(f"""s_and_b32 s{sT0}, s{sRB}, 3
s_mul_i32 s{sT0}, s{sT0}, 3
s_add_u32 s{sT0}, s{sT0}, 1
s_lshr_b32 s{sT0}, s{sT0}, 1
s_add_u32 s{sA3}, s{sT0}, s{sCB}
s_sub_u32 s{sT0}, s{sA3}, 6
s_cmp_ge_u32 s{sA3}, 6
s_cselect_b32 s{sA3}, s{sT0}, s{sA3}""")
        elif self.c.rot1 and self.c.map1:
            p(f"""s_and_b32 s{sA3}, s{sRB}, 7
s_and_b32 s{sT0}, s{sCB}, 3
s_lshl_b32 s{sT0}, s{sT0}, 1
s_add_u32 s{sA3}, s{sA3}, s{sT0}
s_sub_u32 s{sT0}, s{sA3}, 7
s_cmp_ge_u32 s{sA3}, 7
s_cselect_b32 s{sA3}, s{sT0}, s{sA3}""")
        elif self.c.rot1:
            p(f"""s_and_b32 s{sA3}, s{sRB}, 3
s_lshl_b32 s{sA3}, s{sA3}, 1
s_add_u32 s{sA3}, s{sA3}, s{sCB}
s_sub_u32 s{sT0}, s{sA3}, 7
s_cmp_ge_u32 s{sA3}, 7
s_cselect_b32 s{sA3}, s{sT0}, s{sA3}""")
        else:
            p(f's_mov_b32 s{sA3}, 0')

        def chunk(m):
            base = (m % 4) * CH
            o = []
            ld = lambda v, rs, so, o_: [(f'buffer_load_dwordx4 {vr(v)}, {srd(rs)}, s{so} offen{off(o_)} lds', [f'c{m}'])]
            if m == 0 and hyb:
                o += [[f's_mov_b32 s{sT4}, s{sA0}'], [f's_mov_b32 s{sT5}, s{sA1}']]
            else:
                if m:
                    o += [[f's_add_u32 s{sA3}, s{sA3}, 1'], [f's_cmp_eq_u32 s{sA3}, 7', f's_cselect_b32 s{sA3}, {int(hyb)}, s{sA3}']]
                o += [[f's_lshl_b32 s{sT4}, s{sA3}, 7'], [f's_mul_i32 s{sT5}, s{sA3}, {64 * 2688}'],
                      [f's_add_u32 s{sT4}, s{sT4}, s{sA0}'], [f's_add_u32 s{sT5}, s{sT5}, s{sA1}']]
            o += [[f's_add_u32 m0, s{sA2}, {base}'], ld(vX0, sX, sT4, 0), ld(vX1, sX, sT4, 1024)]
            for sec in range(3):
                o += [[f's_add_u32 m0, s{sA2}, {base + 8192 * (sec + 1)}']]
                if sec:
                    o += [[f's_add_u32 s{sT5}, s{sT5}, 896']]
                o += [ld(vW0, sWQ, sT5, 0), ld(vW1, sWQ, sT5, 1024)]
            return o
        self.emit_groups(chunk(0))
        self.emit_groups(chunk(1))
        p(f"""v_lshrrev_b32 {vr(t)}, 1, {vr(vC)}
v_xor_b32 {vr(t)}, {vr(t)}, {vr(vQ)}
v_lshlrev_b32 {vr(t)}, 4, {vr(t)}
v_lshl_add_u32 {vr(rX0)}, {vr(vC)}, 7, {vr(t)}
v_xor_b32 {vr(rX1)}, 64, {vr(rX0)}
v_add_u32 {vr(rO0)}, s{sA2}, {vr(rX0)}
v_add_u32 {vr(rO1)}, s{sA2}, {vr(rX1)}
v_lshrrev_b32 {vr(t)}, 2, {vr(vC)}
v_lshl_add_u32 {vr(rW)}, {vr(vQ)}, 3, {vr(t)}
v_lshlrev_b32 {vr(rW)}, 7, {vr(rW)}
v_lshrrev_b32 {vr(t)}, 3, {vr(vC)}
v_and_b32 {vr(t + 1)}, 1, {vr(vQ)}
v_lshl_add_u32 {vr(t)}, {vr(t + 1)}, 1, {vr(t)}
v_xor_b32 {vr(t)}, s{sW}, {vr(t)}
v_lshl_add_u32 {vr(rW)}, {vr(t)}, 5, {vr(rW)}
v_and_b32 {vr(t)}, 3, {vr(vC)}
v_lshl_add_u32 {vr(rW)}, {vr(t)}, 3, {vr(rW)}""")
        for r in range(4):
            p(f'v_mov_b32 {vr(ONES + r)}, 0x3f803f80')
        self.ln_masks(vPerm)
        vP, vH, vS, vQa, vKa, vQb, vKb, vVa, vVc, vAr = 164, 165, 166, 167, 168, 169, 170, 171, 172, 173
        vVd, vK0, vK1, vSt, vSv = 176, 174, 175, 180, 181
        p(f"""s_lshl_b32 s{sT0}, s{sCB}, 2
s_add_u32 s{sKV}, s{sT0}, s{sW}
s_lshl_b32 s{sT0}, s{sKV}, 1
v_lshrrev_b32 {vr(vP)}, 1, {vr(vQ)}
v_add_u32 {vr(vP)}, s{sT0}, {vr(vP)}
v_mul_u32_u24 {vr(vH)}, 37, {vr(vP)}
v_lshrrev_b32 {vr(vH)}, 8, {vr(vH)}
v_mul_u32_u24 {vr(vS)}, 7, {vr(vH)}
v_sub_u32 {vr(vP)}, {vr(vP)}, {vr(vS)}
v_cmp_eq_u32 {sp(sM2)}, 3, {vr(vP)}
v_lshrrev_b32 {vr(vS)}, 2, {vr(vP)}
v_lshl_add_u32 {vr(vH)}, {vr(vH)}, 1, {vr(vS)}
v_and_b32 {vr(vS)}, 3, {vr(vP)}
v_lshlrev_b32 {vr(vS)}, 9, {vr(vS)}
v_lshl_add_u32 {vr(vQa)}, {vr(vH)}, 17, {vr(vS)}
v_lshl_add_u32 {vr(vKa)}, {vr(vH)}, 18, {vr(vS)}
v_and_b32 {vr(vS)}, 31, {vr(vL)}
v_lshl_add_u32 {vr(vQa)}, {vr(vS)}, 4, {vr(vQa)}
v_and_b32 {vr(vS)}, 8, {vr(vC)}
v_add_u32 {vr(vS)}, {vr(vS)}, {vr(vC)}
v_and_b32 {vr(vP)}, 1, {vr(vQ)}
v_lshl_add_u32 {vr(vS)}, {vr(vP)}, 3, {vr(vS)}
v_lshl_add_u32 {vr(vKa)}, {vr(vS)}, 4, {vr(vKa)}
v_mov_b32 {vr(vS)}, {OOR}
v_add_u32 {vr(vQb)}, 0x20000, {vr(vQa)}
v_add_u32 {vr(vKb)}, 0x40000, {vr(vKa)}
v_cndmask_b32 {vr(vQb)}, {vr(vS)}, {vr(vQb)}, {sp(sM2)}
v_cndmask_b32 {vr(vKb)}, {vr(vS)}, {vr(vKb)}, {sp(sM2)}
s_lshl_b32 s{sT0}, s{sKV}, 4
v_add_u32 {vr(vP)}, s{sT0}, {vr(vC)}
v_mul_u32_u24 {vr(vH)}, 2341, {vr(vP)}
v_lshrrev_b32 {vr(vH)}, 16, {vr(vH)}
v_mul_u32_u24 {vr(vVa)}, 28, {vr(vH)}
v_sub_u32 {vr(vP)}, {vr(vP)}, {vr(vVa)}
v_lshlrev_b32 {vr(vVa)}, 18, {vr(vH)}
v_lshl_add_u32 {vr(vVa)}, {vr(vQ)}, 9, {vr(vVa)}
v_lshl_add_u32 {vr(vVa)}, {vr(vP)}, 4, {vr(vVa)}
v_cmp_le_u32 vcc, 24, {vr(vP)}
v_add_u32 {vr(vVc)}, 64, {vr(vVa)}
v_cndmask_b32 {vr(vVc)}, {vr(vS)}, {vr(vVc)}, vcc
v_cmp_eq_u32 vcc, 24, {vr(vP)}
v_mov_b32 {vr(vK0)}, 0x3f803f80
v_mov_b32 {vr(vK1)}, 0x3f80
v_cndmask_b32 {vr(vVd)}, 0, {vr(vK0)}, vcc
v_mov_b32 {vr(vVd + 1)}, {vr(vVd)}
v_mov_b32 {vr(vVd + 2)}, {vr(vVd)}
v_mov_b32 {vr(vVd + 3)}, {vr(vVd)}
s_lshl_b32 s{sT0}, s{sKV}, 2
s_lshr_b32 s{sT1}, s{sRB}, 3
s_add_u32 s{sT0}, s{sT0}, s{sT1}
s_lshl_b32 s{sT0}, s{sT0}, 8
v_lshlrev_b32 {vr(vAr)}, 7, {vr(vL)}
v_add_u32 {vr(vAr)}, s{sT0}, {vr(vAr)}
s_lshl_b32 s{sT0}, s{sW}, 7
s_add_u32 s{sT0}, s{sT0}, {STS}
v_lshlrev_b32 {vr(vSt)}, 3, {vr(vC)}
v_add_u32 {vr(vH)}, s{sT0}, {vr(vSt)}
v_add_u32 {vr(vSt)}, {STS}, {vr(vSt)}
v_lshlrev_b32 {vr(vSv)}, 5, {vr(vQ)}
v_add_u32 {vr(vSv)}, {STS}, {vr(vSv)}""")
        vSw = vH
        p(f"""s_lshl_b32 s88, s{sRB}, 12
s_add_u32 s88, s88, {QF}
s_lshl_b32 s89, s{sRB}, 13
s_add_u32 s89, s89, {KV}
s_add_u32 s90, s89, 4096""")
        self.r_setup()
        self.sentinel_init()
        if self.c.rp1:
            self.emit_groups(self.h_marks()[:-2])

        def rds(ks):
            m, e, b = ks // 2, ks % 2, ks % 2
            base = (m % 2) * CH
            o = []
            for sec in (1, 2, 0):
                for jj in range(2):
                    o.append(f'ds_read_b64_tr_b16 {vr(wf(b, sec) + 2 * jj, 2)}, {vr(rW)}'
                             f'{off(base + 8192 * (sec + 1) + e * 4096 + jj * 512)}')
                if sec == 1:
                    for tt in range(4):
                        o.append(f'ds_read_b128 {vr(xf(b, tt), 4)}, {vr((rX0, rX1)[e])}{off(base + tt * 2048)}')
            o.append(f'ds_read_b128 {vr(xf(b, 4), 4)}, {vr((rO0, rO1)[e])}{off(base)}')
            return o

        TK, TV, D = (184, 192, XF) if self.c.stahead else (XF, XF + 8, 184)
        XE = 228

        def stat_reads():
            o = [f'ds_read_b64 {vr(TK + 2 * tt, 2)}, {vr(vSt)}{off(128 * tt)}' for tt in range(4)]
            o += [f'ds_read_b128 {vr(TV + 8 * tt + 4 * h, 4)}, {vr(vSv)}{off(128 * tt + 16 * h)}'
                  for tt in range(4) for h in range(2)]
            return o

        csl = [f'buffer_load_dwordx4 {vr(CS, 4)}, v182, {srd(sWS)}, s93 offen sc1',
               f'buffer_load_dwordx4 {vr(CS + 4, 4)}, v182, {srd(sWS)}, s93 offen offset:{448 * 4} sc1',
               f'buffer_load_dword {vr(CS + 8)}, v183, {srd(sWS)}, s93 offen offset:{896 * 4} sc1']
        if self.c.csq:
            p(f's_lshl_b32 s93, s{sKV}, 6\ns_add_u32 s93, s93, {CSQ}\nv_lshlrev_b32 v182, 4, {vr(vQ)}\nv_lshlrev_b32 v183, 2, {vr(vC)}')

        def move(delta):
            return [f'v_add_u32 {vr(r)}, {delta & 0xffffffff}, {vr(r)}' for r in (rX0, rX1, rO0, rO1, rW)]
        p.need('c0')
        p('s_barrier')
        self.stamp(1)
        p.add(rds(0))
        ones = vr(ONES, 4)
        side = chunk(2)
        for ks in range(14):
            b = ks % 2
            nx = ks + 1
            if nx < 14 and nx % 2 == 0:
                m = nx // 2
                if m < 6:
                    self.emit_groups(side)
                    side = []
                p.need(f'c{m}')
                p('s_barrier')
                if m % 2 == 0:
                    p.add(move(2 * CH if m % 4 == 2 else -2 * CH))
                if m + 2 < 7:
                    side = chunk(m + 2)
                    if self.c.rp1 and m == self.c.rm:
                        side += self.r_issue()
                elif m == 5:
                    if self.c.rp1:
                        side = self.h_marks()[-2:]
                    else:
                        side = ([] if self.c.rlate else self.r_issue()) + self.sp_touch(True)
            if self.c.rp1 and ks == self.c.rfk:
                rf = self.r_finish()
                side += [[rf[0], rf[1]]] + [[x] for x in rf[2:]]
            if self.c.fine == 1 and ks % 2 == 1:
                self.stamp(24 + ks // 2)
            R = rds(nx) if nx < 14 else []
            z = ks == 0
            ms = []
            for sec in (1, 2, 0):
                w_ = vr(wf(b, sec), 4)
                for tt in range(4):
                    x_ = vr(xf(b, tt), 4)
                    a_, b_ = (w_, x_) if sec < 2 else (x_, w_)
                    ms.append(mf16(acc(sec, tt), a_, b_, None if z else acc(sec, tt)))
                if not self.c.csq:
                    a_, b_ = (w_, ones) if sec < 2 else (ones, w_)
                    ms.append(mf16(CS + 4 * sec, a_, b_, None if z else CS + 4 * sec))
            xo = vr(xf(b, 4), 4)
            st = [mf16(SA, ones, xo, None if z else SA), mf16(SA + 4, xo, xo, None if z else SA + 4)]
            ah = self.c.stahead
            klast = 12 if ah else 13
            if ah and ks == 11:
                R.append(f'ds_read_b128 {vr(XE, 4)}, {vr(rO1)}')
            if ah and ks == 12:
                R.pop()
                xe = vr(XE, 4)
                st += [mf16(SA, ones, xe, SA), mf16(SA + 4, xe, xe, SA + 4)]
            if ah and ks == 13:
                st = []
                p.need('lnw')
                p('s_barrier')
                R = stat_reads()
            ms = (st + ms) if ks == klast else (ms + st)
            fin = self.ln_finish(SA, SA + 4, t + 4, t, vPerm) if ks == klast else []
            if ah and ks == 12:
                fin.append(['s_mov_b64 exec, 0xffff', (f'ds_write_b64 {vr(vSw)}, {vr(t + 4, 2)}', ['lnw']), 's_mov_b64 exec, -1'])
            if ks == 11:
                side += [[(f'buffer_store_dwordx4 {vr(vVd, 4)}, {vr(vVc)}, {srd(sWS)}, s{89 + tp} offen offset:2048 sc1', ['st1'])]
                         for tp in range(2)]
            txt = lambda x: x[0] if isinstance(x, tuple) else (x.text if isinstance(x, Ins) else x)
            isv = lambda g_: txt(g_[-1]).startswith('buffer') or txt(g_[-1]).startswith('ds_')
            for n, m_ in enumerate(ms):
                p(m_)
                didS = False
                if side and not isv(side[0]):
                    p.add(list(side.pop(0)))
                    didS = True
                didR = False
                if R and (n % 3 != 2 or len(R) >= len(ms) - n):
                    p(R.pop(0))
                    didR = True
                if side and isv(side[0]) and not didS and (not didR or (self.c.csq and n % 2 == 0)):
                    p.add(list(side.pop(0)))
                if fin and n >= (7 if ah else 5):
                    p.add(fin.pop(0))
            p.add(fin)
            if ks == (6 if self.c.csq else 8):
                p(f'v_mov_b32 {vr(vFl)}, 0')
                p(f'buffer_load_dword {vr(vFl)}, {vr(vFl)}, {srd(sDBG)}, 0 offen sc1')
            if ks == 9 and self.c.csq:
                p(f'v_mov_b32 {vr(vP)}, 0')
                self.check(vFl, vP, 32, sDBG)
                p.add(csl)
        self.emit_groups(side)
        self.stamp(2)
        qs = math.log2(math.e) / math.sqrt(28.0)
        if not self.c.stahead:
            p('s_mov_b64 exec, 0xffff')
            p(f'ds_write_b64 {vr(vSw)}, {vr(t + 4, 2)}', tokw=['lnw'])
            p('s_mov_b64 exec, -1')
            p.need('lnw')
            p('s_barrier')
            p.add(stat_reads())
        if self.c.csq:
            L, Dn = p.label('cs'), p.label('csd')
            p(f"""{L}:
v_max3_u32 {vr(t)}, {vr(CS)}, {vr(CS + 1)}, {vr(CS + 2)}
v_max3_u32 {vr(t + 1)}, {vr(CS + 3)}, {vr(CS + 4)}, {vr(CS + 5)}
v_max3_u32 {vr(t)}, {vr(CS + 6)}, {vr(CS + 7)}, {vr(t)}
v_max3_u32 {vr(t)}, {vr(CS + 8)}, {vr(t + 1)}, {vr(t)}
v_cmp_eq_u32 vcc, -1, {vr(t)}
s_cbranch_vccz {Dn}""")
            p.add(csl)
            p(f's_sub_u32 s{sTO}, s{sTO}, 1\ns_cmp_lg_u32 s{sTO}, 0\ns_cbranch_scc1 {L}\ns_branch .Lexit\n{Dn}:')
        if self.c.fine == 11:
            self.stamp(24)

        def qk_store(sec, tp, d):
            for e in range(2):
                tt = 2 * tp + e
                st = vr(TK + 2 * tt, 2)
                for h in range(2):
                    a = vr(acc(sec, tt) + 2 * h, 2)
                    p(f'v_pk_fma_f32 {a}, {vr(CS + 4 * sec + 2 * h, 2)}, {st}, {a} op_sel:[0,1,0] op_sel_hi:[1,1,1]')
                    p(f'v_pk_mul_f32 {a}, {a}, {st} op_sel_hi:[1,0]')
                a = acc(sec, tt)
                p(f'v_cvt_pk_bf16_f32 {vr(d + 2 * e)}, {vr(a)}, {vr(a + 1)}')
                p(f'v_cvt_pk_bf16_f32 {vr(d + 2 * e + 1)}, {vr(a + 2)}, {vr(a + 3)}')
            c0, c1 = ('0', '0') if sec == 0 else (vr(vK0), vr(vK1))
            p(f'v_mov_b32 {vr(d + 6)}, {c0}\nv_mov_b32 {vr(d + 7)}, {c1}')
            p(f'v_permlane16_swap_b32 {vr(d)}, {vr(d + 2)}')
            p(f'v_permlane16_swap_b32 {vr(d + 1)}, {vr(d + 3)}')
            p(f"""v_mov_b32 {vr(d + 4)}, {vr(d + 2)}
v_mov_b32 {vr(d + 5)}, {vr(d + 3)}
v_cndmask_b32 {vr(d + 2)}, {vr(d + 2)}, {vr(d + 6)}, {sp(sM2)}
v_cndmask_b32 {vr(d + 3)}, {vr(d + 3)}, {vr(d + 7)}, {sp(sM2)}""")
            va, vb, so, o = (vQa, vQb, 88, 2048 * tp) if sec == 0 else (vKa, vKb, 89 + tp, 0)
            p(f'buffer_store_dwordx4 {vr(d, 4)}, {vr(va)}, {srd(sWS)}, s{so} offen{off(o)} sc1', tokw=['st1'])
            p(f'buffer_store_dwordx4 {vr(d + 4, 4)}, {vr(vb)}, {srd(sWS)}, s{so} offen{off(o)} sc1', tokw=['st1'])

        qk_store(1, 0, D)
        qk_store(1, 1, D + 8)
        for tp in range(2):
            d = D + 16 + 4 * tp
            for e in range(2):
                tt = 2 * tp + e
                for r in range(4):
                    a = acc(2, tt) + r
                    st = TV + 8 * tt + 2 * r
                    p(f'v_fmac_f32 {vr(a)}, {vr(st + 1)}, {vr(CS + 8)}')
                    p(f'v_mul_f32 {vr(a)}, {vr(a)}, {vr(st)}')
                a = acc(2, tt)
                p(f'v_cvt_pk_bf16_f32 {vr(d + 2 * e)}, {vr(a)}, {vr(a + 1)}')
                p(f'v_cvt_pk_bf16_f32 {vr(d + 2 * e + 1)}, {vr(a + 2)}, {vr(a + 3)}')
            p(f'buffer_store_dwordx4 {vr(d, 4)}, {vr(vVa)}, {srd(sWS)}, s{89 + tp} offen offset:2048 sc1', tokw=['st1'])
        for tt in range(4):
            p(f'v_mul_f32 {vr(TK + 2 * tt)}, {hx(qs)}, {vr(TK + 2 * tt)}')
        qk_store(0, 0, D + 24)
        qk_store(0, 1, D + 32)
        if self.c.rlate:
            self.emit_groups(self.r_issue())
        if self.c.fine == 11:
            self.stamp(25)
        if not self.c.csq:
            p(f'v_mov_b32 {vr(vP)}, 0')
            self.check(vFl, vP, 32, sDBG)
        p.need('st1', 'sent')
        self.arrive(vAr, 3)
        self.stamp(3)
        self.attn_setup()
        p('s_branch .Lattn')

    def spare(self):
        p = self.p
        p('.Lspare:')
        sSPI, sOM = sT0, sA0
        t = 6
        p(f'''s_lshl_b32 s{sOM}, s{sXC}, 2
s_add_u32 s{sOM}, s{sOM}, s{sIDX}
s_sub_u32 s{sOM}, s{sOM}, 28
s_lshl_b32 s{sOM}, s{sOM}, 2
s_add_u32 s{sOM}, s{sOM}, s{sW}''')
        p(f's_lshl_b32 s{sT1}, s{sOM}, 10')
        for r in range(4):
            p(f'v_mov_b32 {vr(8 + r)}, 0')
        p(f'buffer_store_dwordx4 {vr(8, 4)}, {vr(vL16)}, {srd(sWS)}, s{sT1} offen sc1', tokw=['z'])
        if self.c.csq:
            p(f'''s_lshr_b32 s88, s{sOM}, 2
s_lshl_b32 s89, s88, 8
s_add_u32 s89, s89, {CSQ}
s_mul_i32 s90, s{sW}, {112 * 2688}
s_lshl_b32 s{sT2}, s88, 7
s_add_u32 s90, s90, s{sT2}
s_cmp_ge_u32 s88, 21
s_cselect_b32 s89, {OOR}, s89
s_cselect_b32 s90, {OOR}, s90
v_mov_b32 v12, -1
v_lshlrev_b32 v96, 2, {vr(vL)}
v_lshrrev_b32 v97, 3, {vr(vL)}
v_and_b32 v98, 7, {vr(vL)}
v_mul_u32_u24 v99, 2688, v97
v_lshl_add_u32 v99, v98, 4, v99
v_lshl_add_u32 v97, v98, 3, v97
v_lshlrev_b32 v97, 2, v97''')
            p(f'buffer_store_dword v12, v96, {srd(sWS)}, s89 offen sc1', tokw=['z'])
            for n in range(14):
                p(f's_add_u32 s{sT2}, s90, {n * 8 * 2688}')
                p(f'buffer_load_dwordx4 {vr(104 + 4 * n, 4)}, v99, {srd(sWQ)}, s{sT2} offen')
        p(f'''s_sub_u32 s{sT1}, s{sIDX}, 28
s_lshl_b32 s{sT1}, s{sT1}, 2
s_add_u32 s{sT1}, s{sT1}, s{sW}
s_lshl_b32 s{sT1}, s{sT1}, 13
v_lshlrev_b32 {vr(t)}, 7, {vr(vL)}
v_add_u32 {vr(t)}, s{sT1}, {vr(t)}
s_mov_b32 s{sT1}, .Lend-.Lpc0
v_min_u32 {vr(t)}, s{sT1}, {vr(t)}
global_load_dword {vr(250)}, {vr(t)}, {sp(sPC)}''')
        p.need('z')
        p('s_barrier')
        p(f's_cmp_lg_u32 s{sW}, 0\ns_cbranch_scc1 .Lnozero')
        p(f's_mov_b64 exec, 1\nbuffer_atomic_add {vr(vONE)}, {vr(8)}, {srd(sDBG)}, 0 offen sc1\ns_mov_b64 exec, -1')
        p('.Lnozero:')
        if self.c.sdelay:
            p(f'v_mov_b32 {vr(12)}, 0')
            self.poll(12, 32, sDBG, 13)
        if self.c.csq:
            self.colsum(104, 160)
            p(f's_lshl_b32 s{sT2}, s{sW}, 8\nv_add_u32 v98, s{sT2}, v97')
            p('ds_write_b32 v98, v160', tokw=['cq'])
            p.need('cq')
            p('s_barrier')
            for k in range(4):
                p(f'ds_read_b32 v{161 + k}, v96{off(256 * k)}')
            p('v_add_f32 v161, v161, v162\nv_add_f32 v163, v163, v164\nv_add_f32 v161, v161, v163\nv_min_u32 v161, -2, v161')
            p(f's_cmp_eq_u32 s{sW}, 0\ns_cselect_b32 s89, s89, {OOR}')
            p(f'buffer_store_dword v161, v96, {srd(sWS)}, s89 offen sc1')
        if self.c.wtouch:
            p(f'''v_lshlrev_b32 v100, 7, {vr(vL)}
s_mul_i32 s{sT1}, s{sOM}, {49 * 128}
s_mul_i32 s{sT2}, s{sOM}, {25 * 128}
s_mov_b32 exec_hi, 0x1ffff
buffer_load_dword v101, v100, {srd(sWU)}, s{sT1} offen
s_mov_b64 exec, 0x1ffffff
buffer_load_dword v102, v100, {srd(sWO)}, s{sT2} offen
s_mov_b64 exec, -1''')
        if self.c.stouch:
            p(f'''s_sub_u32 s{sT5}, s{sIDX}, 28
s_lshl_b32 s{sT5}, s{sT5}, 2
s_add_u32 s{sT5}, s{sT5}, s{sW}
s_lshl_b32 s{sT5}, s{sT5}, 4
s_lshl_b32 s{sG}, s{sXC}, 8
s_add_u32 s{sT5}, s{sT5}, s{sG}
s_lshl_b32 s{sT5}, s{sT5}, 12
s_add_u32 s{sT5}, s{sT5}, 4096
v_lshlrev_b32 v100, 12, {vr(vQ)}
v_lshl_add_u32 v100, {vr(vC)}, 8, v100''')
            for k in range(self.c.stouch):
                p(f'buffer_load_dword v{101 + k}, v100, {srd(sSP)}, s{sT5} offen\ns_add_u32 s{sT5}, s{sT5}, {4 * 4096}')
        B, A, vS = 16, 72, 14
        p(f'''s_mul_i32 s{sT0}, s{sOM}, 2341
s_lshr_b32 s{sA1}, s{sT0}, 16
s_mul_i32 s{sT0}, s{sA1}, 28
s_sub_u32 s{sA2}, s{sOM}, s{sT0}
s_mul_i32 s{sT0}, s{sA1}, {112 * 3584}
s_lshl_b32 s{sT1}, s{sA2}, 7
s_add_u32 s{sT0}, s{sT0}, s{sT1}
v_lshrrev_b32 {vr(t)}, 3, {vr(vL)}
v_and_b32 {vr(t + 1)}, 7, {vr(vL)}
v_mul_u32_u24 {vr(vS)}, 3584, {vr(t)}
v_lshl_add_u32 {vr(vS)}, {vr(t + 1)}, 4, {vr(vS)}''')
        for n in range(14):
            p(f's_add_u32 s{sT1}, s{sT0}, {n * 8 * 3584}')
            p(f'buffer_load_dwordx4 {vr(B + 4 * n, 4)}, {vr(vS)}, {srd(sWI)}, s{sT1} offen')
        n_, f_, j_, u_, m_ = 80, 81, 82, 83, 84
        p(f'''s_lshl_b32 s{sT1}, s{sA2}, 6
v_lshl_add_u32 {vr(n_)}, {vr(t + 1)}, 3, {vr(t)}
v_add_u32 {vr(n_)}, s{sT1}, {vr(n_)}
v_cmp_gt_u32 vcc, 896, {vr(n_)}
v_subrev_u32 {vr(f_)}, 896, {vr(n_)}
v_cndmask_b32 {vr(f_)}, {vr(f_)}, {vr(n_)}, vcc
v_cndmask_b32 {vr(n_)}, 0, {vr(vONE)}, vcc
v_lshrrev_b32 {vr(j_)}, 4, {vr(f_)}
v_mul_u32_u24 {vr(j_)}, 37, {vr(j_)}
v_lshrrev_b32 {vr(j_)}, 8, {vr(j_)}
v_mul_u32_u24 {vr(u_)}, 112, {vr(j_)}
v_sub_u32 {vr(f_)}, {vr(f_)}, {vr(u_)}
v_lshl_add_u32 {vr(j_)}, {vr(j_)}, 1, {vr(n_)}
v_mul_u32_u24 {vr(j_)}, 105, {vr(j_)}
v_lshrrev_b32 {vr(u_)}, 5, {vr(f_)}
v_bfe_u32 {vr(n_)}, {vr(f_)}, 2, 1
v_lshl_add_u32 {vr(u_)}, {vr(u_)}, 1, {vr(n_)}
v_bfe_u32 {vr(m_)}, {vr(f_)}, 3, 2
v_and_b32 {vr(n_)}, 3, {vr(f_)}
v_lshl_add_u32 {vr(m_)}, {vr(m_)}, 2, {vr(n_)}
v_cmp_gt_u32 vcc, 96, {vr(f_)}
v_subrev_u32 {vr(n_)}, 96, {vr(f_)}
v_cndmask_b32 {vr(m_)}, {vr(n_)}, {vr(m_)}, vcc
v_cndmask_b32 {vr(u_)}, 6, {vr(u_)}, vcc
v_add_u32 {vr(j_)}, {vr(j_)}, {vr(u_)}
v_lshlrev_b32 {vr(j_)}, 10, {vr(j_)}
v_lshl_add_u32 {vr(j_)}, {vr(m_)}, 4, {vr(j_)}
s_lshl_b32 s{sT1}, s{sA1}, 8
s_add_u32 s{sT1}, s{sT1}, {WIF + 98 * 1024}
s_cmp_ge_u32 s{sOM}, 112
s_cselect_b32 s{sA3}, {OOR}, s{sT1}''')
        self.r_setup()
        self.emit_groups(self.r_issue())
        self.sentinel_init()
        self.colsum(B, A)
        p(f'''v_cvt_pk_bf16_f32 {vr(B)}, {vr(A)}, {vr(A)}
v_and_b32 {vr(A + 1)}, 0xffff0000, {vr(B)}
v_sub_f32 {vr(A)}, {vr(A)}, {vr(A + 1)}
v_cvt_pk_bf16_f32 {vr(B + 1)}, {vr(A)}, {vr(A)}
v_mov_b32 {vr(B + 2)}, 0
v_mov_b32 {vr(B + 3)}, 0''')
        p(f'buffer_store_dwordx4 {vr(B, 4)}, {vr(j_)}, {srd(sWS)}, s{sA3} offen sc1', tokw=['cst'])
        if self.c.rp1:
            p.add(self.r_finish())
            self.emit_groups(self.h_marks())
        if not self.c.sdelay:
            p(f'v_mov_b32 {vr(12)}, 0')
            self.poll(12, 32, sDBG, 13)
        p(f'''v_lshlrev_b32 {vr(15)}, 7, {vr(vL)}
v_add_u32 {vr(15)}, {CNT + self.C_RDY * 128}, {vr(15)}''')
        p.need('cst', 'sent')
        p('s_barrier')
        La = p.label('noarr')
        p(f's_cmp_lg_u32 s{sW}, 0\ns_cbranch_scc1 {La}')
        if self.NC == 4:
            p(f's_mov_b32 exec_hi, 0')
        p(f'buffer_atomic_add {vr(vONE)}, {vr(15)}, {srd(sWS)}, 0 offen sc1')
        p('s_mov_b64 exec, -1')
        p(f'{La}:')
        self.emit_groups(self.sp_touch(False))
        self.attn_setup()
        self.stamp(3)

    def attn_setup(self):
        p = self.p
        c = self.c
        SCR = 106 * 1024
        vPo, vSP, vRdy, vRv, vW0, vRa, t = 7, 8, 9, 10, 11, 14, 244
        p(f'''s_mul_i32 s{sT0}, s{sHD}, 28
s_lshr_b32 s{sT1}, s{sT0}, 4
s_add_u32 s{sT0}, s{sT0}, 27
s_lshr_b32 s{sT2}, s{sT0}, 4
s_lshr_b32 s{sT3}, s{sQB}, 2
s_lshr_b32 s{sT4}, s{sHD}, 1
v_and_b32 {vr(vPo)}, 3, {vr(vL)}
v_add_u32 {vr(vPo)}, s{sT1}, {vr(vPo)}
v_min_u32 {vr(vPo)}, s{sT2}, {vr(vPo)}
v_mul_u32_u24 {vr(t)}, {16 * 2341}, {vr(vPo)}
v_lshrrev_b32 {vr(t)}, 17, {vr(t)}
v_sub_u32 {vr(t)}, s{sT4}, {vr(t)}
v_lshl_add_u32 {vr(vPo)}, {vr(vPo)}, 3, {vr(t)}
v_mov_b32 {vr(t)}, s{sW}
v_mov_b32 {vr(t + 2)}, s{sT3}
v_and_b32 {vr(t + 1)}, 4, {vr(vL)}
v_cmp_ne_u32 vcc, 0, {vr(t + 1)}
v_cndmask_b32 {vr(t)}, {vr(t)}, {vr(t + 2)}, vcc''')
        if c.onepoll:
            p(f'v_bfe_u32 {vr(t)}, {vr(vL)}, 2, 2')
        p(f'''v_lshl_add_u32 {vr(vPo)}, {vr(t)}, 1, {vr(vPo)}
v_lshlrev_b32 {vr(vPo)}, 7, {vr(vPo)}''')
        vD, vE = 226, 234
        p(f'''s_lshl_b32 s{sT0}, s{sJ}, {7 + self.LC}
s_add_u32 s{sT0}, s{sT0}, {CNT + self.C_RDY * 128}
v_lshlrev_b32 {vr(vRv)}, 7, {vr(vL)}
v_add_u32 {vr(vRa)}, s{sT0}, {vr(vRv)}
s_lshl_b32 s{sT1}, s{sRQ}, 7
s_add_u32 s{sT1}, s{sT1}, {CNT + self.C_RDY * 128}
v_and_b32 {vr(vRdy)}, 7, {vr(vL)}
v_lshlrev_b32 {vr(vRdy)}, {7 + self.LC}, {vr(vRdy)}
v_add_u32 {vr(vRdy)}, s{sT1}, {vr(vRdy)}
v_cmp_lt_u32 {sp(sM2)}, 31, {vr(vL)}
v_lshrrev_b32 {vr(t)}, 3, {vr(vL)}
v_and_b32 {vr(t + 1)}, 7, {vr(vL)}
v_xor_b32 {vr(t + 1)}, {vr(t + 1)}, {vr(vQ)}
v_lshlrev_b32 {vr(t)}, 12, {vr(t)}
v_lshl_add_u32 {vr(t)}, {vr(t + 1)}, 4, {vr(t)}
v_xor_b32 {vr(t + 1)}, 64, {vr(t)}
v_lshrrev_b32 {vr(t + 2)}, 1, {vr(vC)}
v_xor_b32 {vr(t + 2)}, {vr(t + 2)}, {vr(vQ)}
v_lshlrev_b32 {vr(t + 2)}, 4, {vr(t + 2)}
v_lshl_add_u32 {vr(t + 2)}, {vr(vC)}, 7, {vr(t + 2)}
v_xor_b32 {vr(t + 3)}, 64, {vr(t + 2)}
s_lshl_b32 s{sA1}, s{sW}, 14
s_mul_i32 s{sA2}, s{sW}, 12288
s_add_u32 s{sA2}, s{sA2}, {SCR}
v_add_u32 {vr(vE)}, s{sA1}, {vr(t + 2)}
v_add_u32 {vr(vE + 1)}, s{sA1}, {vr(t + 3)}
v_add_u32 {vr(vE + 2)}, s{sA2}, {vr(t + 2)}
v_add_u32 {vr(vE + 3)}, s{sA2}, {vr(t + 3)}
v_add_u32 {vr(vSP)}, s{sA2}, {vr(vL16)}
s_lshl_b32 s{sA0}, s{sI}, 18''')
        for a in range(4):
            p(f's_add_u32 s{sT0}, s{sW}, {1 + a}\ns_and_b32 s{sT0}, s{sT0}, 3')
            p(f'''s_lshl_b32 s{sT1}, s{sT0}, 16
s_lshl_b32 s{sT2}, s{sW}, 10
s_add_u32 s{sT1}, s{sT1}, s{sT2}
s_add_u32 s{sT2}, s{sT1}, {4096 - 2048 * (a % 2)}
v_add_u32 {vr(vD + 2 * a)}, s{sT2}, {vr(t)}
s_add_u32 s{sT2}, s{sT1}, {4096 + 8 * 4096 - 2048 * (a % 2) - 1024}
v_add_u32 {vr(vD + 2 * a + 1)}, s{sT2}, {vr(t + 1)}''')
            if a < 3:
                p(f'''s_add_u32 s{sT1}, s{sW}, {3 - a}
s_and_b32 s{sT1}, s{sT1}, 3
s_mul_i32 s{sT1}, s{sT1}, 12288
s_add_u32 s{sT1}, s{sT1}, {SCR + a * 4096}
v_add_u32 {vr(vW0 + a)}, s{sT1}, {vr(vL16)}''')
            p(f'''s_lshl_b32 s{sT1}, s{sHD}, 6
s_lshl_b32 s{sT2}, s{sQB}, 2
s_add_u32 s{sT1}, s{sT1}, s{sT2}
s_add_u32 s{sT1}, s{sT1}, s{sT0}
s_lshl_b32 s{sT1}, s{sT1}, 11
s_add_u32 s{88 + a}, s{sT1}, {QF}''')
        p(f'''s_lshl_b32 s{sT0}, s{sHD}, 18
s_add_u32 s{sT0}, s{sT0}, {KV}
s_lshl_b32 s{sT1}, s{sQB}, 14
s_add_u32 s{92}, s{sT0}, s{sT1}
s_lshl_b32 s{sT1}, s{sW}, 16
s_add_u32 s{93}, s{sT0}, s{sT1}''')
        sKR, sSR = sK2, sK2 + 1
        if c.rot5:
            p(f's_lshl_b32 s{sSR}, s{sJ}, 7' if c.map48 else f's_and_b32 s{sSR}, s{sJ}, 3\ns_lshl_b32 s{sSR}, s{sSR}, 8')
        else:
            p(f's_mov_b32 s{sSR}, 0')
        for g in range(8):
            p(f's_add_u32 s{sT4}, s{sSR}, {128 * g}\ns_and_b32 s{sT4}, s{sT4}, 1023\ns_add_u32 s{36 + g}, s{sT4}, s{sA0}')
        p(f'''s_mul_i32 s{sT1}, s{sJ}, {210 * 1024}
s_mul_i32 s{sT5}, s{sW}, {11 * 1024}
s_min_u32 s{sT5}, s{sT5}, {31 * 1024}
s_add_u32 s44, s{sT1}, s{sT5}
s_add_u32 s44, s44, {WIF}
s_add_u32 s45, s{sT5}, {64 * 1024}
s_lshl_b32 s46, s{sJ}, 16''')
        p(f's_add_u32 s{sT1}, s{sW}, s{sJ}' if c.rot36 else f's_mov_b32 s{sT1}, s{sW}')
        p(f'''s_and_b32 s{sT1}, s{sT1}, 3
s_lshl_b32 s{sT1}, s{sT1}, 14
s_add_u32 s46, s46, s{sT1}
s_add_u32 s46, s46, {WOF}
s_mul_i32 s47, s{sRT}, {16 * 896}
s_mul_i32 s{sT1}, s{sJ}, 112
s_add_u32 s47, s47, s{sT1}
v_mul_u32_u24 v239, 896, {vr(vC)}
v_lshl_add_u32 v239, {vr(vQ)}, 4, v239
s_lshl_b32 s88, s{sRT}, 5
v_lshlrev_b32 v15, 1, {vr(vC)}''')

    def attention(self):
        p = self.p
        c = self.c
        vD, vE = 226, 234
        sKR, sSR = sK2, sK2 + 1
        Q, O, S, P, KB = 16, 48, 112, 144, 152
        SCR, FLG = 106 * 1024, 155 * 1024
        vPo, vSP, vRdy, vRv, vW0 = 7, 8, 9, 10, 11
        vM = 240
        t = 244
        vRa = 14
        qf = lambda a, u: Q + 8 * a + 4 * u
        kf = lambda b, u: KB + 16 * b + 4 * u
        vf = lambda b, u: KB + 16 * b + 8 + 4 * u
        p('.Lattn:')
        if c.stop <= 1:
            self.finish()
            return
        if c.rearly:
            p.add(self.r_finish())
        if c.onepoll:
            Lp = p.label('nopoll')
            p(f's_cmp_lg_u32 s{sW}, 0\ns_cbranch_scc1 {Lp}')
            self.poll(vPo, 8)
            p(f'{Lp}:')
            p('s_barrier')
        else:
            self.poll(vPo, 8)
        self.stamp(4)
        QS = 96 * 1024
        if c.ownmax:
            for u in range(2):
                p(f'buffer_load_dwordx4 {vr(kf(3, u), 4)}, {vr(vL16)}, {srd(sWS)}, s92 offen{off(1024 * u)} sc1')
                p(f'buffer_load_dwordx4 {vr(qf(3, u), 4)}, {vr(vL16)}, {srd(sWS)}, s91 offen{off(1024 * u)} sc1')
        else:
            p(f's_lshl_b32 s{sT0}, s{sW}, 11\ns_add_u32 m0, s{sT0}, {QS}')
            for u in range(2):
                p(f'buffer_load_dwordx4 {vr(vL16)}, {srd(sWS)}, s91 offen{off(1024 * u)} sc1 lds', tokw=['q'])
            p(f's_and_b32 s{sT0}, s{sW}, 1\ns_lshl_b32 s{sT0}, s{sT0}, 10\ns_add_u32 m0, s{sT0}, {QS + 8192}')
            p(f's_add_u32 s{sT0}, s{sT0}, s92')
            p(f'buffer_load_dwordx4 {vr(vL16)}, {srd(sWS)}, s{sT0} offen sc1 lds', tokw=['q'])

        def kvreg(tl, which):
            if tl >= 12:
                return vr(KB + 16 * (tl - 12) + 4 * which, 4)
            g, hh = 2 + tl // 2, tl % 2
            return ar((2 * hh + which // 2) * 64 + 8 * g + 4 * (which % 2), 4)

        def kvload(tl, which):
            return f'buffer_load_dwordx4 {kvreg(tl, which)}, {vr(vL16)}, {srd(sWS)}, s{sKV} offen' \
                   f'{off(1024 * which)} sc1'

        def kvnext():
            return [f's_add_u32 s{sKR}, s{sKR}, 4096', f's_and_b32 s{sKR}, s{sKR}, 0xffff', f's_add_u32 s{sKV}, s93, s{sKR}']

        def first_kv(t0=0, t1=3):
            if t0 == 0:
                p(f's_lshl_b32 s{sKR}, s{sQB}, {12 + c.kvsh}' if c.rotkv else f's_mov_b32 s{sKR}, 0')
            for tl in range(t0, t1):
                p.add(kvnext())
                for wch in range(4):
                    p(kvload(tl, wch))
        first_kv(0, 1)
        for a in range(4):
            p(f's_add_u32 s{sT0}, s{sW}, {1 + a}\ns_and_b32 s{sT0}, s{sT0}, 3\ns_lshl_b32 s{sT0}, s{sT0}, 11')
            p(f'v_add_u32 {vr(t + 4 + a)}, s{sT0}, {vr(vA1)}')
        def share_q():
            p.need('q')
            if self.c.fine == 11:
                self.stamp(27)
            p('s_barrier')
            if self.c.fine == 11:
                self.stamp(28)
            if not c.ownmax:
                for u in range(2):
                    p(f'ds_read_b128 {vr(kf(3, u), 4)}, {vr(vA1)}{off(32768 + 8192 + 1024 * u)}')
            for a in range(3 if c.ownmax else 4):
                for u in range(2):
                    p(f'ds_read_b128 {vr(qf(a, u), 4)}, {vr(t + 4 + a)}{off(32768 + 1024 * u)}')
        if not c.ownmax:
            share_q()
        self.pre_at = len(p.ins)

        def tile_max(a, b, first):
            s = S + 16 * (a % 2)
            o = [mf32(s, kf(b, 0), qf(a, 0), None), mf32(s, kf(b, 1), qf(a, 1), s)]
            m = vM + a
            v = [f'v_max3_f32 {vr(m)}, {vr(s)}, {vr(s + 1)}, {vr(s + 2) if first else vr(m)}']
            rest = list(range(3 if first else 2, 16))
            while len(rest) >= 2:
                v.append(f'v_max3_f32 {vr(m)}, {vr(s + rest[0])}, {vr(s + rest[1])}, {vr(m)}')
                rest = rest[2:]
            if rest:
                v.append(f'v_max_f32 {vr(m)}, {vr(s + rest[0])}, {vr(m)}')
            return o, v

        def max_pass(b, first):
            ms = [tile_max(a, b, first) for a in range(4)]
            ex = []
            if first:
                for tl in (1, 2):
                    ex += [kvnext() + [kvload(tl, 0)]] + [[kvload(tl, wch)] for wch in (1, 2, 3)]

            def mf(a):
                for m_ in ms[a][0]:
                    p(m_)
                    if ex:
                        p.add(ex.pop(0))
            mf(0)
            for a in range(4):
                if a < 3:
                    mf(a + 1)
                p.add(ms[a][1])

        def half_max(slots=range(4)):
            for a in slots:
                p(f'v_mov_b32 {vr(t + a)}, {vr(vM + a)}')
            for a in slots:
                p(f'v_permlane32_swap_b32 {vr(t + a)}, {vr(vM + a)}')
            for a in slots:
                p(f'v_max_f32 {vr(vM + a)}, {vr(t + a)}, {vr(vM + a)}')

        def patch_q(full, slots=range(4)):
            for a in slots:
                m = vM + a
                p(f'v_sub_f32 {vr(m)}, 0, {vr(m)}')
                p(f'v_cvt_pk_bf16_f32 {vr(t)}, {vr(m)}, 0')
                if full:
                    p(f'''v_lshlrev_b32 {vr(t + 1)}, 16, {vr(t)}
v_sub_f32 {vr(m)}, {vr(m)}, {vr(t + 1)}
v_cvt_pk_bf16_f32 {vr(t + 1)}, {vr(m)}, 0
v_lshlrev_b32 {vr(t + 1)}, 16, {vr(t + 1)}
v_sub_f32 {vr(m)}, {vr(m)}, {vr(t + 1)}
v_or_b32 {vr(t)}, {vr(t)}, {vr(t + 1)}
v_cvt_pk_bf16_f32 {vr(t + 1)}, {vr(m)}, 0
v_cndmask_b32 {vr(qf(a, 1) + 3)}, {vr(qf(a, 1) + 3)}, {vr(t + 1)}, {sp(sM2)}''')
                p(f'v_cndmask_b32 {vr(qf(a, 1) + 2)}, {vr(qf(a, 1) + 2)}, {vr(t)}, {sp(sM2)}')
        if self.c.fine == 11:
            self.stamp(29)
        if c.ownmax:
            m_, v_ = tile_max(3, 3, True)
            p.add(m_)
            first_kv(1, 2)
            p.add(v_)
            half_max([3])
            patch_q(False, [3])
            for u in range(2):
                p(f'ds_write_b128 {vr(t + 7)}, {vr(qf(3, u), 4)}{off(32768 + 1024 * u)}', tokw=['q'])
            first_kv(2, 3)
            share_q()
        else:
            max_pass(3, True)
            half_max()
            patch_q(False)
        def owrite(a):
            return [[(f'ds_write_b128 {vr(vSP)}, {vr(O + 16 * a + 4 * k, 4)}{off(4096 * a + 1024 * k)}', ['ow'])]
                    for k in range(4)]
        p(f'''v_and_b32 {vr(vPo)}, 1, {vr(vQ)}
v_lshlrev_b32 {vr(vPo)}, 10, {vr(vPo)}
v_lshrrev_b32 {vr(t)}, 1, {vr(vQ)}
v_lshl_add_u32 {vr(vPo)}, {vr(t)}, 8, {vr(vPo)}
v_lshl_add_u32 {vr(vPo)}, {vr(vC)}, 4, {vr(vPo)}''')
        if c.tag:
            p(f'''s_mul_i32 s89, s{sRT}, 14336
s_mul_i32 s{sT2}, s{sJ}, {7 * 256}
s_add_u32 s89, s89, s{sT2}
s_add_u32 s89, s89, {HF}
v_cmp_eq_u32 vcc, 3, {vr(vQ)}
v_mov_b32 {vr(t)}, {OOR}
v_cndmask_b32 {vr(t)}, {vr(vL16)}, {vr(t)}, vcc''')
            for r in range(4):
                p(f'v_mov_b32 {vr(vM + r)}, -1')
        p(f's_mov_b32 s90, s91')
        p('.Lsweep:')
        p(f'''s_lshl_b32 s{sA3}, s{sW}, 13
s_add_u32 s{sA3}, s{sA3}, {64 * 1024}
s_sub_u32 s{sT0}, s{sA3}, s{sA1}
v_add_u32 v250, s{sT0}, {vr(vE)}
v_add_u32 v251, s{sT0}, {vr(vE + 1)}''')
        if c.wl2:
            p(f'v_lshlrev_b32 v254, 7, {vr(vL)}')
        if c.sched == 5:
            p(f's_lshl_b32 s{sT0}, s{sJ}, 2\ns_add_u32 s{sT0}, s{sT0}, s{sW}\ns_lshl_b32 s{sT0}, s{sT0}, 13\n'
              f's_add_u32 s{sT0}, s{sT0}, 4096\nv_lshlrev_b32 v254, 7, {vr(vL)}\nv_add_u32 v254, s{sT0}, v254')
        if c.sched in (3, 4):
            p(f's_lshl_b32 s{sT0}, s{sW}, 10\ns_add_u32 s{sT0}, s{sT0}, 4096\nv_lshlrev_b32 v254, 12, {vr(vL)}\nv_add_u32 v254, s{sT0}, v254')
        self.stamp(5)
        NP = 256
        Ss = [None] * NP
        Ms = [[] for _ in range(NP)]
        valid = lambda q: 0 <= q < NP and q not in (2, 252, 253)

        def putS(item, lo, hi=None):
            rng = range(hi, lo - 1, -1) if hi is not None else range(lo, NP)
            for q in rng:
                if valid(q) and Ss[q] is None:
                    Ss[q] = item
                    return q
            raise AssertionError((item, lo, hi))

        def putM(item, lo, vm):
            for q in range(lo, NP):
                if valid(q) and not any(k == vm for k, _ in Ms[q]):
                    Ms[q].append((vm, item))
                    return q
            raise AssertionError(item)

        def stream(items, start, step):
            cur = start - 1
            tgt = float(start)
            last = start
            for k, it in items:
                if k == 'S':
                    cur = putS(it, cur + 1)
                elif k == 'N':
                    cur = putS(it, max(cur + 1, int(tgt))) - 1
                else:
                    cur = putM(it, max(cur + 1, int(tgt)), k)
                    tgt = max(tgt, cur - 1) + step
                    last = cur
            return last
        need = lambda *tk: ('; need', [], list(tk))
        for tl in range(2, 15):
            Ss[16 * tl + 11] = need(f'k{tl + 1}')
            Ss[16 * (tl + 1) + 2] = need(f'v{tl + 1}')
        for a in range(2):
            for k in range(4):
                Ms[248 + 4 * a + k].append(('D', owrite(a)[k][0]))

        def kv_items(t0, t1):
            it = []
            for tl in range(t0, t1):
                it += [('V', (kvload(tl, wch).replace(f's{sKV} ', f's{(sKV, sL)[tl % 2]} '), [f'{"kkvv"[wch]}{tl}']))
                       for wch in range(4)]
            return it

        def kv_scalar(tl, lo, hi):
            q = lo
            for x in kvnext():
                q = putS(x.replace(f's{sKV},', f's{(sKV, sL)[tl % 2]},'), q) + 1
            assert q <= hi, (tl, q, hi)

        def kv_stream(t0, t1, start, step):
            pos_ = start
            for tl in range(t0, t1):
                first = int(pos_)
                if tl > 3:
                    kv_scalar(tl, self._kvs, 10 ** 6)
                    first = max(first, max(q for q in range(NP) if Ss[q] is not None and isinstance(Ss[q], str)
                                           and f's{(sKV, sL)[tl % 2]},' in Ss[q]) + 1)
                self._kvs = first
                last = stream(kv_items(tl, tl + 1), first, step)
                assert last < 16 * (tl - 1) + 11 or tl < 4, (tl, last)
                pos_ = last + step
            return int(pos_)

        def sp_items(g, n0, n1):
            sb, ob = (sA1, 8192 * g) if g < 2 else ((sA2, 0) if g % 2 == 0 else (sA3, 0))
            it = []
            for n in range(n0, n1):
                if n % 4 == 0 or n == n0:
                    it.append(('S', f's_add_u32 m0, s{sb}, {ob + 1024 * (n - n % 4)}'))
                it.append(('V', (f'buffer_load_dwordx4 {vr(vD + n)}, {srd(sSP)}, s{36 + g} offen{off(1024 * (n % 4))} lds',
                                 [f'sd{g}'])))
            return it

        def sp_reads(g, start):
            ob = 8192 * g if g < 2 else 0
            ve = vE if g < 2 else (vE + 2 if g % 2 == 0 else 250)
            it = [('N', need(f'sd{g}'))]
            for a in range(4):
                for e in range(2):
                    it.append(('D', (f'ds_read_b128 {ar((a * 16 + 2 * g + e) * 4, 4)}, '
                                     f'{vr(ve + e)}{off(ob + a * 2048)}', [f'sr{g}'])))
            return stream(it, max(start, 32 * (g - 1) + 4), 1.0)
        rf = self.r_finish()
        if c.rearly or c.rp1:
            rf = rf[:9]
        else:
            stream([('N', rf[0])] + [('D', x) for x in rf[1:9]], 0, 1.0)
        self._kvs = 0
        misc = [('V', x) for x in rf[9:]]
        if c.tag:
            st = lambda va, so, o_: ('V', (f'buffer_store_dwordx4 {vr(vM, 4)}, {vr(va)}, {srd(sWS)}, s{so} offen{off(o_)} sc1', ['rst']))
            misc += [st(vL16, 90, 0), st(vL16, 90, 1024)] + ([] if c.rp1 else [st(vL16, 89, 0), st(t, 89, 1024)])
        misc += [('V', f'buffer_load_dwordx4 {vr(vXR, 4)}, v239, {srd(sX)}, s47 offen'),
                 ('V', f'buffer_load_dwordx4 {vr(vXR + 4, 4)}, v239, {srd(sX)}, s47 offen offset:64'),
                 ('V', f'buffer_load_ushort {vr(vBS)}, v15, {srd(sBS)}, s88 offen')]
        rend = {}
        self.pre_items = []
        wo_it = []
        for n in range(16):
            if n % 4 == 0:
                wo_it += [('S', f's_add_u32 s{sG}, s46, {1024 * n}'), ('S', f's_add_u32 m0, s{sA1}, {1024 * n}')]
            wo_it.append(('V', (f'buffer_load_dwordx4 {vr(vL16)}, {srd(sWS)}, s{sG} offen{off(1024 * (n % 4))} sc1 lds', ['wo'])))
        if c.sched == 1:
            pos = kv_stream(3, 5, 0, c.vstep0)
            pos = stream(misc[:-3], max(pos, 11), c.vstep0) + 1
            pos = kv_stream(5, c.ka, pos, c.vstep0)
            putS('ARRIVE', pos - 6)
            pos = stream(misc[-3:] + sp_items(0, 0, 8), pos, c.vstep) + 1
            pos = stream(sp_items(1, 0, 3), pos, c.vstep) + 1
            pos = stream(sp_items(1, 3, 8), max(pos, c.pm - 26), c.vstep) + 1
            rend[0] = sp_reads(0, c.pm)
            rend[1] = sp_reads(1, max(rend[0] + 1, pos + c.splag))
        elif c.sched in (3, 4, 5):
            tch = lambda g: ('V', f'buffer_load_dword v{248 + g}, v254, {srd(sSP)}, s{36 + g} offen')
            pos = kv_stream(3, c.ka, 0, c.vstep)
            pos = stream(misc, max(pos, 12), c.vstep) + 1
            if c.sched == 3:
                pos = stream(sp_items(0, 0, 8) + [tch(1)], pos, c.vstep) + 1
                putS('ARRIVE', pos + 6)
                rend[0] = sp_reads(0, c.pm)
                pos = max(pos, c.pm)
            else:
                pos = stream([tch(0), tch(1)] if c.sched == 4 else
                             [('V', f'buffer_load_dword v248, v254, {srd(sSP)}, s{sA0} offen')], pos, c.vstep) + 1
                putS('ARRIVE', pos + 6)
                pos = stream(sp_items(0, 0, 8), max(pos, c.pm - 12), c.vstep) + 1
                rend[0] = sp_reads(0, pos + c.splag)
            pos = stream(sp_items(1, 0, 8), pos, c.vstep) + 1
            rend[1] = sp_reads(1, pos + c.splag)
        else:
            self.pre_items = [x[1] for x in sp_items(0, 0, 8)]
            pos = kv_stream(3, 4, 12, c.vstep)
            pos = kv_stream(4, c.ka, max(pos, c.p0), c.vstep)
            rend[0] = sp_reads(0, c.p0 + 8)
            pos = stream(misc, pos, c.vstep) + 1
            pos = stream(sp_items(1, 0, 8), pos, c.vstep) + 1
            putS('ARRIVE', pos + 6)
            rend[1] = sp_reads(1, c.pm)
        pos = max(pos, c.pm)
        nxt = c.ka
        for g in range(2, 8):
            if nxt < 16:
                n2 = min(16, nxt + (2 if g < 4 else 1) if 16 - nxt > 7 - g else nxt + 1)
                pos = kv_stream(nxt, n2, pos, c.vstep)
                nxt = n2
            it = []
            if g >= 4:
                if g == c.wog:
                    putM(f'buffer_load_dword {vr(vRv)}, {vr(vRdy)}, {srd(sWS)}, 0 offen sc1', pos - 30, 'V')
                    pos = putS('CHECK', max(pos, rend[1] + 1)) + 1
                    self.chk_pos = pos
                    wo_it.insert(0, ('S', need('sr0', 'sr1')))
                if g >= c.wog:
                    k = 6 + len(wo_it) % 6
                    if rend[g - 2] + 1 > pos or g == 7:
                        pos = stream(wo_it[:k], pos, c.vstep) + 1
                        wo_it = wo_it[k:]
                pos = max(pos, rend[g - 2] + 1)
                it.append(('S', need(f'sr{g - 2}')))
            pos = stream(it + sp_items(g, 0, 8), pos, c.vstep) + 1
            rend[g] = sp_reads(g, pos + c.splag)
        assert nxt == 16
        if wo_it:
            pos = stream(wo_it, pos, c.vstep) + 1
        it = []
        for n in range(11):
            if n % 4 == 0:
                it += [('S', f's_add_u32 s{sG}, s44, {1024 * n}'), ('S', f's_add_u32 m0, s45, {1024 * n}')]
            it.append(('V', (f'buffer_load_dwordx4 {vr(vL16)}, {srd(sWS)}, s{sG} offen{off(1024 * (n % 4))} sc1 lds', ['z2a'])))
        self.z2a_items = [x[1] for x in it]
        if c.wl2:
            it = [('S', f's_and_b32 s{sT0}, s{sRT}, 31'), ('S', f's_mul_i32 s{sT1}, s{sJ}, {210 * 1024}'),
                  ('S', f's_mul_i32 s{sT2}, s{sT0}, {53 * 128}'), ('S', f's_add_u32 s{sT1}, s{sT1}, s{sT2}'),
                  ('S', f's_add_u32 s{sT1}, s{sT1}, {WIF}'), ('S', f's_mul_i32 s{sT2}, s{sJ}, {112 * 1024}'),
                  ('S', f's_mul_i32 s{sT0}, s{sT0}, {28 * 128}'), ('S', f's_add_u32 s{sT2}, s{sT2}, s{sT0}'),
                  ('S', f's_add_u32 s{sT2}, s{sT2}, {WUF}')]
            stream(it, 130, 1.0)
            it = [('V', ['s_mov_b32 exec_hi, 0x1fffff', f'buffer_load_dword v246, v254, {srd(sWS)}, s{sT1} offen sc1',
                         's_mov_b32 exec_hi, -1']),
                  ('V', ['s_mov_b64 exec, 0xfffffff', f'buffer_load_dword v247, v254, {srd(sWS)}, s{sT2} offen sc1',
                         's_mov_b64 exec, -1'])]
            pos = stream(it, pos if c.wl2 == 1 else self.chk_pos + 2, 2.0) if c.wl2 == 1 else max(pos, stream(it, self.chk_pos + 2, 2.0))
        pos = max(pos, rend[7])
        self.info = dict(rend=rend, wo_end=pos)
        assert pos < 248, pos
        tmp = Prog()
        tmp.add(self.pre_items)
        p.ins[self.pre_at:self.pre_at] = tmp.ins

        p.add([x.replace(f's{sKV},', f's{sL},') for x in kvnext()])
        p(mf32(S, kvreg(0, 0), qf(0, 0), None))
        p(mf32(S, kvreg(0, 1), qf(0, 1), S))
        for n in range(64):
            tl, a = n // 4, n % 4
            if c.fine == 2 and n % 8 == 0 and n:
                self.stamp(24 + n // 8 - 1)
            if c.fine in (21, 22) and n % 4 == 0 and 0 <= n // 4 - 1 - 8 * (c.fine - 21) < 8:
                self.stamp(24 + n // 4 - 1 - 8 * (c.fine - 21))
            sc, sn = S + 16 * (n % 2), S + 16 * ((n + 1) % 2)
            ms = [None] * 4
            if n < 63:
                t1, a1 = (n + 1) // 4, (n + 1) % 4
                ms[0] = mf32(sn, kvreg(t1, 0), qf(a1, 0), None)
                ms[1] = mf32(sn, kvreg(t1, 1), qf(a1, 1), sn)
            if n > 0:
                t0, a0 = (n - 1) // 4, (n - 1) % 4
                ms[2] = mf32(O + 16 * a0, kvreg(t0, 3), P + 4, O + 16 * a0)
            ms[3] = mf32(O + 16 * a, kvreg(tl, 2), P, None if tl == 0 else O + 16 * a)
            for g in range(4):
                q = 4 * n + g
                if ms[g]:
                    p(ms[g])
                it = Ss[q]
                if it == 'CHECK':
                    self.check(vRv, vRdy, 160)
                elif it == 'ARRIVE':
                    La = p.label('noarr')
                    p(f's_cmp_lg_u32 s{sFB}, 0\ns_cbranch_scc1 {La}')
                    p.need('rst')
                    self.arrive(vRa, (1 << self.NC) - 1)
                    p(f'{La}:')
                elif it:
                    p.add(it)
                for _, it in sorted(Ms[q], key=lambda x: x[0]):
                    if c.nosp and isinstance(it, tuple) and it[1] and it[1][0][:2] in ('sd', 'sr') and \
                            (int(it[1][0][2:]) >= 8 - c.nosp if c.nosp > 0 else int(it[1][0][2:]) < -c.nosp):
                        continue
                    p.add(it)
                for jx in range(4):
                    p(f'v_exp_f32 {vr(sc + 4 * g + jx)}, {vr(sc + 4 * g + jx)}')
                p(f'v_cvt_pk_bf16_f32 {vr(P + 2 * g)}, {vr(sc + 4 * g)}, {vr(sc + 4 * g + 1)}')
                p(f'v_cvt_pk_bf16_f32 {vr(P + 2 * g + 1)}, {vr(sc + 4 * g + 2)}, {vr(sc + 4 * g + 3)}')
        p(mf32(O + 48, kvreg(15, 3), P + 4, O + 48))
        for g in owrite(2):
            p.add(list(g))
        self.stamp(6)
        p(f'''v_max3_f32 {vr(t)}, abs({vr(O + 12)}), abs({vr(O + 28)}), abs({vr(O + 44)})
v_add_f32 {vr(t + 1)}, {vr(O + 12)}, {vr(O + 28)}
v_add_f32 {vr(t + 1)}, {vr(t + 1)}, {vr(O + 44)}
v_add_f32 {vr(t + 1)}, {vr(t + 1)}, {vr(O + 60)}
v_max3_f32 {vr(t)}, {vr(t)}, abs({vr(O + 60)}), abs({vr(O + 60)})
v_cmp_nge_f32 vcc, {hx(2.0 ** 60)}, {vr(t)}
v_cmp_u_f32 {sp(sM0)}, {vr(t + 1)}, {vr(t + 1)}
s_or_b64 vcc, vcc, {sp(sM0)}
s_cmp_lg_u64 vcc, 0
s_cselect_b32 s{sT0}, 1, {1 if c.force_fb else 0}
s_lshl_b32 s{sT1}, s{sW}, 2
s_add_u32 s{sT1}, s{sT1}, {FLG}
v_mov_b32 {vr(t)}, s{sT0}
v_mov_b32 {vr(t + 1)}, s{sT1}''')
        p(f'ds_write_b32 {vr(t + 1)}, {vr(t)}', tokw=['ow'])
        p(f'v_mov_b32 {vr(t + 1)}, {FLG}')
        p.need('ow', 'wo', 'z2a')
        p('s_barrier')
        if self.c.fine == 12:
            self.stamp(24)
        p(f'ds_read_b128 {vr(t + 4, 4)}, {vr(t + 1)}')
        R = S
        for a in range(3):
            for k in range(4):
                p(f'ds_read_b128 {vr(R + 16 * a + 4 * k, 4)}, {vr(vW0 + a)}{off(k * 1024)}')
        p(f'''v_or_b32 {vr(t + 4)}, {vr(t + 4)}, {vr(t + 5)}
v_or3_b32 {vr(t + 4)}, {vr(t + 4)}, {vr(t + 6)}, {vr(t + 7)}
v_readfirstlane_b32 s{sT0}, {vr(t + 4)}
s_andn2_b32 s{sT0}, s{sT0}, s{sFB}
s_cmp_lg_u32 s{sT0}, 0
s_cbranch_scc1 .Ltruemax''')
        Oo = O + 48
        for a in range(3):
            for k in range(8):
                p(f'v_pk_add_f32 {vr(Oo + 2 * k, 2)}, {vr(Oo + 2 * k, 2)}, {vr(R + 16 * a + 2 * k, 2)}')
        p(f'''v_mov_b32 {vr(t)}, {vr(Oo + 12)}
v_mov_b32 {vr(t + 2)}, {vr(Oo + 12)}
v_permlane32_swap_b32 {vr(t)}, {vr(t + 2)}
v_rcp_f32 {vr(t)}, {vr(t + 2)}
v_mov_b32 {vr(t + 1)}, {vr(t)}
v_cndmask_b32 {vr(t + 2)}, {vr(t)}, 0, {sp(sM2)}
v_mov_b32 {vr(t + 3)}, {vr(t + 2)}''')
        for k in range(8):
            sc = t if k < 6 else t + 2
            p(f'v_pk_mul_f32 {vr(Oo + 2 * k, 2)}, {vr(Oo + 2 * k, 2)}, {vr(sc, 2)}')
        for a in range(2):
            for k in range(4 * a, 4 * a + 4):
                p(f'v_cvt_pk_bf16_f32 {vr(O + k)}, {vr(Oo + 2 * k)}, {vr(Oo + 2 * k + 1)}')
            if c.tag:
                p(f'v_min_u32 {vr(O + 4 * a)}, -2, {vr(O + 4 * a)}')
            p(f'buffer_store_dwordx4 {vr(O + 4 * a, 4)}, {vr(vPo)}, {srd(sWS)}, s91 offen{off(512 * a)} sc1',
              tokw=['st2'])
        if c.tag:
            self.stamp(7)
            if c.dfirst & 1:
                p.add(self.z2a_items)
            if c.more & 1:
                self.z2b(0, 4)
        else:
            p(f'''s_lshl_b32 s{sT0}, s{sQB}, 2
s_add_u32 s{sT0}, s{sT0}, s{sW}
s_lshl_b32 s{sT0}, s{sT0}, {7 + self.LR}
s_add_u32 s{sT0}, s{sT0}, {CNT + self.C_S2 * 128}
v_lshlrev_b32 {vr(vSP)}, 7, {vr(vL)}
v_add_u32 {vr(vSP)}, s{sT0}, {vr(vSP)}''')
            p.need('st2')
            self.arrive(vSP, (1 << self.NR) - 1)
            self.stamp(7)
            p.add(self.z2a_items)
            self.z2b(0, 4)

        def truemax():
            p('.Ltruemax:')
            p('s_waitcnt vmcnt(0) lgkmcnt(0)\ns_barrier')
            p(f's_mov_b32 s{sFB}, 1\ns_mov_b32 s{sRAd}, {OOR}\ns_mov_b32 s{sRBd}, {OOR}\n'
              f's_mov_b32 s89, {OOR}\ns_mov_b32 s90, {OOR}')
            for a in range(4):
                for r in (2, 3):
                    p(f'v_cndmask_b32 {vr(qf(a, 1) + r)}, {vr(qf(a, 1) + r)}, 0, {sp(sM2)}')
                p(f'v_mov_b32 {vr(vM + a)}, 0xff7fffff')
            p(f's_mov_b32 s{sKV}, s93\ns_mov_b32 s{sT0}, 16')
            p('.Ltm_loop:')
            p(kvload(15, 0))
            p(kvload(15, 1))
            max_pass(3, False)
            p(f's_add_u32 s{sKV}, s{sKV}, 4096\ns_sub_u32 s{sT0}, s{sT0}, 1\ns_cmp_lg_u32 s{sT0}, 0')
            p('s_cbranch_scc1 .Ltm_loop')
            half_max()
            for a in range(4):
                p(f'''s_add_u32 s{sT0}, s{sW}, {1 + a}
s_and_b32 s{sT0}, s{sT0}, 3
s_lshl_b32 s{sT0}, s{sT0}, 10
s_add_u32 s{sT0}, s{sT0}, {SCR}
v_lshlrev_b32 {vr(t + a)}, 2, {vr(vL)}
v_add_u32 {vr(t + a)}, s{sT0}, {vr(t + a)}
s_lshl_b32 s{sT0}, s{sW}, 8
v_add_u32 {vr(t + 4)}, s{sT0}, {vr(t + a)}''')
                p(f'ds_write_b32 {vr(t + 4)}, {vr(vM + a)}', tokw=['tm'])
            p.need('tm')
            p('s_barrier')
            for a in range(4):
                for k in range(4):
                    p(f'ds_read_b32 {vr(S + 4 * a + k)}, {vr(t + a)}{off(256 * k)}')
            for a in range(4):
                p(f'v_max3_f32 {vr(vM + a)}, {vr(S + 4 * a)}, {vr(S + 4 * a + 1)}, {vr(S + 4 * a + 2)}')
                p(f'v_max_f32 {vr(vM + a)}, {vr(vM + a)}, {vr(S + 4 * a + 3)}')
            patch_q(True)
            p('s_waitcnt lgkmcnt(0)\ns_barrier')
            first_kv()
            p.add(self.pre_items)
            p('s_branch .Lsweep')
        self.truemax = truemax

    def gemm_lds(self, nks, nct, lds_addr, act, acc, ring, nring, w_is_a, fill=(), per=0.0, hooks=None, ahead=6,
                 pre=None, fstart=0, side=None, init=None, tagged=None):
        p = self.p
        seq = [(ks, ct) for ks in range(nks) for ct in range(nct)]
        fill = list(fill)
        hooks = hooks or {}
        rd = lambda n: lds_rd(ring + 4 * (n % nring), lds_addr(*seq[n]))
        issued = 0
        accu = 0.0

        def run_hook(n):
            if n < len(seq) and seq[n][1] == 0 and seq[n][0] in hooks:
                hooks.pop(seq[n][0])()
        if tagged:
            freg, fld, up, later, needs, tmp = tagged
            nld = up
            for f in range(up):
                p.add(fld(f))

            def test(fr):
                o = []
                r = [vr(freg(f)) for f in fr]
                if len(r) == 1:
                    return [f'v_cmp_eq_u32 vcc, -1, {r[0]}']
                cur = r.pop(0)
                while r:
                    if len(r) >= 2:
                        o.append(f'v_max3_u32 {vr(tmp)}, {cur}, {r.pop(0)}, {r.pop(0)}')
                    else:
                        o.append(f'v_max_u32 {vr(tmp)}, {cur}, {r.pop(0)}')
                    cur = vr(tmp)
                return o + [f'v_cmp_eq_u32 vcc, -1, {vr(tmp)}']

            def guard(fr, upto):
                stub, back = p.label('again'), p.label('back')
                p(f's_cbranch_vccnz {stub}')
                p(f'{back}:')
                q = Prog()
                q(f'{stub}:')
                q(f's_sub_u32 s{sTO}, s{sTO}, 1\ns_cmp_eq_u32 s{sTO}, 0\ns_cbranch_scc1 .Lexit')
                for f in range(fr[0], upto):
                    q.add(fld(f, True))
                q.add(test(fr))
                q(f's_cbranch_vccnz {stub}\ns_branch {back}')
                self.stubs += q.ins
        while issued < min(ahead, len(seq)):
            run_hook(issued)
            p(rd(issued))
            issued += 1
        pend = []
        for n, (ks, ct) in enumerate(seq):
            if tagged and ct == 0 and ks in needs:
                assert max(needs[ks]) < nld, (ks, nld)
                if ks == 0:
                    pend = test(needs[ks])
                p.add(pend)
                pend = []
                guard(needs[ks], nld)
                if ks == 0 and self.gotstamp is not None:
                    self.stamp(self.gotstamp)
            if tagged and ct == max(0, nct - 3) and (ks + 1) in needs:
                pend = test(needs[ks + 1])
            if ct == 0 and pre and ks in pre:
                if callable(pre[ks]):
                    pre[ks]()
                else:
                    p.add(pre[ks])
            wf = vr(ring + 4 * (n % nring), 4)
            a, b = (wf, act(ks)) if w_is_a else (act(ks), wf)
            p(mf16(acc(ct), a, b, (init(ct) if init else None) if ks == 0 else acc(ct)))
            if issued < len(seq):
                run_hook(issued)
                p(rd(issued))
                issued += 1
            if side and n in side:
                p.add(side[n])
            if tagged and n in later:
                assert later[n] == nld
                p.add(fld(nld))
                nld += 1
            if pend and max(needs[ks + 1]) < nld:
                p(pend.pop(0))
            if n >= fstart:
                accu += per
            while accu >= 1 and fill:
                p.add(fill.pop(0))
                accu -= 1
        p.add(fill)

    def gelu(self, regs, t, scale):
        o = []
        for n in range(0, len(regs), 2):
            r = regs[n]
            u = t + 2 * ((n // 2) % 4)
            o.append([f'v_pk_mul_f32 {vr(r, 2)}, {vr(r, 2)}, {scale(n // 2)}',
                      f'v_pk_mul_f32 {vr(u, 2)}, {vr(r, 2)}, {vr(r, 2)}',
                      f'v_pk_fma_f32 {vr(u, 2)}, {vr(u, 2)}, {vr(168, 2)}, {vr(170, 2)}',
                      f'v_pk_mul_f32 {vr(u, 2)}, {vr(u, 2)}, {vr(r, 2)}',
                      f'v_exp_f32 {vr(u)}, {vr(u)}',
                      f'v_exp_f32 {vr(u + 1)}, {vr(u + 1)}',
                      f'v_pk_add_f32 {vr(u, 2)}, {vr(u, 2)}, 1.0 op_sel_hi:[1,0]',
                      f'v_rcp_f32 {vr(u)}, {vr(u)}',
                      f'v_rcp_f32 {vr(u + 1)}, {vr(u + 1)}',
                      f'v_pk_mul_f32 {vr(r, 2)}, {vr(r, 2)}, {vr(u, 2)}'])
        out = []
        for n in range(0, len(o), 2):
            if n + 1 < len(o):
                for a, b in zip(o[n], o[n + 1]):
                    out += [a, b]
            else:
                out += o[n]
        return out

    def z2b(self, a0, a1):
        p = self.p
        p(f's_mul_i32 s{sT1}, s{sJ}, {210 * 1024}')
        for a in range(a0, a1):
            if a < 3:
                p(f"""s_add_u32 s{sT5}, s{sW}, {3 - a}
s_and_b32 s{sT5}, s{sT5}, 3
s_mul_i32 s{sT5}, s{sT5}, 12288
s_add_u32 s{sT5}, s{sT5}, {a * 4096}""")
            else:
                p(f's_mov_b32 s{sT5}, {48 * 1024}')
            p(f"""s_add_u32 s{sG}, s{sT1}, s{sT5}
s_add_u32 m0, s{sT5}, {106 * 1024}
s_add_u32 s{sG}, s{sG}, {WIF + 42 * 1024}""")
            for n in range(4 if a < 3 else 1):
                p(f'buffer_load_dwordx4 {vr(vL16)}, {srd(sWS)}, s{sG} offen{off(n * 1024)} sc1 lds', tokw=['z2b'])

    def row_counter(self, base, idreg, varr, vpoll):
        o = [f's_lshl_b32 s{sT0}, s{idreg}, {7 + self.LR}', f's_add_u32 s{sT0}, s{sT0}, {CNT + base * 128}']
        if varr is not None:
            o += [f'v_lshlrev_b32 {vr(varr)}, 7, {vr(vL)}', f'v_add_u32 {vr(varr)}, s{sT0}, {vr(varr)}']
        if vpoll is not None:
            o += [f's_lshl_b32 s{sT3}, s{sCH}, 7', f's_add_u32 s{sT0}, s{sT0}, s{sT3}', f'v_mov_b32 {vr(vpoll)}, s{sT0}']
        return o

    def bar(self, *tok):
        def f():
            self.p.need(*tok)
            self.p('s_barrier')
        return f

    def phase3(self):
        p = self.p
        OB, RING, ACC = 16, 80, 112
        vA, vB, t, vAr, vPo = 7, 8, 10, 12, 13
        K = 1024
        tag = self.c.tag
        if not tag:
            p(f's_lshr_b32 s{sT2}, s{sRT}, 1')
            p.add(self.row_counter(self.C_S2, sT2, None, vA))
            p.add(self.row_counter(self.C_S3, sRT, vAr, vPo))
        p(f's_lshl_b32 s{sT0}, s{sRT}, 10\ns_add_u32 s{sT0}, s{sT0}, {QF}')
        for g in range(4):
            p(f's_add_u32 s{sT2}, s{sJ}, {g}' if self.c.rot36 else f's_mov_b32 s{sT2}, {g}')
            p(f's_and_b32 s{sT2}, s{sT2}, 3\ns_lshl_b32 s{sT2}, s{sT2}, 19\ns_add_u32 s{sA0 + g}, s{sT2}, s{sT0}')
        for k in range(1, 4):
            p(f'v_add_u32 {vr(143 + k)}, {k << 17}, {vr(vL16)}')
        p(f"""s_mul_i32 s{sT4}, s{sRT}, 14336
s_mul_i32 s{sT2}, s{sJ}, {7 * 256}
s_add_u32 s{sT4}, s{sT4}, s{sT2}
s_add_u32 s{sT4}, s{sT4}, {HF}
v_cmp_eq_u32 vcc, 3, {vr(vQ)}
v_mov_b32 {vr(vB)}, {OOR}
v_cndmask_b32 {vr(vB)}, {vr(vL16)}, {vr(vB)}, vcc""")
        XF = 128
        for k in range(8):
            p(f'v_lshlrev_b32 {vr(XF + 2 * k)}, 16, {vr(vXR + k)}\nv_and_b32 {vr(XF + 2 * k + 1)}, 0xffff0000, {vr(vXR + k)}')
        def old(ks, again=False):
            return f'buffer_load_dwordx4 {vr(OB + 4 * ks, 4)}, {vr(vL16 if ks % 4 == 0 else 143 + ks % 4)}, {srd(sWS)}, ' \
                   f's{sA0 + ks // 4} offen sc1'
        args = (16, 4, lambda ks, ct: (ks * 4 + ct) * 1024, lambda ks: vr(OB + 4 * ks, 4), lambda ct: ACC + 4 * ct, RING, 8, True)
        if tag:
            self.gotstamp = 8
            up = self.c.up3
            side = {}
            if not self.c.dfirst & 1:
                z = list(self.z2a_items)
                side = {30 + 2 * n: [x] for n, x in enumerate(z)}
            self.gemm_lds(*args, init=lambda ct: XF + 4 * ct, side=side,
                          tagged=(lambda f: OB + 4 * f, old, up, {(4 * k if up >= 8 else 2 * k): up + k for k in range(16 - up)},
                                  {4 * g: list(range(4 * g, 4 * g + 4)) for g in range(4)}, t))
        else:
            self.poll(vA, 16)
            self.stamp(8)
            for ks in range(8):
                p(old(ks))
            self.gemm_lds(*args, side={4 * ks: [old(ks + 8)] for ks in range(8)}, init=lambda ct: XF + 4 * ct)
        for k in range(8):
            p(f'v_cvt_pk_bf16_f32 {vr(vXR + k)}, {vr(ACC + 2 * k)}, {vr(ACC + 2 * k + 1)}')
            if tag and k % 4 == 0:
                p(f'v_min_u32 {vr(vXR + k)}, -2, {vr(vXR + k)}')
            if k == 3:
                p(f'buffer_store_dwordx4 {vr(vXR, 4)}, {vr(vL16)}, {srd(sWS)}, s{sT4} offen sc1', tokw=['st3'])
        p(f'buffer_store_dwordx4 {vr(vXR + 4, 4)}, {vr(vB)}, {srd(sWS)}, s{sT4} offen offset:1024 sc1', tokw=['st3'])
        if tag:
            self.stamp(9)
            if self.c.more & 1:
                p(f's_mul_i32 s{sT1}, s{sJ}, {210 * 1024}')
                self.bar('z2a', 'z2b')()
                self.emit_groups(self.dma_list(sT1, WIF + 91 * K, 0, 63, 'z1a'))
                return
            if self.c.dfirst & 2:
                self.z2b(0, 4)
            else:
                p(f's_mul_i32 s{sT1}, s{sJ}, {210 * 1024}')
            self.bar('z2a')()
        else:
            self.bar('z2b', 'z2a')()
            p(f's_mul_i32 s{sT1}, s{sJ}, {210 * K}')
            d = self.dma_list(sT1, WIF + 91 * K, 0, 63, 'z1a')
            self.emit_groups(d[:self.c.z1split])
            p.need('st3')
            self.arrive(vAr, (1 << self.NR) - 1)
            self.stamp(9)
            self.emit_groups(d[self.c.z1split:])

    def phase4(self):
        p = self.p
        HB, RING, Z2, Z1 = 16, 80, 112, 140
        ONES, NA, G, SA, RS = 172, 176, 180, 192, 200
        vA, vPerm, vS, vZ, vPo, vP4, vZo = 7, 8, 9, 12, 13, 14, 15
        vAr5, vPo5 = 208, 209
        t = 10
        K = 1024

        def z2addr(ks, ct):
            return (64 * K + (ks * 7 + ct) * K) if ks < 13 else ((ks - 13) * 7 + ct) * K

        def z1addr(ks, ct):
            return (14 * K + (ks * 7 + ct) * K) if ks < 7 else 64 * K + ((ks - 7) * 7 + ct) * K
        p(f's_mul_i32 s{sT0}, s{sRT}, 14336\ns_add_u32 s{sT0}, s{sT0}, {HF}')
        for g in range(4):
            p(f's_add_u32 s{sA0 + g}, s{sT0}, {4096 * g}')
        for r in range(4):
            p(f'v_mov_b32 {vr(ONES + r)}, 0x3f803f80')
        k1 = -2.0 * math.sqrt(2.0 / math.pi) * math.log2(math.e)
        p(f"""v_mov_b32 v168, {hx(k1 * 0.044715)}
v_mov_b32 v169, {hx(k1 * 0.044715)}
v_mov_b32 v170, {hx(k1)}
v_mov_b32 v171, {hx(k1)}
v_mov_b32 {vr(HB + 58)}, 0
v_mov_b32 {vr(HB + 59)}, 0
v_lshlrev_b32 {vr(vP4)}, 4, {vr(vQ)}""")
        self.ln_masks(vPerm)
        p(f"""v_lshlrev_b32 {vr(vS)}, 5, {vr(vQ)}
v_lshl_add_u32 {vr(vA)}, {vr(vC)}, 4, {vr(vS)}
v_and_b32 {vr(t)}, 7, {vr(vC)}
v_lshl_add_u32 {vr(vS)}, {vr(t)}, 7, {vr(vS)}
v_lshrrev_b32 {vr(t)}, 3, {vr(vC)}
v_lshl_add_u32 {vr(vS)}, {vr(t)}, 4, {vr(vS)}
s_lshl_b32 s88, s{sRT}, 10
s_add_u32 s88, s88, {ST}
s_lshl_b32 s89, s{sJ}, 7
s_add_u32 s89, s89, s88""")
        p(f"""s_lshl_b32 s90, s{sJ}, 6
s_lshr_b32 s{sT3}, s{sRT}, 1
s_add_u32 s90, s90, s{sT3}
s_mul_i32 s90, s90, 7168
s_and_b32 s{sT3}, s{sW}, 1
s_lshl_b32 s{sT3}, s{sT3}, 9
s_add_u32 s90, s90, s{sT3}
s_add_u32 s90, s90, {ZF}
s_add_u32 s91, s90, 4096
v_and_b32 {vr(t)}, 1, {vr(vQ)}
v_cmp_ne_u32 vcc, 0, {vr(t)}
v_lshlrev_b32 {vr(vZ)}, 10, {vr(t)}
v_lshrrev_b32 {vr(t)}, 1, {vr(vQ)}
v_lshl_add_u32 {vr(vZ)}, {vr(t)}, 8, {vr(vZ)}
v_lshl_add_u32 {vr(vZ)}, {vr(vC)}, 4, {vr(vZ)}
v_mov_b32 {vr(vZo)}, {OOR}
v_cndmask_b32 {vr(vZo)}, {vr(vZ)}, {vr(vZo)}, vcc""")
        vYo = 211
        p(f"""s_mul_i32 s93, s{sRT}, 28672
s_mul_i32 s{sT3}, s{sJ}, {14 * 256}
s_add_u32 s93, s93, s{sT3}
s_add_u32 s93, s93, {YF}
v_lshlrev_b32 {vr(vYo)}, 8, {vr(t)}
v_lshl_add_u32 {vr(vYo)}, {vr(vC)}, 4, {vr(vYo)}
v_mov_b32 {vr(t)}, {OOR}
v_cndmask_b32 {vr(vYo)}, {vr(vYo)}, {vr(t)}, vcc""")
        for r in range(4):
            p(f'v_mov_b32 {vr(204 + r)}, -1')
        p(f"""s_lshl_b32 s{sT0}, s{sJ}, 2
s_lshr_b32 s{sT3}, s{sI}, 3
s_add_u32 s{sT3}, s{sT3}, s{sT0}
s_lshl_b32 s{sT3}, s{sT3}, {7 + self.LC}
s_add_u32 s{sT3}, s{sT3}, {CNT + self.C_S5 * 128}
v_lshlrev_b32 {vr(vAr5)}, 7, {vr(vL)}
v_add_u32 {vr(vAr5)}, s{sT3}, {vr(vAr5)}
s_add_u32 s{sT0}, s{sT0}, s{sW}
s_lshl_b32 s{sT3}, s{sT0}, {self.LC}
s_add_u32 s{sT3}, s{sT3}, s{sRQ}
s_lshl_b32 s{sT3}, s{sT3}, 7
s_add_u32 s{sT3}, s{sT3}, {CNT + self.C_S5 * 128}
v_mov_b32 {vr(vPo5)}, s{sT3}
s_mul_i32 s92, s{sT0}, {16 * 7168}
s_add_u32 s92, s92, {ZF}
s_mul_i32 s{sT2}, s{sJ}, {112 * K}
s_add_u32 s{sT2}, s{sT2}, {WUF}""")
        tag = self.c.tag
        if not tag:
            self.poll(vPo, 8)
            self.stamp(10)

        def hld(ks, again=False):
            return f'buffer_load_dwordx4 {vr(HB + 4 * ks, 4)}, {vr(vL16)}, {srd(sWS)}, s{sA0 + ks // 4} offen' \
                   f'{off((ks % 4) * K)} sc1'
        if not tag:
            for ks in range(8):
                p(hld(ks))
        pre = {}
        for ks in range(7):
            pre[ks] = []
            for k2 in (2 * ks, 2 * ks + 1):
                h = vr(HB + 4 * k2, 4)
                pre[ks] += [mf16(SA, vr(ONES, 4), h, None if k2 == 0 else SA),
                            mf16(SA + 4, h, h, None if k2 == 0 else SA + 4)]
        fill = self.ln_finish(SA, SA + 4, NA, t, vPerm)
        E = HB + 56
        fill += [f'v_cvt_pk_bf16_f32 {vr(E)}, {vr(NA + 1)}, {vr(NA + 1)}',
                 f'v_and_b32 {vr(t)}, 0xffff0000, {vr(E)}',
                 f'v_sub_f32 {vr(t)}, {vr(NA + 1)}, {vr(t)}',
                 f'v_cvt_pk_bf16_f32 {vr(E)}, {vr(NA + 1)}, {vr(t)}',
                 f'v_mov_b32 {vr(E + 1)}, {vr(E)}']
        fill += [f'ds_bpermute_b32 {vr(RS + r)}, {vr(vP4)}, {vr(NA)}{off(4 * r)}' for r in range(4)]
        args = (15, 7, z2addr, lambda ks: vr(HB + 4 * ks, 4), lambda ct: Z2 + 4 * ct, RING, 8, False)
        if tag:
            d = [list(x) for x in self.dma_list(sT1, WIF + 91 * K, 0, 63, 'z1a')] if not self.c.more & 1 else []
            Y0 = 204
            yst = lambda va, o_: [(f'buffer_store_dwordx4 {vr(Y0, 4)}, {vr(va)}, {srd(sWS)}, s93 offen{off(o_)} sc1', ['yf'])]
            d += [yst(vL16, 0), yst(vL16, 1024), yst(vL16, 2048), yst(vYo, 3072)]
            if self.c.tagz:
                d += [[(f'buffer_store_dwordx4 {vr(Y0, 4)}, {vr(vZ if a < 3 else vZo)}, {srd(sWS)}, s{90 + a // 2} offen'
                        f'{off((a % 2) * 2048)} sc1', ['yf'])] for a in range(4)]
            side = {20 + 2 * n: x for n, x in enumerate(d)}
            if not self.c.dfirst & 2:
                keep = self.p
                self.p = Prog()
                self.z2b(0, 4)
                zz, self.p = self.p.ins, keep
                grp, cur = [], []
                for x in zz:
                    cur.append(x)
                    if x.kind == 'dma':
                        grp.append(cur)
                        cur = []
                side = {16 + n: x for n, x in enumerate(grp)}
                side.update({32 + 2 * n: x for n, x in enumerate(d)})
            self.gotstamp = 10
            self.gemm_lds(*args, fill=fill, per=0.5, fstart=52, pre=pre, side=side,
                          hooks={13: self.bar('z1a')} if self.c.more & 1 else {6: self.bar('z2b'), 13: self.bar('z1a')},
                          tagged=(lambda f: HB + 4 * f, hld, 8, {3 * n: 8 + n for n in range(6)},
                                  {0: [0, 1, 2, 3], 2: [4, 5, 6, 7], 4: [8, 9, 10, 11], 6: [12, 13]}, 210))
        else:
            self.gemm_lds(*args, fill=fill, per=0.5, fstart=52, pre=pre, side={3 * n: [hld(8 + n)] for n in range(6)},
                          hooks={13: self.bar('z1a')})
        if self.c.tagz:
            p.need('yf')
        p('s_barrier')
        if self.c.tagz:
            Ls = p.label('noarr')
            p(f's_cmp_lg_u32 s{sW}, 0\ns_cbranch_scc1 {Ls}')
            self.arrive(vAr5, (1 << self.NC) - 1)
            p(f'{Ls}:')
        self.stamp(12)
        d = self.dma_list(sT1, WIF + (105 + 49) * K, 64 * K, 56, 'z1b')
        g = self.gelu(list(range(Z2, Z2 + 28)), G, lambda n: vr(RS + 2 * (n % 2), 2))
        p.add(interleave(g, [list(x) for x in d], per=len(d) / float(len(g)) + 0.03))
        SS, SQ = G, G + 4
        for ct in range(7):
            for h in range(2):
                z = vr(Z2 + 4 * ct + 2 * h, 2)
                if ct == 0:
                    p(f'v_pk_mul_f32 {vr(SQ + 2 * h, 2)}, {z}, {z}')
                else:
                    p(f'v_pk_fma_f32 {vr(SQ + 2 * h, 2)}, {z}, {z}, {vr(SQ + 2 * h, 2)}')
                    a = vr(Z2 + 2 * h, 2) if ct == 1 else vr(SS + 2 * h, 2)
                    p(f'v_pk_add_f32 {vr(SS + 2 * h, 2)}, {z}, {a}')
        for sh in (8, 4, 2, 1):
            for r in range(8):
                p(f'v_add_f32_dpp {vr(G + r)}, {vr(G + r)}, {vr(G + r)} row_ror:{sh} row_mask:0xf bank_mask:0xf')
        PB = G + 8
        p(f"""v_cndmask_b32 {vr(PB)}, {vr(SS)}, {vr(SS + 2)}, {sp(sM0)}
v_cndmask_b32 {vr(PB + 1)}, {vr(SQ)}, {vr(SQ + 2)}, {sp(sM0)}
v_cndmask_b32 {vr(PB + 2)}, {vr(SS + 1)}, {vr(SS + 3)}, {sp(sM0)}
v_cndmask_b32 {vr(PB + 3)}, {vr(SQ + 1)}, {vr(SQ + 3)}, {sp(sM0)}""")
        for r in range(4):
            p(f'v_min_u32 {vr(PB + r)}, -2, {vr(PB + r)}')
        p.need('yf')
        p(f's_mov_b32 exec_lo, 0x00030003\ns_mov_b32 exec_hi, 0x00030003')
        p(f'buffer_store_dwordx4 {vr(PB, 4)}, {vr(vA)}, {srd(sWS)}, s89 offen sc1')
        p('s_mov_b64 exec, -1')
        self.stamp(13)
        GB = 204
        gather = f'buffer_load_dwordx4 {vr(GB, 4)}, {vr(vS)}, {srd(sWS)}, s88 offen sc1'

        def normalise():
            self.stamp(14)
            L, Dn = p.label('st'), p.label('std')
            p(f'{L}:')
            p(f"""v_max3_u32 {vr(t)}, {vr(GB)}, {vr(GB + 1)}, {vr(GB + 2)}
v_max_u32 {vr(t)}, {vr(t)}, {vr(GB + 3)}
v_cmp_eq_u32 vcc, -1, {vr(t)}
s_cbranch_vccz {Dn}
{gather}
s_sub_u32 s{sTO}, s{sTO}, 1
s_cmp_lg_u32 s{sTO}, 0
s_cbranch_scc1 {L}
s_branch .Lexit
{Dn}:""")
            self.stamp(15)
            for m in ('quad_perm:[1,0,3,2]', 'quad_perm:[2,3,0,1]', 'row_half_mirror'):
                for r in range(4):
                    p(f'v_add_f32_dpp {vr(GB + r)}, {vr(GB + r)}, {vr(GB + r)} {m} row_mask:0xf bank_mask:0xf')
            ch = []
            for r in range(2):
                s_, q_ = GB + 2 * r, GB + 2 * r + 1
                ch.append([f'v_mul_f32 {vr(s_)}, {hx(-1.0 / 896)}, {vr(s_)}',
                           f'v_mul_f32 {vr(t + r)}, {vr(s_)}, {vr(s_)}',
                           f'v_sub_f32 {vr(t + r)}, {hx(1e-5)}, {vr(t + r)}',
                           f'v_fmac_f32 {vr(t + r)}, {hx(1.0 / 896)}, {vr(q_)}',
                           f'v_max_f32 {vr(t + r)}, {hx(1e-5)}, {vr(t + r)}',
                           f'v_rsq_f32 {vr(q_)}, {vr(t + r)}',
                           f'v_mul_f32 {vr(s_)}, {vr(s_)}, {vr(q_)}'])
            for a_, b_ in zip(*ch):
                p(a_)
                p(b_)
            RA, RB = G, G + 4
            for r in range(4):
                p(f'v_mov_b32 {vr(RA + r)}, {vr(GB + 2 * (r % 2) + 1)}')
                p(f'v_mov_b32 {vr(RB + r)}, {vr(GB + 2 * (r % 2))}')
            for r in range(4):
                bm = '0xc' if r < 2 else '0x3'
                p(f'v_mov_b32_dpp {vr(RA + r)}, {vr(GB + 2 * (r % 2) + 1)} row_ror:8 row_mask:0xf bank_mask:{bm}')
                p(f'v_mov_b32_dpp {vr(RB + r)}, {vr(GB + 2 * (r % 2))} row_ror:8 row_mask:0xf bank_mask:{bm}')
            for a in range(4):
                d = 188 + 4 * a
                for e in range(2):
                    ct = 2 * a + e
                    if ct < 7:
                        for h in range(2):
                            z = Z2 + 4 * ct + 2 * h
                            p(f'v_pk_fma_f32 {vr(z, 2)}, {vr(z, 2)}, {vr(RA + 2 * h, 2)}, {vr(RB + 2 * h, 2)}')
                        for h in range(2):
                            z = Z2 + 4 * ct + 2 * h
                            p(f'v_cvt_pk_bf16_f32 {vr(d + 2 * e + h)}, {vr(z)}, {vr(z + 1)}')
                p(f'v_permlane16_swap_b32 {vr(d)}, {vr(d + 2)}')
                p(f'v_permlane16_swap_b32 {vr(d + 1)}, {vr(d + 3)}')
                if self.c.tagz:
                    p(f'v_min_u32 {vr(d)}, -2, {vr(d)}')
                p(f'buffer_store_dwordx4 {vr(d, 4)}, {vr(vZ if a < 3 else vZo)}, {srd(sWS)}, s{90 + a // 2} offen'
                  f'{off((a % 2) * 2048)} sc1', tokw=['st5'])

        def arrive5():
            if self.c.tagz:
                p(f'buffer_load_dword v210, {vr(vPo5)}, {srd(sWS)}, 0 offen sc1')
                self.stamp(16)
                return
            p.need('st5')
            p('s_barrier')
            Ls = p.label('noarr')
            p(f's_cmp_lg_u32 s{sW}, 0\ns_cbranch_scc1 {Ls}')
            self.arrive(vAr5, (1 << self.NC) - 1)
            p(f'{Ls}:')
            self.stamp(16)
        c = self.c
        d = [list(x) for x in self.dma_wu(0, 8, 120 * K, 'wua')]
        self.gemm_lds(15, 7, z1addr, lambda ks: vr(HB + 4 * ks, 4), lambda ct: Z1 + 4 * ct, RING, 8, True,
                      hooks={7: self.bar('z1b')}, side={7 * c.kgat: [gather]},
                      pre={c.knorm: normalise, c.karr: arrive5}, fill=d, per=1.0, fstart=7 * c.karr)
        p('s_barrier')
        self.stamp(17)
        g = self.gelu(list(range(Z1, Z1 + 28)), G, lambda n: f'{vr(NA, 2)} op_sel_hi:[1,0]')
        g += [f'v_cvt_pk_bf16_f32 {vr(vZ1 + k)}, {vr(Z1 + 2 * k)}, {vr(Z1 + 2 * k + 1)}' for k in range(14)]
        if c.wubearly and not c.more & 2:
            d = [list(x) for x in self.dma_wu(8, 9, 84 * K, 'wub')]
            p.add(interleave(g[:c.gsplit], d, per=len(d) / float(max(c.gsplit, 1)) + 0.05))
        else:
            p.add(g[:c.gsplit])
        self.gelu_rest = g[c.gsplit:]

    def phase5(self):
        p = self.p
        ZB, ACC = 16, 100
        vW0, vYo, vAr, vPo, vRd = 8, 11, 12, 13, 7
        vPo5 = 209
        t = 14
        K = 1024
        acc = lambda a, ct: ACC + (a * 7 + ct) * 4
        zb = lambda ks, ct: ZB + ((ks % 3) * 7 + ct) * 4
        p(f"""s_mul_i32 s{sA3}, s{sK2 + 1}, {7168 * 2 // 128}
s_add_u32 s{sA0}, s92, s{sA3}
s_add_u32 s{sA1}, s{sA0}, 4096""")
        tagz = self.c.tagz
        if tagz:
            self.check(210, vPo5, 8)
        else:
            self.poll(vPo5, 8)
            self.stamp(18)
        vX = 6

        def ztest(ks):
            r = [vr(zb(ks, ct)) for ct in range(7)]
            return [f'v_max3_u32 {vr(vX)}, {r[0]}, {r[1]}, {r[2]}', f'v_max3_u32 {vr(vX)}, {vr(vX)}, {r[3]}, {r[4]}',
                    f'v_max3_u32 {vr(vX)}, {vr(vX)}, {r[5]}, {r[6]}', f'v_cmp_eq_u32 vcc, -1, {vr(vX)}']

        def zguard(ks, issued):
            stub, back = p.label('again'), p.label('back')
            p(f's_cbranch_vccnz {stub}')
            p(f'{back}:')
            q = Prog()
            q(f'{stub}:')
            q(f's_sub_u32 s{sTO}, s{sTO}, 1\ns_cmp_eq_u32 s{sTO}, 0\ns_cbranch_scc1 .Lexit')
            for k in sorted(set(k for k, _ in issued)):
                q(f'''s_mul_i32 s94, s{sK2 + 1}, {7168 * 2 // 128}
s_add_u32 s94, s94, {k * 7168}
s_sub_u32 s95, s94, {16 * 7168}
s_cmp_ge_u32 s94, {16 * 7168}
s_cselect_b32 s94, s95, s94
s_add_u32 s94, s94, s92
s_add_u32 s95, s94, 4096''')
                for k2, ct in issued:
                    if k2 == k:
                        q(f'buffer_load_dwordx4 {vr(zb(k, ct), 4)}, {vr(vL16)}, {srd(sWS)}, s{94 if ct < 4 else 95} offen'
                          f'{off((ct % 4) * K)} sc1')
            q.add(ztest(ks))
            q(f's_cbranch_vccnz {stub}\ns_branch {back}')
            self.stubs += q.ins

        def zl(ks, ct):
            o = []
            if ct == 0 and ks:
                o += [f's_add_u32 s{sA3}, s{sA3}, 7168']
                if ks % 2 == 0:
                    o += [f's_cmp_eq_u32 s{sA3}, {16 * 7168}', f's_cselect_b32 s{sA3}, 0, s{sA3}']
                o += [f's_add_u32 s{sA0}, s92, s{sA3}']
            if ct == 4 and ks:
                o += [f's_add_u32 s{sA1}, s{sA0}, 4096']
            o.append(f'buffer_load_dwordx4 {vr(zb(ks, ct), 4)}, {vr(vL16)}, {srd(sWS)}, s{sA0 if ct < 4 else sA1} offen'
                     f'{off((ct % 4) * K)} sc1')
            return o
        first = [zl(ks, ct) for ks in range(3) for ct in range(7)]
        p.add(first[:8])
        n1 = self.c.zpre
        rest = first[8:n1]
        late = first[n1:]
        wub = [list(x) for x in self.dma_wu(8, 9, 84 * K, 'wub')] if not self.c.wubearly else [[]]
        g = self.gelu_rest
        p.add(interleave(g, rest, per=len(rest) / float(max(len(g), 1)) + 0.02))
        for a in range(3):
            p(f"""s_add_u32 s{sT0}, s{sW}, {1 + a}
s_and_b32 s{sT0}, s{sT0}, 3
s_mul_i32 s{sT0}, s{sT0}, {3 * 7168}
s_add_u32 s{sT0}, s{sT0}, {a * 7168}
v_add_u32 {vr(vW0 + a)}, s{sT0}, {vr(vL16)}""")
        mm = lambda a, ks, ct: mf16(acc(a, ct), vr(zb(ks, ct), 4), ar((a * 16 + ks) * 4, 4),
                                    None if ks == 0 else acc(a, ct))
        fill = [f's_mul_i32 s{sT0}, s{sW}, {3 * 7168}', f'v_add_u32 {vr(vRd)}, s{sT0}, {vr(vL16)}']
        fill += wub.pop(0)
        if not self.c.tag:
            fill += self.row_counter(self.C_S6, sRT, vAr, vPo)
        fill += f"""s_mul_i32 s{sT4}, s{sRT}, 28672
s_mul_i32 s{sT1}, s{sJ}, {14 * 256}
s_add_u32 s{sT4}, s{sT4}, s{sT1}
s_add_u32 s{sT4}, s{sT4}, {YF}
v_and_b32 {vr(t)}, 1, {vr(vQ)}
v_cmp_ne_u32 {sp(sM0)}, 0, {vr(t)}
v_lshrrev_b32 {vr(t)}, 1, {vr(vQ)}
v_lshlrev_b32 {vr(vYo)}, 8, {vr(t)}
v_lshl_add_u32 {vr(vYo)}, {vr(vC)}, 4, {vr(vYo)}
v_mov_b32 {vr(t)}, {OOR}
v_cndmask_b32 {vr(vYo)}, {vr(vYo)}, {vr(t)}, {sp(sM0)}
v_lshlrev_b32 {vr(t)}, 16, {vr(vBS)}
v_mov_b32 {vr(t + 1)}, {vr(t)}""".split('\n')
        order = [(ks, ct) for ks in range(16) for ct in range(7)]
        nissued = n1
        pend = []
        for ks in range(13):
            if self.c.fine == 5 and ks % 2 == 1:
                self.stamp(24 + ks // 2)
            if tagz:
                p.add(ztest(ks) if ks == 0 else pend)
                zguard(ks, order[7 * ks:nissued])
                if ks == 0:
                    self.stamp(18)
            for ct in range(7):
                if tagz and ct == 6:
                    assert nissued >= 7 * (ks + 2)
                    pend = ztest(ks + 1)
                if late:
                    late.append(zl(ks + 3, ct))
                    for a in range(4):
                        p(mm(a, ks, ct))
                        if a == 1 and len(late) > 1:
                            p.add(late.pop(0))
                            nissued += 1
                        elif pend and ct == 6 and a != 3:
                            p(pend.pop(0))
                    p.add(late.pop(0))
                    nissued += 1
                    continue
                z = zl(ks + 3, ct)
                for a in range(4):
                    p(mm(a, ks, ct))
                    if a < 3 and len(z) > 1:
                        p(z.pop(0))
                        if len(z) > 4 - a:
                            p(z.pop(0))
                    elif pend and ct == 6 and a != 3:
                        p(pend.pop(0))
                    elif a == 1 and fill and ks >= 3:
                        p(fill.pop(0))
                    elif a == 1 and self.c.wubmain and wub and not fill and ct in (2, 5):
                        p.add(wub.pop(0))
                p.add(z)
                nissued += 1
        assert not fill
        for a in range(4):
            w = []
            if a:
                w = [(f'ds_write_b128 {vr(vW0 + a - 1)}, {vr(acc(a - 1, ct), 4)}{off(ct * K)}', ['pw'])
                     for ct in range(7)]
            n = 0
            for ks in (13, 14, 15):
                if tagz and a == 0:
                    p.add(pend)
                    zguard(ks, order[7 * ks:])
                    pend = ztest(ks + 1) if ks < 15 else []
                for ct in range(7):
                    p(mm(a, ks, ct))
                    if pend and ct >= 4:
                        p(pend.pop(0))
                    n += 1
                    if w and n >= 2 and (n % 3) == 2:
                        p.add(w.pop(0))
                    elif wub and n % 3 == 0 and a >= self.c.wubat:
                        p.add(wub.pop(0))
            p.add(w)
        assert not wub
        self.stamp(19)
        p.need('pw', 'wua', 'wub')
        p('s_barrier')
        if self.c.fine == 12:
            self.stamp(29)
        G = acc(3, 0)
        D = ACC
        for ct in range(7):
            for a in range(3):
                p(f'ds_read_b128 {vr(ZB + (a * 7 + ct) * 4, 4)}, {vr(vRd)}{off((a * 7 + ct) * K)}', tokw=['pr'])
        for k in range(14):
            p(f'v_pk_add_f32 {vr(G + 2 * k, 2)}, {vr(G + 2 * k, 2)}, {vr(t, 2)}')
        U = ACC + 16
        for k in range(14):
            u = U + 2 * k
            p(f'v_lshlrev_b32 {vr(u)}, 16, {vr(vZ1 + k)}\nv_and_b32 {vr(u + 1)}, 0xffff0000, {vr(vZ1 + k)}')
        for pr in range(4):
            ks_ = range(4 * pr, min(4 * pr + 4, 14))
            for a in range(3):
                for k in ks_:
                    p(f'v_pk_add_f32 {vr(G + 2 * k, 2)}, {vr(G + 2 * k, 2)}, {vr(ZB + a * 28 + 2 * k, 2)}')
            for k in ks_:
                p(f'v_pk_mul_f32 {vr(G + 2 * k, 2)}, {vr(G + 2 * k, 2)}, {vr(U + 2 * k, 2)}')
            for k in ks_:
                p(f'v_cvt_pk_bf16_f32 {vr(D + k)}, {vr(G + 2 * k)}, {vr(G + 2 * k + 1)}')
            if self.c.tag:
                p(f'v_min_u32 {vr(D + 4 * pr)}, -2, {vr(D + 4 * pr)}')
            if pr < 3:
                p(f'buffer_store_dwordx4 {vr(D + 4 * pr, 4)}, {vr(vL16)}, {srd(sWS)}, s{sT4} offen{off(1024 * pr)} sc1',
                  tokw=['st6'])
        p(f"""v_mov_b32 {vr(D + 14)}, {vr(D + 12)}
v_mov_b32 {vr(D + 15)}, {vr(D + 13)}
v_permlane16_swap_b32 {vr(D + 12)}, {vr(D + 14)}
v_permlane16_swap_b32 {vr(D + 13)}, {vr(D + 15)}""")
        p(f'buffer_store_dwordx4 {vr(D + 12, 4)}, {vr(vYo)}, {srd(sWS)}, s{sT4} offen offset:3072 sc1', tokw=['st6'])
        if self.c.more & 2:
            self.emit_groups(self.dma_wu(8, 9, 84 * K, 'wub'))
        if self.c.fine == 12:
            self.stamp(30)
        p.need('pr')
        p('s_barrier')
        d = self.dma_wu(17, 11, 0, 'wuc')
        self.wuc = []
        if self.c.tag:
            self.stamp(20)
            if self.c.dfirst & 4:
                self.emit_groups(d)
            else:
                self.wuc = [list(x) for x in d]
        else:
            self.emit_groups(d[:self.c.wusplit])
            p.need('st6')
            self.arrive(vAr, (1 << self.NR) - 1)
            self.stamp(20)
            self.emit_groups(d[self.c.wusplit:])

    def phase6(self):
        p = self.p
        YB, RING, ACC, XF = 16, 128, 160, 176
        vPo, vO, vOo = 13, 8, 9
        K = 1024

        def wuaddr(ks, ct):
            if ks < 8:
                return 120 * K + (ks * 4 + ct) * K
            if ks < 17:
                return 84 * K + ((ks - 8) * 4 + ct) * K
            return ((ks - 17) * 4 + ct) * K
        p(f"""s_mul_i32 s{sT0}, s{sRT}, 28672
s_add_u32 s{sT0}, s{sT0}, {YF}
s_mul_i32 s{sT1}, s{sRT}, {16 * 896}
s_mul_i32 s{sT3}, s{sJ}, 112
s_add_u32 s{sT1}, s{sT1}, s{sT3}
v_mov_b32 {vr(vOo)}, {OOR}""")
        if self.c.otr:
            p(f"""v_lshrrev_b32 v11, 2, {vr(vL)}
v_and_b32 v12, 3, {vr(vL)}
v_mul_u32_u24 {vr(vO)}, 896, v11
v_lshl_add_u32 {vr(vO)}, v12, 4, {vr(vO)}
v_cmp_eq_u32 vcc, 3, v12
v_lshl_add_u32 v12, v12, 4, v11
s_lshl_b32 s{sT3}, s{sW}, 11
s_add_u32 s{sT3}, s{sT3}, {48 * K}
v_lshlrev_b32 v12, 4, v12
v_add_u32 v12, s{sT3}, v12
v_add_u32 v11, s{sT3}, {vr(vL16)}""")
        else:
            p(f"""v_mul_u32_u24 {vr(vO)}, 896, {vr(vC)}
v_lshl_add_u32 {vr(vO)}, {vr(vQ)}, 4, {vr(vO)}
v_cmp_eq_u32 vcc, 3, {vr(vQ)}""")
        p(f'v_cndmask_b32 {vr(vOo)}, {vr(vO)}, {vr(vOo)}, vcc')
        for g in range(4):
            p(f's_add_u32 s{sT4}, s{sJ}, {g}' if self.c.rot36 else f's_mov_b32 s{sT4}, {g}')
            p(f's_and_b32 s{sT4}, s{sT4}, 3\ns_mul_i32 s{sT4}, s{sT4}, 7168\ns_add_u32 s{88 + 2 * g}, s{sT4}, s{sT0}')
            p(f's_add_u32 s{89 + 2 * g}, s{88 + 2 * g}, 4096')
        for k in range(8):
            p(f'v_lshlrev_b32 {vr(XF + 2 * k)}, 16, {vr(vXR + k)}\nv_and_b32 {vr(XF + 2 * k + 1)}, 0xffff0000, {vr(vXR + k)}')
        if not self.c.tag:
            self.poll(vPo, 8)
            self.stamp(21)

        def yld(ks, again=False):
            g, r = ks // 7, ks % 7
            return f'buffer_load_dwordx4 {vr(YB + 4 * ks, 4)}, {vr(vL16)}, {srd(sWS)}, s{88 + 2 * g + r // 4} offen' \
                   f'{off((r % 4) * K)} sc1'
        args = (28, 4, wuaddr, lambda ks: vr(YB + 4 * ks, 4), lambda ct: ACC + 4 * ct, RING, 8, True)
        if self.c.tag:
            self.gotstamp = 21
            up = self.c.up6
            self.gemm_lds(*args, hooks={8: self.bar('wub', 'wuc')} if self.c.more & 2 else {17: self.bar('wuc')},
                          init=lambda ct: XF + 4 * ct, side={2 + 3 * n: x for n, x in enumerate(self.wuc)},
                          tagged=(lambda f: YB + 4 * f, yld, up, {(4 * k if up >= 8 else 3 * k): up + k for k in range(28 - up)},
                                  {4 * g: list(range(4 * g, 4 * g + 4)) for g in range(7)}, 10))
        else:
            for ks in range(10):
                p(yld(ks))
            self.gemm_lds(*args, side={4 * ks: [yld(ks + 10)] for ks in range(18)}, hooks={17: self.bar('wuc')},
                          init=lambda ct: XF + 4 * ct)
        self.stamp(22)
        if self.c.otr:
            for a in range(2):
                for k in range(4 * a, 4 * a + 4):
                    p(f'v_cvt_pk_bf16_f32 {vr(vXR + k)}, {vr(ACC + 2 * k)}, {vr(ACC + 2 * k + 1)}')
                p(f'ds_write_b128 v11, {vr(vXR + 4 * a, 4)}{off(1024 * a)}')
            for a in range(2):
                p(f'ds_read_b128 {vr(XF + 4 * a, 4)}, v12{off(1024 * a)}')
            p(f'buffer_store_dwordx4 {vr(XF, 4)}, {vr(vO)}, {srd(sOUT)}, s{sT1} offen {self.c.outsc}')
            p(f'buffer_store_dwordx4 {vr(XF + 4, 4)}, {vr(vOo)}, {srd(sOUT)}, s{sT1} offen offset:64 {self.c.outsc}')
            return
        for k in range(8):
            p(f'v_cvt_pk_bf16_f32 {vr(vXR + k)}, {vr(ACC + 2 * k)}, {vr(ACC + 2 * k + 1)}')
            if k == 3:
                p(f'buffer_store_dwordx4 {vr(vXR, 4)}, {vr(vO)}, {srd(sOUT)}, s{sT1} offen {self.c.outsc}')
        p(f'buffer_store_dwordx4 {vr(vXR + 4, 4)}, {vr(vOo)}, {srd(sOUT)}, s{sT1} offen offset:64 {self.c.outsc}')

    def build(self):
        p = self.p
        c = self.c
        self.truemax = None
        self.prologue()
        self.phase1()
        self.spare()
        self.attention()
        for n, ph in ((3, self.phase3), (4, self.phase4), (5, self.phase5), (6, self.phase6)):
            if c.stop >= n and c.stop > 1:
                ph()
        if c.stop >= 6:
            Lz = p.label('nz')
            p(f's_cmp_lg_u32 s2, 224\ns_cbranch_scc1 {Lz}\ns_cmp_lg_u32 s{sW}, 0\ns_cbranch_scc1 {Lz}')
            p(f'v_mov_b32 {vr(vT)}, 0\ns_mov_b64 exec, 1')
            p(f'buffer_store_dword {vr(vT)}, {vr(vT)}, {srd(sDBG)}, 0 offen sc1\ns_mov_b64 exec, -1')
            p(f'{Lz}:')
        p('.Lexit:')
        if c.probe >= 0:
            p('s_waitcnt vmcnt(0)')
            self.stamp(23)
            p(f'''.Lspin:
s_memrealtime {sp(sTM + 2)}
s_waitcnt lgkmcnt(0)
s_sub_u32 s{sT0}, s{sTM + 2}, s{sTM}
s_cmp_lt_u32 s{sT0}, 8000
s_cbranch_scc1 .Lspin''')
        if c.diag:
            p('s_waitcnt vmcnt(0)')
            self.stamp(23)
            p(f'''s_lshl_b32 s{sT0}, s2, 2
s_add_u32 s{sT0}, s{sT0}, s{sW}
s_lshl_b32 s{sT0}, s{sT0}, 8
s_add_u32 s{sT0}, s{sT0}, {STAMP}
v_lshlrev_b32 {vr(vT)}, 2, {vr(vL)}
buffer_store_dword {vr(vST)}, {vr(vT)}, {srd(sWS)}, s{sT0} offen''')
        p('s_endpgm')
        if self.truemax:
            self.truemax()
        p.ins += self.stubs
        p('.Lend:')
        p('s_endpgm')
        p.insert_waits()
        nn = p.insert_nops()
        hdr = open('sequential_preLN__softmax_full_mha__mixer_gmlp__prompt.s.ref').read()
        hdr = hdr[:hdr.index('; Override launch')]
        txt = hdr + '; @launch grid=(256,1,1) block=(256,1,1) lds=163840\n'
        txt += f'''.amdgcn_target "amdgcn-amd-amdhsa--gfx950"
.text
.globl {NAME}
.p2align 8
.type {NAME},@function
{NAME}:
'''
        txt += p.text()
        txt += f'''.section .rodata,"a"
.p2align 6
.amdhsa_kernel {NAME}
  .amdhsa_next_free_vgpr 512
  .amdhsa_next_free_sgpr 102
  .amdhsa_accum_offset 256
  .amdhsa_group_segment_fixed_size 0
  .amdhsa_kernarg_size 88
  .amdhsa_user_sgpr_count 2
  .amdhsa_user_sgpr_kernarg_segment_ptr 1
  .amdhsa_system_sgpr_workgroup_id_x 1
  .amdhsa_float_denorm_mode_32 3
  .amdhsa_ieee_mode 0
.end_amdhsa_kernel
'''
        return txt, nn


def generate(**kw):
    c = Cfg()
    for k, v in kw.items():
        assert hasattr(c, k), k
        setattr(c, k, v)
    return Gen(c).build()


if __name__ == '__main__':
    out = sys.argv[1]
    kw = {}
    for a in sys.argv[2:]:
        k, v = a.split('=')
        kw[k] = eval(v)
    txt, nn = generate(**kw)
    open(out, 'w').write(txt)
    print('written', out, len(txt), 'bytes; nop states inserted:', nn)
```
